```python
import torch

def _softmax(x, axis=-1):
    return torch.softmax(x, dim=axis)
def _gelu(x):
    return torch.nn.functional.gelu(x, approximate="tanh")
def _silu(x):
    return torch.nn.functional.silu(x)
def _sigmoid(x):
    return torch.sigmoid(x)
def _layernorm(x, axis=-1, eps=1e-5):
    m = x.mean(dim=axis, keepdim=True)
    v = x.var(dim=axis, keepdim=True, unbiased=False)
    return (x - m) / torch.sqrt(v + eps)
def _scatter_add(tgt, idx, src, axis=0):
    return tgt.clone().index_add_(axis, idx, src)
def _segment_sum(src, seg, n):
    out = torch.zeros((n,) + src.shape[1:], dtype=src.dtype)
    return out.index_add_(0, seg, src)
def _pad(x, pw):
    flat = tuple(v for pair in reversed(pw) for v in pair)
    return torch.nn.functional.pad(x, flat)

kernel_name = 'parallel_sum__ssm_conv_s4d__dense_activation_mish__prompt'

def setup_inputs():

    _w = (lambda a: (lambda t: t.to(torch.bfloat16) if t.is_floating_point() else t)(torch.as_tensor(a)))
    def _A_setup():
        Bsz, L, D, N = 1, 2048, 640, 128
        return {
            "u": _w((lambda *s: torch.randn(*s, dtype=torch.bfloat16) * 0.05)(Bsz, L, D)),
            "log_A_real": _w((lambda *s: torch.randn(*s, dtype=torch.bfloat16) * 3.2)(D, N) * 0.5),
            "A_imag": _w((lambda *s: torch.randn(*s, dtype=torch.bfloat16) * 0.05)(D, N) * 3.14),
            "C_real": _w((lambda *s: torch.randn(*s, dtype=torch.bfloat16) * 0.2)(D, N) / N ** 0.5),
            "C_imag": _w((lambda *s: torch.randn(*s, dtype=torch.bfloat16) * 0.2)(D, N) / N ** 0.5),
            "log_dt": _w((lambda *s: torch.randn(*s, dtype=torch.bfloat16) * 0.05)(D) * 0.5 - 4.0),
            "D_skip": _w((lambda *s: torch.randn(*s, dtype=torch.bfloat16) * 0.05)(D)),
        }
    _A_in = _A_setup()

    def _B_setup():
        B, S, D, F = 1, 2048, 640, 1728
        return {
            "x": _w((lambda *s: torch.randn(*s, dtype=torch.bfloat16) * 0.05)(B, S, D)),
            "w1": _w((lambda *s: torch.randn(*s, dtype=torch.bfloat16) * 0.8)(D, F) * (D ** -0.5)),
            "b1": _w((lambda *s: torch.randn(*s, dtype=torch.bfloat16) * 0.2)(F)),
            "w2": _w((lambda *s: torch.randn(*s, dtype=torch.bfloat16) * 0.2)(F, D) * (F ** -0.5)),
        }
    _B_in = _B_setup()

    return {
        "A_u": _A_in["u"],
        "A_log_A_real": _A_in["log_A_real"],
        "A_A_imag": _A_in["A_imag"],
        "A_C_real": _A_in["C_real"],
        "A_C_imag": _A_in["C_imag"],
        "A_log_dt": _A_in["log_dt"],
        "A_D_skip": _A_in["D_skip"],
        "B_x": _B_in["x"],
        "B_w1": _B_in["w1"],
        "B_b1": _B_in["b1"],
        "B_w2": _B_in["w2"],
    }

def reference(A_u, A_log_A_real, A_A_imag, A_C_real, A_C_imag, A_log_dt, A_D_skip, B_x, B_w1, B_b1, B_w2):
    def _A_ref(u, log_A_real, A_imag, C_real, C_imag, log_dt, D_skip):
        L = u.shape[1]
        dt = torch.exp(log_dt)
        A = -torch.exp(log_A_real) + 1j * A_imag
        C = (C_real + 1j * C_imag) * dt[:, None]
        pos = (lambda x, dt: x.to(dt))(torch.arange(L), log_dt.dtype)
        P = torch.exp((A * dt[:, None])[:, :, None] * pos[None, None, :])
        K = 2.0 * torch.einsum("dn,dnl->dl", C, P).real
        L2 = 2 * L
        u_t = (lambda x, *d: x.permute(*d))(u, 0, 2, 1)
        Kf = (lambda x, *a, **k: torch.fft.rfft(x.float(), *a, **k))(K, L2)
        Uf = (lambda x, *a, **k: torch.fft.rfft(x.float(), *a, **k))(u_t, L2)
        y = (lambda x, *a, **k: torch.fft.irfft(x, *a, **k).to(torch.bfloat16))(Uf * Kf[None, :, :], L2)[:, :, :L]
        y = (lambda x, *d: x.permute(*d))(y, 0, 2, 1)
        return y + u * D_skip[None, None, :]

    def _B_ref(x, w1, b1, w2):
        h = torch.einsum("bsd,df->bsf", x, w1) + b1
        sp = torch.log1p(torch.exp(-torch.abs(h))) + torch.where(h > 0, h, torch.zeros_like(h))
        act = h * torch.tanh(sp)
        return torch.einsum("bsf,fd->bsd", act, w2)

    x = A_u
    xn = _layernorm(x, axis=-1)
    return x + _A_ref(xn, A_log_A_real, A_A_imag, A_C_real, A_C_imag, A_log_dt, A_D_skip) + _B_ref(xn, B_w1, B_b1, B_w2)
```

```python
import sys

NAME = "parallel_sum__ssm_conv_s4d__dense_activation_mish__prompt"

L, D, NS, F = 2048, 640, 128, 1728

XNF = 0
XNT = XNF + 128 * 20 * 1024
XNT_STR = 4352
W1F = XNT + 640 * XNT_STR
W2F = W1F + 108 * 20 * 1024
KR0 = W2F + 40 * 54 * 1024
KR_STR = 4384
KR1 = KR0 + 640 * KR_STR
ACTF = KR1 + 640 * KR_STR
YT = ACTF + 128 * 54 * 1024
WS_END = YT + 640 * 4096

LOG2E = 0x3fb8aa3b
INV2PI = 0x3e22f983


class Asm:
    def __init__(self):
        self.lines = []
        self.lab = 0

    def e(self, s):
        self.lines.append("    " + s)

    def c(self, s):
        self.lines.append("    ; " + s)

    def label(self, name):
        self.lines.append(name + ":")

    def newlabel(self, p="L"):
        self.lab += 1
        return "%s_%d" % (p, self.lab)


def vr(a, n=1):
    return "v%d" % a if n == 1 else "v[%d:%d]" % (a, a + n - 1)


def sr(a, n=1):
    return "s%d" % a if n == 1 else "s[%d:%d]" % (a, a + n - 1)


P_U, P_LOGA, P_AIM, P_CRE, P_CIM, P_LDT, P_DSK, P_BX, P_W1, P_B1, P_W2, P_OUT, P_DBG, P_WS = [8 + 2 * i for i in range(14)]
SRD_WS = 36


def prologue(a, nwg):
    a.e("s_cmp_ge_u32 s2, %d" % nwg)
    a.e("s_cbranch_scc1 L_end_%s" % a.kname)
    a.e("s_load_dwordx16 s[8:23], s[0:1], 0")
    a.e("s_load_dwordx8 s[24:31], s[0:1], 64")
    a.e("s_load_dwordx4 s[32:35], s[0:1], 96")
    a.e("v_lshrrev_b32 v1, 6, v0")
    a.e("v_and_b32 v0, 63, v0")
    a.e("s_nop 0")
    a.e("v_readfirstlane_b32 s3, v1")
    a.e("s_waitcnt lgkmcnt(0)")
    a.e("s_mov_b32 s%d, s%d" % (SRD_WS, P_WS))
    a.e("s_and_b32 s%d, s%d, 0xffff" % (SRD_WS + 1, P_WS + 1))
    a.e("s_mov_b32 s%d, %d" % (SRD_WS + 2, WS_END))
    a.e("s_mov_b32 s%d, 0x00020000" % (SRD_WS + 3))


def make_srd(a, dst, ptr, nbytes):
    a.e("s_mov_b32 s%d, s%d" % (dst, ptr))
    a.e("s_and_b32 s%d, s%d, 0xffff" % (dst + 1, ptr + 1))
    a.e("s_mov_b32 s%d, %d" % (dst + 2, nbytes))
    a.e("s_mov_b32 s%d, 0x00020000" % (dst + 3))


def bf16r(a, dst, src):
    a.e("v_cvt_pk_bf16_f32 %s, %s, %s" % (vr(dst), vr(src), vr(src)))
    a.e("v_lshlrev_b32 %s, 16, %s" % (vr(dst), vr(dst)))


N_KG = 640
N_LN = 128
N_W1 = 108
N_W2 = 120
P1_WGS = N_KG + N_LN + N_W1 + N_W2
P1_LDS = 4 * 18432 + 768 * 4


def gen_kgen(a):
    a.c("---- K generation: channel s2 ----")
    a.e("s_lshl_b32 s4, s2, 8")
    a.e("v_lshlrev_b32 v1, 1, v0")
    a.e("v_add_u32 v1, s4, v1")
    a.e("s_lshl_b32 s5, s2, 1")
    a.e("v_mov_b32 v2, s5")
    for h in range(2):
        a.e("global_load_ushort v%d, v1, s[%d:%d] offset:%d" % (10 + h, P_LOGA, P_LOGA + 1, 128 * h))
        a.e("global_load_ushort v%d, v1, s[%d:%d] offset:%d" % (12 + h, P_AIM, P_AIM + 1, 128 * h))
        a.e("global_load_ushort v%d, v1, s[%d:%d] offset:%d" % (14 + h, P_CRE, P_CRE + 1, 128 * h))
        a.e("global_load_ushort v%d, v1, s[%d:%d] offset:%d" % (16 + h, P_CIM, P_CIM + 1, 128 * h))
    a.e("global_load_ushort v18, v2, s[%d:%d]" % (P_LDT, P_LDT + 1))
    a.e("s_mul_i32 s6, s2, %d" % XNT_STR)
    a.e("s_add_u32 s6, s6, %d" % XNT)
    a.e("v_mov_b32 v3, 0")
    a.e("v_lshlrev_b32 v4, 2, v0")
    a.e("v_cmp_gt_u32 vcc, 60, v0")
    a.e("s_and_saveexec_b64 s[40:41], vcc")
    a.e("buffer_store_dword v3, v4, s[%d:%d], s6 offen" % (SRD_WS, SRD_WS + 3))
    a.e("s_mov_b64 exec, s[40:41]")
    a.e("s_lshl_b32 s7, 1, s3")
    a.e("s_lshl_b32 s40, 128, s3")
    a.e("s_cmp_eq_u32 s3, 0")
    a.e("s_cselect_b32 s40, 0, s40")
    a.e("s_lshl_b32 s41, s7, 4")
    a.e("v_cvt_f32_u32 v4, s7")
    a.e("v_cvt_f32_u32 v5, s41")
    a.e("v_cvt_f32_u32 v6, s40")
    a.e("s_mul_i32 s42, s3, 18432")
    a.e("s_add_u32 s42, s42, 3072")
    a.e("v_lshrrev_b32 v7, 4, v0")
    a.e("v_mul_u32_u24 v7, 2304, v7")
    a.e("v_add_u32 v7, s42, v7")
    a.e("v_and_b32 v8, 15, v0")
    a.e("v_lshl_add_u32 v9, v8, 3, v7")
    a.e("v_mul_u32_u24 v8, 144, v8")
    a.e("v_add_u32 v8, v8, v7")
    a.e("s_mov_b32 s43, 0x%x" % LOG2E)
    a.e("s_mov_b32 s44, 0x%x" % INV2PI)
    for i in range(4):
        a.e("v_mov_b32 v%d, 0" % (20 + i))
    a.e("s_waitcnt vmcnt(0)")
    a.e("v_lshlrev_b32 v18, 16, v18")
    a.e("v_mul_f32 v18, s43, v18")
    a.e("v_exp_f32 v18, v18")
    a.e("s_nop 0")
    bf16r(a, 18, 18)
    for h in range(2):
        la, aim, cre, cim = 10 + h, 12 + h, 14 + h, 16 + h
        a.e("v_lshlrev_b32 v%d, 16, v%d" % (la, la))
        a.e("v_lshlrev_b32 v%d, 16, v%d" % (aim, aim))
        a.e("v_lshlrev_b32 v%d, 16, v%d" % (cre, cre))
        a.e("v_lshlrev_b32 v%d, 16, v%d" % (cim, cim))
        a.e("v_mul_f32 v%d, s43, v%d" % (la, la))
        a.e("v_exp_f32 v%d, v%d" % (la, la))
        a.e("s_nop 0")
        bf16r(a, la, la)
        a.e("v_mul_f32 v%d, v%d, v18" % (la, la))
        a.e("v_mul_f32 v%d, v%d, v18" % (aim, aim))
        a.e("v_mul_f32 v%d, v%d, v18" % (cre, cre))
        a.e("v_mul_f32 v%d, v%d, v18" % (cim, cim))
        a.e("v_mul_f32 v%d, s43, v%d" % (la, la))
        a.e("v_mul_f32 v%d, s44, v%d" % (aim, aim))
        a.e("v_add_f32 v%d, v%d, v%d" % (cre, cre, cre))
        a.e("v_add_f32 v%d, v%d, v%d" % (cim, cim, cim))

    def cexp(p, la, aim, outr, outi, t0, t1):
        a.e("v_mul_f32 v%d, -v%d, v%d" % (t0, la, p))
        a.e("v_mul_f32 v%d, v%d, v%d" % (t1, aim, p))
        a.e("v_exp_f32 v%d, v%d" % (t0, t0))
        a.e("v_fract_f32 v%d, v%d" % (t1, t1))
        a.e("v_cos_f32 v%d, v%d" % (outr, t1))
        a.e("v_sin_f32 v%d, v%d" % (outi, t1))
        a.e("s_nop 0")
        a.e("v_mul_f32 v%d, v%d, v%d" % (outr, outr, t0))
        a.e("v_mul_f32 v%d, v%d, v%d" % (outi, outi, t0))

    for h in range(2):
        la, aim, cre, cim = 10 + h, 12 + h, 14 + h, 16 + h
        zsr, zsi, zar, zai, xr, xn, yr, yi, t0, t1, e0, e1 = range(24, 36)
        cexp(4, la, aim, zsr, zsi, t0, t1)
        cexp(5, la, aim, zar, zai, t0, t1)
        cexp(6, la, aim, e0, e1, t0, t1)
        a.e("v_mul_f32 v%d, v%d, v%d" % (xr, cre, e0))
        a.e("v_fma_f32 v%d, -v%d, v%d, v%d" % (xr, cim, e1, xr))
        a.e("v_mul_f32 v%d, -v%d, v%d" % (xn, cre, e1))
        a.e("v_fma_f32 v%d, -v%d, v%d, v%d" % (xn, cim, e0, xn))
        a.e("v_mov_b32 v%d, 1.0" % yr)
        a.e("v_mov_b32 v%d, 0" % yi)
        if h == 1:
            a.e("s_waitcnt lgkmcnt(0)")
        for i in range(16):
            a.e("ds_write_b64 v9, v[%d:%d] offset:%d" % (xr, xn, i * 144))
            a.e("ds_write_b64 v9, v[%d:%d] offset:%d" % (yr, yi, 9216 + i * 144))
            if i < 15:
                a.e("v_mul_f32 v%d, v%d, v%d" % (t0, xr, zar))
                a.e("v_mul_f32 v%d, v%d, v%d" % (t1, xn, zar))
                a.e("v_mul_f32 v%d, v%d, v%d" % (e0, yr, zsr))
                a.e("v_mul_f32 v%d, v%d, v%d" % (e1, yi, zsr))
                a.e("v_fma_f32 v%d, v%d, v%d, v%d" % (t0, xn, zai, t0))
                a.e("v_fma_f32 v%d, -v%d, v%d, v%d" % (t1, xr, zai, t1))
                a.e("v_fma_f32 v%d, -v%d, v%d, v%d" % (e0, yi, zsi, e0))
                a.e("v_fma_f32 v%d, v%d, v%d, v%d" % (e1, yr, zsi, e1))
                a.e("v_mov_b32 v%d, v%d" % (xr, t0))
                a.e("v_mov_b32 v%d, v%d" % (xn, t1))
                a.e("v_mov_b32 v%d, v%d" % (yr, e0))
                a.e("v_mov_b32 v%d, v%d" % (yi, e1))
        a.e("s_waitcnt lgkmcnt(0)")
        for j in range(8):
            a.e("ds_read_b128 v[%d:%d], v8 offset:%d" % (40 + 4 * j, 43 + 4 * j, 16 * j))
            a.e("ds_read_b128 v[%d:%d], v8 offset:%d" % (72 + 4 * j, 75 + 4 * j, 9216 + 16 * j))
        a.e("s_waitcnt lgkmcnt(0)")
        for k in range(32):
            a.e("v_mfma_f32_16x16x4_f32 v[20:23], v%d, v%d, v[20:23]" % (40 + k, 72 + k))
    KD = 0
    a.e("s_lshl_b32 s45, s3, 7")
    a.e("s_add_u32 s45, s45, 128")
    a.e("s_cmp_eq_u32 s3, 0")
    a.e("s_cselect_b32 s45, 0, s45")
    a.e("s_lshl_b32 s45, s45, 2")
    a.e("s_add_u32 s45, s45, %d" % KD)
    a.e("v_lshrrev_b32 v1, 4, v0")
    a.e("v_lshlrev_b32 v1, 8, v1")
    a.e("v_and_b32 v2, 15, v0")
    a.e("v_lshl_add_u32 v1, v2, 2, v1")
    a.e("v_add_u32 v1, s45, v1")
    a.e("s_mov_b64 s[40:41], -1")
    a.e("s_sub_u32 s46, s3, 1")
    a.e("s_cmp_lt_u32 s46, 2")
    a.e("s_cselect_b32 s41, 0, s41")
    a.e("s_nop 7")
    a.e("s_nop 1")
    a.e("s_mov_b64 exec, s[40:41]")
    for i in range(4):
        a.e("ds_write_b32 v1, v%d offset:%d" % (20 + i, 64 * i))
    a.e("s_mov_b64 exec, -1")
    a.e("s_waitcnt lgkmcnt(0)")
    a.e("s_barrier")
    a.e("s_lshl_b32 s4, s3, 6")
    a.e("v_add_u32 v1, s4, v0")
    a.e("s_mul_i32 s6, s2, %d" % KR_STR)
    a.e("s_add_u32 s6, s6, %d" % KR0)
    for rnd in range(3):
        gi = 2
        a.e("v_add_u32 v%d, %d, v1" % (gi, 256 * rnd))
        if rnd == 2:
            a.e("v_cmp_gt_u32 vcc, 548, v%d" % gi)
            a.e("s_and_saveexec_b64 s[40:41], vcc")
        a.e("v_cmp_le_u32 vcc, 274, v%d" % gi)
        a.e("v_mov_b32 v3, 0")
        a.e("v_mov_b32 v4, 0")
        a.e("v_cndmask_b32 v3, 0, 1, vcc")
        a.e("v_mov_b32 v5, %d" % 274)
        a.e("v_cndmask_b32 v4, 0, v5, vcc")
        a.e("v_sub_u32 v4, v%d, v4" % gi)
        a.e("v_mov_b32 v5, %d" % (KR_STR * 640))
        a.e("v_mul_lo_u32 v5, v5, v3")
        a.e("v_lshl_add_u32 v5, v4, 4, v5")
        a.e("v_lshlrev_b32 v4, 3, v4")
        a.e("v_sub_u32 v4, v3, v4")
        a.e("v_add_u32 v4, 2048, v4")
        for e in range(8):
            a.e("v_subrev_u32 v%d, %d, v4" % (10 + e, e))
            a.e("v_min_u32 v%d, 2047, v%d" % (20 + e, 10 + e))
            a.e("v_cvt_f32_u32 v%d, v%d" % (30 + e, 20 + e))
        for e in range(0, 8, 2):
            a.e("v_cvt_pk_bf16_f32 v%d, v%d, v%d" % (40 + e, 30 + e, 31 + e))
            a.e("v_lshrrev_b32 v%d, 16, v%d" % (41 + e, 40 + e))
            a.e("v_and_b32 v%d, 0xffff, v%d" % (40 + e, 40 + e))
        for e in range(8):
            a.e("v_subrev_u32 v%d, 17024, v%d" % (40 + e, 40 + e))
            a.e("v_cmp_gt_u32 vcc, 128, v%d" % (20 + e))
            a.e("s_nop 1")
            a.e("v_cndmask_b32 v%d, v%d, v%d, vcc" % (40 + e, 40 + e, 20 + e))
            a.e("v_lshlrev_b32 v%d, 2, v%d" % (40 + e, 40 + e))
            a.e("ds_read_b32 v%d, v%d offset:%d" % (50 + e, 40 + e, KD))
        a.e("s_waitcnt lgkmcnt(0)")
        for e in range(8):
            a.e("v_cmp_gt_u32 vcc, 2048, v%d" % (10 + e))
            a.e("s_nop 1")
            a.e("v_cndmask_b32 v%d, 0, v%d, vcc" % (50 + e, 50 + e))
        for e in range(0, 8, 2):
            a.e("v_cvt_pk_bf16_f32 v%d, v%d, v%d" % (60 + e // 2, 50 + e, 51 + e))
        a.e("buffer_store_dwordx4 v[60:63], v5, s[%d:%d], s6 offen" % (SRD_WS, SRD_WS + 3))
        if rnd == 2:
            a.e("s_mov_b64 exec, s[40:41]")
        else:
            a.e("s_nop 1")
    a.e("s_branch L_end_%s" % a.kname)


def gen_ln(a):
    a.c("---- LayerNorm: row block s2-640 ----")
    a.e("s_sub_u32 s4, s2, %d" % N_KG)
    a.e("s_lshl_b32 s5, s4, 4")
    a.e("s_lshl_b32 s6, s3, 2")
    a.e("s_add_u32 s5, s5, s6")
    a.e("v_lshrrev_b32 v1, 4, v0")
    a.e("v_and_b32 v2, 15, v0")
    a.e("v_add_u32 v3, s5, v1")
    a.e("v_mul_u32_u24 v3, 1280, v3")
    a.e("v_lshl_add_u32 v3, v2, 4, v3")
    for i in range(5):
        a.e("global_load_dwordx4 v[%d:%d], v3, s[%d:%d] offset:%d" % (10 + 4 * i, 13 + 4 * i, P_U, P_U + 1, 256 * i))
    a.e("s_waitcnt vmcnt(0)")
    for j in range(20):
        a.e("v_lshlrev_b32 v%d, 16, v%d" % (40 + 2 * j, 10 + j))
        a.e("v_and_b32 v%d, 0xffff0000, v%d" % (41 + 2 * j, 10 + j))
    a.e("v_add_f32 v4, v40, v41")
    for j in range(2, 40):
        a.e("v_add_f32 v4, v4, v%d" % (40 + j))

    def red16(reg, tmp):
        for off in (0x041F, 0x081F, 0x101F, 0x201F):
            a.e("ds_swizzle_b32 v%d, v%d offset:0x%x" % (tmp, reg, off))
            a.e("s_waitcnt lgkmcnt(0)")
            a.e("v_add_f32 v%d, v%d, v%d" % (reg, reg, tmp))
    red16(4, 5)
    a.e("s_mov_b32 s7, 0x3acccccd")
    a.e("v_mul_f32 v4, s7, v4")
    a.e("v_sub_f32 v6, v40, v4")
    a.e("v_mul_f32 v5, v6, v6")
    for j in range(1, 40):
        a.e("v_sub_f32 v6, v%d, v4" % (40 + j))
        a.e("v_fma_f32 v5, v6, v6, v5")
    red16(5, 6)
    a.e("v_mul_f32 v5, s7, v5")
    bf16r(a, 4, 4)
    bf16r(a, 5, 5)
    a.e("v_add_f32 v5, 0x3727c5ac, v5")
    bf16r(a, 5, 5)
    a.e("v_sqrt_f32 v5, v5")
    a.e("s_nop 0")
    bf16r(a, 5, 5)
    a.e("v_rcp_f32 v6, v5")
    for j in range(0, 40, 2):
        x0, x1 = 40 + j, 41 + j
        a.e("v_sub_f32 v%d, v%d, v4" % (x0, x0))
        a.e("v_sub_f32 v%d, v%d, v4" % (x1, x1))
        a.e("v_cvt_pk_bf16_f32 v7, v%d, v%d" % (x0, x1))
        a.e("v_lshlrev_b32 v%d, 16, v7" % x0)
        a.e("v_and_b32 v%d, 0xffff0000, v7" % x1)
        a.e("v_mul_f32 v7, v%d, v6" % x0)
        a.e("v_mul_f32 v8, v%d, v6" % x1)
        a.e("v_fma_f32 v%d, -v7, v5, v%d" % (x0, x0))
        a.e("v_fma_f32 v%d, -v8, v5, v%d" % (x1, x1))
        a.e("v_fma_f32 v7, v%d, v6, v7" % x0)
        a.e("v_fma_f32 v8, v%d, v6, v8" % x1)
        a.e("v_cvt_pk_bf16_f32 v%d, v7, v8" % (10 + j // 2))
    a.e("s_mul_i32 s40, s4, 20480")
    a.e("s_add_u32 s40, s40, %d" % XNF)
    a.e("v_lshrrev_b32 v7, 2, v2")
    a.e("v_lshlrev_b32 v7, 10, v7")
    a.e("v_and_b32 v8, 3, v2")
    a.e("v_lshl_add_u32 v7, v8, 8, v7")
    a.e("v_add_u32 v8, s6, v1")
    a.e("v_lshl_add_u32 v7, v8, 4, v7")
    for i in range(5):
        a.e("s_add_u32 s41, s40, %d" % (4096 * i))
        a.e("buffer_store_dwordx4 v[%d:%d], v7, s[%d:%d], s41 offen" % (10 + 4 * i, 13 + 4 * i, SRD_WS, SRD_WS + 3))
    LSTR = 1296
    a.e("v_mul_u32_u24 v9, %d, v8" % LSTR)
    a.e("v_lshl_add_u32 v9, v2, 4, v9")
    for i in range(5):
        a.e("ds_write_b128 v9, v[%d:%d] offset:%d" % (10 + 4 * i, 13 + 4 * i, 256 * i))
    a.e("s_waitcnt lgkmcnt(0)")
    a.e("s_barrier")
    a.e("s_lshl_b32 s5, s3, 6")
    a.e("v_add_u32 v1, s5, v0")
    a.e("s_lshl_b32 s40, s4, 5")
    a.e("s_add_u32 s40, s40, %d" % (XNT + 240))
    for j in range(3):
        a.e("v_add_u32 v2, %d, v1" % (256 * j))
        if j == 2:
            a.e("v_cmp_gt_u32 vcc, 640, v2")
            a.e("s_and_saveexec_b64 s[42:43], vcc")
        a.e("v_lshlrev_b32 v3, 1, v2")
        for r in range(16):
            a.e("ds_read_u16 v%d, v3 offset:%d" % (64 + r, LSTR * r))
        a.e("v_mul_u32_u24 v4, %d, v2" % XNT_STR)
        a.e("s_waitcnt lgkmcnt(0)")
        for r in range(8):
            a.e("v_lshl_or_b32 v%d, v%d, 16, v%d" % (40 + 8 * j + r, 65 + 2 * r, 64 + 2 * r))
        a.e("buffer_store_dwordx4 v[%d:%d], v4, s[%d:%d], s40 offen" % (40 + 8 * j, 43 + 8 * j, SRD_WS, SRD_WS + 3))
        a.e("buffer_store_dwordx4 v[%d:%d], v4, s[%d:%d], s40 offen offset:16" % (44 + 8 * j, 47 + 8 * j, SRD_WS, SRD_WS + 3))
        if j == 2:
            a.e("s_mov_b64 exec, s[42:43]")
    a.e("s_branch L_end_%s" % a.kname)


def gen_wt(a, which):
    if which == 1:
        base_id = N_KG + N_LN
        ncols = F
        ptr = P_W1
        dst = W1F
        nkb = 20
        nj = 5
    else:
        base_id = N_KG + N_LN + N_W1
        ncols = D
        ptr = P_W2
        dst = W2F
        nkb = 54
        nj = 5
    a.c("---- W%d transposition ----" % which)
    a.e("s_sub_u32 s4, s2, %d" % base_id)
    if which == 1:
        a.e("s_mov_b32 s5, s4")
        a.e("s_mov_b32 s6, s3")
        a.e("s_mov_b32 s7, 20")
    else:
        a.e("s_cmp_ge_u32 s4, 40")
        a.e("s_cselect_b32 s40, 1, 0")
        a.e("s_cmp_ge_u32 s4, 80")
        a.e("s_cselect_b32 s41, 1, 0")
        a.e("s_add_u32 s40, s40, s41")
        a.e("s_mul_i32 s41, s40, 40")
        a.e("s_sub_u32 s5, s4, s41")
        a.e("s_mul_i32 s6, s40, 18")
        a.e("s_add_u32 s7, s6, 18")
        a.e("s_add_u32 s6, s6, s3")
    make_srd(a, 44, ptr, D * F * 2)
    a.e("v_lshrrev_b32 v1, 4, v0")
    a.e("v_mul_u32_u24 v1, %d, v1" % (8 * ncols * 2))
    a.e("v_and_b32 v2, 15, v0")
    a.e("v_lshl_add_u32 v1, v2, 1, v1")
    a.e("s_lshl_b32 s40, s5, 5")
    a.e("v_add_u32 v1, s40, v1")
    a.e("v_lshlrev_b32 v2, 4, v0")
    a.e("s_mul_i32 s41, s5, %d" % (nkb * 1024))
    a.e("s_add_u32 s41, s41, %d" % dst)
    for j in range(nj):
        lab = a.newlabel("L_wt")
        a.e("s_add_u32 s42, s6, %d" % (4 * j))
        a.e("s_cmp_ge_u32 s42, s7")
        a.e("s_cbranch_scc1 %s" % lab)
        a.e("s_mul_i32 s43, s42, %d" % (32 * ncols * 2))
        for e in range(8):
            a.e("s_add_u32 s48, s43, %d" % (e * ncols * 2))
            a.e("buffer_load_ushort v%d, v1, s[44:47], s48 offen" % (40 + 8 * j + e))
        a.label(lab)
    for j in range(nj):
        lab = a.newlabel("L_wt")
        a.e("s_add_u32 s42, s6, %d" % (4 * j))
        a.e("s_cmp_ge_u32 s42, s7")
        a.e("s_cbranch_scc1 %s" % lab)
        a.e("s_lshl_b32 s43, s42, 10")
        a.e("s_add_u32 s43, s43, s41")
        a.e("s_waitcnt vmcnt(0)")
        for e in range(4):
            a.e("v_lshl_or_b32 v%d, v%d, 16, v%d" % (10 + 4 * j + e, 41 + 8 * j + 2 * e, 40 + 8 * j + 2 * e))
        a.e("buffer_store_dwordx4 v[%d:%d], v2, s[%d:%d], s43 offen" % (10 + 4 * j, 13 + 4 * j, SRD_WS, SRD_WS + 3))
        a.label(lab)
    a.e("s_branch L_end_%s" % a.kname)


def gen_phase1(a):
    a.kname = "p1"
    a.label("prep_kernel")
    prologue(a, P1_WGS)
    a.e("s_cmp_lt_u32 s2, %d" % N_KG)
    a.e("s_cbranch_scc1 L_p1_kg")
    a.e("s_cmp_lt_u32 s2, %d" % (N_KG + N_LN))
    a.e("s_cbranch_scc1 L_p1_ln")
    a.e("s_cmp_lt_u32 s2, %d" % (N_KG + N_LN + N_W1))
    a.e("s_cbranch_scc1 L_p1_w1")
    gen_wt(a, 2)
    a.label("L_p1_w1")
    gen_wt(a, 1)
    a.label("L_p1_ln")
    gen_ln(a)
    a.label("L_p1_kg")
    gen_kgen(a)
    a.label("L_end_p1")
    a.e("s_endpgm")


class VM:
    def __init__(self, a):
        self.a = a
        self.q = []

    def issue(self, tag):
        self.q.append(tag)

    def wait(self, tag):
        idx = [i for i, t in enumerate(self.q) if t == tag]
        if not idx:
            return
        n = len(self.q) - 1 - idx[-1]
        assert n <= 63
        self.a.e("s_waitcnt vmcnt(%d)" % n)
        self.q = self.q[idx[-1] + 1:]

    def waitall(self):
        if self.q:
            self.a.e("s_waitcnt vmcnt(0)")
            self.q = []


def gemm_loop(a, vm, nst, kbs, nA, nB, nslots, slot_bytes, a_src, b_src, a_kstride_chunks,
              wave_bcols, acc0, regs, vlane16, vrdA, vrdB, sbase, sldso):
    nch = kbs * (nA + nB)
    nld = (nch + 3) // 4

    def dma(st):
        slot = st % nslots
        for j in range(nld):
            a.e("s_add_u32 m0, s%d, %d" % (sldso + j, slot * slot_bytes))
            a.e("s_add_u32 s6, s%d, %d" % (sbase + j, st * kbs * 1024))
            a.e("buffer_load_dwordx4 v%d, s[%d:%d], s6 offen lds" % (vlane16, SRD_WS, SRD_WS + 3))
            vm.issue("st%d" % st)

    def reads(st, rs):
        slot = st % nslots
        r = regs[rs]
        for kk in range(kbs):
            for i in range(nA):
                off = slot * slot_bytes + (kk * nA + i) * 1024
                va = vrdA
                if off >= 65536:
                    off -= 32768
                    va = vrdA + 2
                a.e("ds_read_b128 v[%d:%d], v%d offset:%d" % (r, r + 3, va, off))
                r += 4
            for jj in range(wave_bcols):
                off = slot * slot_bytes + (kbs * nA + kk * nB + jj) * 1024
                vb = vrdB
                if off + (nB - wave_bcols) * 1024 >= 65536:
                    off -= 32768
                    vb = vrdB + 2
                a.e("ds_read_b128 v[%d:%d], v%d offset:%d" % (r, r + 3, vb, off))
                r += 4

    def mfmas(rs):
        per = (nA + wave_bcols) * 4
        for kk in range(kbs):
            r = regs[rs] + kk * per
            for i in range(nA):
                for jj in range(wave_bcols):
                    acc = acc0 + (i * wave_bcols + jj) * 4
                    a.e("v_mfma_f32_16x16x32_bf16 v[%d:%d], v[%d:%d], v[%d:%d], v[%d:%d]" % (
                        acc, acc + 3, r + 4 * i, r + 4 * i + 3, r + 4 * (nA + jj), r + 4 * (nA + jj) + 3, acc, acc + 3))

    for st in range(min(nslots, nst)):
        dma(st)
    vm.wait("st0")
    a.e("s_barrier")
    reads(0, 0)
    for i in range(nst):
        a.e("s_waitcnt lgkmcnt(0)")
        if i + 1 < nst:
            vm.wait("st%d" % (i + 1))
            a.e("s_barrier")
            if i + nslots < nst:
                dma(i + nslots)
            reads(i + 1, (i + 1) % 2)
        mfmas(i % 2)


N_G1 = 192
N_CV = 640
P2_WGS = N_G1 + N_CV
G1_SLOT = 17 * 1024
G1_NSLOT = 4
P2_LDS = G1_SLOT * G1_NSLOT


def gen_gemm1(a):
    a.c("---- GEMM1: mt = s2>>4 (f tile of 144), nt = s2&15 (l tile of 128) ----")
    vm = VM(a)
    a.e("s_lshr_b32 s4, s2, 4")
    a.e("s_and_b32 s5, s2, 15")
    SB, SL = 48, 56
    for j in range(5):
        a.e("s_add_u32 s6, s3, %d" % (4 * j))
        if j == 4:
            a.e("s_mov_b32 s6, 16")
        a.e("s_lshl_b32 s%d, s6, 10" % (SL + j))
        a.e("s_mul_i32 s7, s4, 9")
        a.e("s_add_u32 s7, s7, s6")
        a.e("s_mul_i32 s7, s7, 20480")
        a.e("s_add_u32 s7, s7, %d" % W1F)
        a.e("s_lshl_b32 s40, s5, 3")
        a.e("s_add_u32 s40, s40, s6")
        a.e("s_sub_u32 s40, s40, 9")
        a.e("s_mul_i32 s40, s40, 20480")
        a.e("s_add_u32 s40, s40, %d" % XNF)
        a.e("s_cmp_lt_u32 s6, 9")
        a.e("s_cselect_b32 s%d, s7, s40" % (SB + j))
    VL16, VRA, VRB = 1, 2, 3
    a.e("v_lshlrev_b32 v1, 4, v0")
    a.e("v_mov_b32 v2, v1")
    a.e("s_lshl_b32 s6, s3, 11")
    a.e("v_add_u32 v3, s6, v1")
    a.e("v_add_u32 v4, 0x8000, v2")
    a.e("v_add_u32 v5, 0x8000, v3")
    ACC = 8
    REG = [80, 124]
    BIAS = 168
    a.e("s_mul_i32 s6, s4, 288")
    a.e("v_lshrrev_b32 v6, 4, v0")
    a.e("v_lshlrev_b32 v6, 3, v6")
    a.e("v_add_u32 v6, s6, v6")
    for i in range(9):
        a.e("global_load_dwordx2 v[%d:%d], v6, s[%d:%d] offset:%d" % (BIAS + 2 * i, BIAS + 2 * i + 1, P_B1, P_B1 + 1, 32 * i))
        vm.issue("bias")
    for i in range(72):
        a.e("v_mov_b32 v%d, 0" % (ACC + i))
    gemm_loop(a, vm, 20, 1, 9, 8, G1_NSLOT, G1_SLOT, None, None, None, 2, ACC, REG, VL16, VRA, VRB, SB, SL)
    vm.waitall()
    a.e("s_nop 7")
    a.e("v_lshrrev_b32 v6, 5, v0")
    a.e("v_lshlrev_b32 v6, 8, v6")
    a.e("v_and_b32 v7, 15, v0")
    a.e("v_lshl_add_u32 v6, v7, 4, v6")
    a.e("v_bfe_u32 v7, v0, 4, 1")
    a.e("v_lshl_add_u32 v6, v7, 3, v6")
    a.e("s_lshl_b32 s6, s5, 3")
    a.e("s_lshl_b32 s7, s3, 1")
    a.e("s_add_u32 s6, s6, s7")
    a.e("s_mul_i32 s6, s6, 55296")
    a.e("s_mul_i32 s7, s4, 4608")
    a.e("s_add_u32 s6, s6, s7")
    a.e("s_add_u32 s6, s6, %d" % ACTF)
    a.e("s_add_u32 s7, s6, 55296")
    a.e("s_add_u32 s40, s6, 4096")
    a.e("s_add_u32 s41, s7, 4096")
    a.e("s_mov_b32 s42, 0x%x" % LOG2E)
    T = 80
    for i in range(9):
        b = BIAS + 2 * i
        a.e("v_lshlrev_b32 v%d, 16, v%d" % (T, b))
        a.e("v_and_b32 v%d, 0xffff0000, v%d" % (T + 1, b))
        a.e("v_lshlrev_b32 v%d, 16, v%d" % (T + 2, b + 1))
        a.e("v_and_b32 v%d, 0xffff0000, v%d" % (T + 3, b + 1))
        for jj in range(2):
            acc = ACC + (i * 2 + jj) * 4
            h = T + 4 + 16 * jj
            n = h + 4
            nu = h + 8
            de = h + 12
            for r in range(4):
                a.e("v_add_f32 v%d, v%d, v%d" % (h + r, acc + r, T + r))
            for r in range(4):
                a.e("v_min_f32 v%d, 0x41a00000, v%d" % (n + r, h + r))
            for r in range(4):
                a.e("v_mul_f32 v%d, s42, v%d" % (n + r, n + r))
            for r in range(4):
                a.e("v_exp_f32 v%d, v%d" % (n + r, n + r))
            for r in range(4):
                a.e("v_add_f32 v%d, 2.0, v%d" % (nu + r, n + r))
            for r in range(4):
                a.e("v_mul_f32 v%d, v%d, v%d" % (nu + r, nu + r, n + r))
            for r in range(4):
                a.e("v_add_f32 v%d, 2.0, v%d" % (de + r, nu + r))
            for r in range(4):
                a.e("v_rcp_f32 v%d, v%d" % (de + r, de + r))
            for r in range(4):
                a.e("v_mul_f32 v%d, v%d, v%d" % (nu + r, nu + r, h + r))
            for r in range(4):
                a.e("v_mul_f32 v%d, v%d, v%d" % (nu + r, nu + r, de + r))
            o = 120 + 2 * ((i * 2 + jj) % 8)
            a.e("v_cvt_pk_bf16_f32 v%d, v%d, v%d" % (o, nu, nu + 1))
            a.e("v_cvt_pk_bf16_f32 v%d, v%d, v%d" % (o + 1, nu + 2, nu + 3))
            if i < 8:
                so, off = (6 + jj), 512 * i
            else:
                so, off = (40 + jj), 0
            a.e("buffer_store_dwordx2 v[%d:%d], v6, s[%d:%d], s%d offen offset:%d" % (o, o + 1, SRD_WS, SRD_WS + 3, so, off))
    a.e("s_branch L_end_%s" % a.kname)


CV_KSTR = 4384
CV_UB = 8 * CV_KSTR


def gen_conv(a):
    a.c("---- conv: channel s2 - 192 ----")
    a.e("s_sub_u32 s4, s2, %d" % N_G1)
    a.e("v_lshlrev_b32 v1, 4, v0")
    a.e("s_mul_i32 s5, s4, %d" % KR_STR)
    a.e("s_mul_i32 s7, s4, %d" % XNT_STR)
    a.e("s_add_u32 s7, s7, %d" % XNT)
    a.e("s_lshl_b32 s40, s3, 2")
    a.e("s_sub_u32 s40, 16, s40")
    a.e("s_add_u32 s40, s40, s5")
    a.e("s_add_u32 s41, s40, %d" % KR1)
    a.e("s_add_u32 s40, s40, %d" % KR0)
    a.e("s_mul_i32 s42, s3, %d" % (2 * CV_KSTR))
    a.e("s_add_u32 s43, s42, %d" % CV_KSTR)
    for (sg, sl) in ((40, 42), (41, 43)):
        for p in range(4):
            a.e("s_add_u32 m0, s%d, %d" % (sl, 1024 * p))
            a.e("s_add_u32 s6, s%d, %d" % (sg, 1024 * p))
            a.e("buffer_load_dwordx4 v1, s[%d:%d], s6 offen lds" % (SRD_WS, SRD_WS + 3))
    a.e("s_lshl_b32 s44, s3, 10")
    a.e("s_add_u32 m0, s44, %d" % CV_UB)
    a.e("s_add_u32 s6, s7, s44")
    a.e("buffer_load_dwordx4 v1, s[%d:%d], s6 offen lds" % (SRD_WS, SRD_WS + 3))
    a.e("s_mov_b64 exec, 0xffff")
    for (sg, sl) in ((40, 42), (41, 43)):
        a.e("s_add_u32 m0, s%d, 4096" % sl)
        a.e("s_add_u32 s6, s%d, 4096" % sg)
        a.e("buffer_load_dwordx4 v1, s[%d:%d], s6 offen lds" % (SRD_WS, SRD_WS + 3))
    a.e("s_mov_b32 m0, %d" % (CV_UB + 4096))
    a.e("s_add_u32 s6, s7, 4096")
    a.e("buffer_load_dwordx4 v1, s[%d:%d], s6 offen lds" % (SRD_WS, SRD_WS + 3))
    a.e("s_mov_b64 exec, -1")
    a.e("v_and_b32 v2, 7, v0")
    a.e("v_mul_u32_u24 v2, %d, v2" % CV_KSTR)
    a.e("v_bfe_u32 v3, v0, 3, 1")
    a.e("v_lshlrev_b32 v3, 8, v3")
    a.e("v_sub_u32 v2, v2, v3")
    a.e("v_lshrrev_b32 v3, 4, v0")
    a.e("v_lshl_add_u32 v2, v3, 4, v2")
    a.e("v_add_u32 v2, 640, v2")
    a.e("s_lshl_b32 s6, s3, 7")
    a.e("v_subrev_u32 v2, s6, v2")
    a.e("v_and_b32 v4, 15, v0")
    a.e("v_add_u32 v4, v4, v3")
    a.e("v_lshlrev_b32 v4, 4, v4")
    a.e("v_add_u32 v4, %d, v4" % CV_UB)
    a.e("v_subrev_u32 v4, s6, v4")
    ACC = 8
    RA, RB = 40, 72
    for i in range(32):
        a.e("v_mov_b32 v%d, 0" % (ACC + i))
    a.e("s_waitcnt vmcnt(0)")
    a.e("s_barrier")
    for rr in range(2):
        for x in range(8):
            a.e("ds_read_b128 v[%d:%d], v2 offset:%d" % (RA + 4 * x, RA + 4 * x + 3, (63 - 8 * x - rr) * 64 - 384))
            a.e("ds_read_b128 v[%d:%d], v4 offset:%d" % (RB + 4 * x, RB + 4 * x + 3, 64 * (8 * x - rr + 7)))
        a.e("s_waitcnt lgkmcnt(0)")
        for g in range(8):
            for aa in range(g + 1):
                bb = g - aa
                a.e("v_mfma_f32_16x16x32_bf16 v[%d:%d], v[%d:%d], v[%d:%d], v[%d:%d]" % (
                    ACC + 4 * g, ACC + 4 * g + 3, RA + 4 * aa, RA + 4 * aa + 3, RB + 4 * bb, RB + 4 * bb + 3,
                    ACC + 4 * g, ACC + 4 * g + 3))
    a.e("s_nop 7")
    a.e("s_barrier")
    a.e("s_lshl_b32 s6, s3, 13")
    a.e("v_add_u32 v5, s6, v1")
    for g in range(8):
        a.e("ds_write_b128 v5, v[%d:%d] offset:%d" % (ACC + 4 * g, ACC + 4 * g + 3, 1024 * g))
    a.e("s_waitcnt lgkmcnt(0)")
    a.e("s_barrier")
    a.e("s_lshl_b32 s6, s3, 11")
    a.e("v_add_u32 v5, s6, v1")
    for gg in range(2):
        for w in range(4):
            a.e("ds_read_b128 v[%d:%d], v5 offset:%d" % (RA + 16 * gg + 4 * w, RA + 16 * gg + 4 * w + 3, 8192 * w + 1024 * gg))
    a.e("v_lshrrev_b32 v6, 5, v0")
    a.e("v_lshlrev_b32 v6, 8, v6")
    a.e("v_and_b32 v7, 15, v0")
    a.e("v_lshl_add_u32 v6, v7, 4, v6")
    a.e("v_bfe_u32 v7, v0, 4, 1")
    a.e("v_lshl_add_u32 v6, v7, 3, v6")
    a.e("s_lshl_b32 s6, s4, 12")
    a.e("s_lshl_b32 s7, s3, 10")
    a.e("s_add_u32 s6, s6, s7")
    a.e("s_add_u32 s6, s6, %d" % YT)
    a.e("s_waitcnt lgkmcnt(0)")
    for gg in range(2):
        b = RA + 16 * gg
        for r in range(4):
            a.e("v_add_f32 v%d, v%d, v%d" % (b + r, b + r, b + 4 + r))
            a.e("v_add_f32 v%d, v%d, v%d" % (b + 8 + r, b + 8 + r, b + 12 + r))
        for r in range(4):
            a.e("v_add_f32 v%d, v%d, v%d" % (b + r, b + r, b + 8 + r))
        a.e("v_cvt_pk_bf16_f32 v%d, v%d, v%d" % (b + 4, b, b + 1))
        a.e("v_cvt_pk_bf16_f32 v%d, v%d, v%d" % (b + 5, b + 2, b + 3))
        a.e("buffer_store_dwordx2 v[%d:%d], v6, s[%d:%d], s6 offen offset:%d" % (b + 4, b + 5, SRD_WS, SRD_WS + 3, 512 * gg))
    a.e("s_branch L_end_%s" % a.kname)


def gen_phase2(a):
    a.kname = "p2"
    a.label("mid_kernel")
    prologue(a, P2_WGS)
    a.e("s_cmp_lt_u32 s2, %d" % N_G1)
    a.e("s_cbranch_scc1 L_p2_g1")
    gen_conv(a)
    a.label("L_p2_g1")
    gen_gemm1(a)
    a.label("L_end_p2")
    a.e("s_endpgm")


P3_WGS = 256
G2_SLOT = 18 * 1024
G2_NSLOT = 4
P3_LDS = G2_SLOT * G2_NSLOT


def gen_phase3(a):
    a.kname = "p3"
    a.label("fin_kernel")
    prologue(a, P3_WGS)
    vm = VM(a)
    a.e("s_lshr_b32 s4, s2, 5")
    a.e("s_and_b32 s5, s2, 31")
    SB, SL = 48, 56
    for j in range(5):
        if j < 4:
            a.e("s_add_u32 s6, s3, %d" % (4 * j))
        else:
            a.e("s_and_b32 s6, s3, 1")
            a.e("s_add_u32 s6, s6, 16")
        a.e("s_lshl_b32 s%d, s6, 10" % (SL + j))
        a.e("s_cmp_ge_u32 s6, 5")
        a.e("s_cselect_b32 s40, 1, 0")
        a.e("s_mul_i32 s41, s40, 5")
        a.e("s_sub_u32 s41, s6, s41")
        a.e("s_mul_i32 s7, s4, 5")
        a.e("s_add_u32 s7, s7, s41")
        a.e("s_mul_i32 s7, s7, 54")
        a.e("s_add_u32 s7, s7, s40")
        a.e("s_lshl_b32 s7, s7, 10")
        a.e("s_add_u32 s7, s7, %d" % W2F)
        a.e("s_sub_u32 s40, s6, 10")
        a.e("s_lshr_b32 s41, s40, 2")
        a.e("s_and_b32 s40, s40, 3")
        a.e("s_lshl_b32 s42, s5, 2")
        a.e("s_add_u32 s42, s42, s40")
        a.e("s_mul_i32 s42, s42, 54")
        a.e("s_add_u32 s42, s42, s41")
        a.e("s_lshl_b32 s42, s42, 10")
        a.e("s_add_u32 s42, s42, %d" % ACTF)
        a.e("s_cmp_lt_u32 s6, 10")
        a.e("s_cselect_b32 s%d, s7, s42" % (SB + j))
    VL16, VRA, VRB = 1, 2, 3
    a.e("v_lshlrev_b32 v1, 4, v0")
    a.e("v_mov_b32 v2, v1")
    a.e("s_lshl_b32 s6, s3, 10")
    a.e("v_add_u32 v3, s6, v1")
    a.e("v_add_u32 v4, 0x8000, v2")
    a.e("v_add_u32 v5, 0x8000, v3")
    ACC = 8
    REG = [32, 80]
    EX, EXN, EDS, EY = 128, 138, 148, 160
    a.e("s_lshl_b32 s6, s5, 6")
    a.e("s_lshl_b32 s7, s3, 4")
    a.e("s_add_u32 s6, s6, s7")
    a.e("v_and_b32 v6, 15, v0")
    a.e("v_add_u32 v6, s6, v6")
    a.e("v_lshrrev_b32 v7, 4, v0")
    a.e("s_mul_i32 s7, s4, 160")
    a.e("v_mul_u32_u24 v28, 1280, v6")
    a.e("v_lshl_add_u32 v28, v7, 3, v28")
    a.e("v_add_u32 v28, s7, v28")
    a.e("v_lshlrev_b32 v29, 3, v7")
    a.e("v_add_u32 v29, s7, v29")
    a.e("v_lshrrev_b32 v30, 5, v0")
    a.e("v_lshlrev_b32 v30, 8, v30")
    a.e("v_and_b32 v31, 15, v0")
    a.e("v_lshl_add_u32 v30, v31, 4, v30")
    a.e("v_bfe_u32 v31, v0, 4, 1")
    a.e("v_lshl_add_u32 v30, v31, 3, v30")
    a.e("s_lshr_b32 s40, s6, 4")
    a.e("s_mul_i32 s40, s40, 20480")
    a.e("s_mul_i32 s41, s4, 2560")
    a.e("s_add_u32 s40, s40, s41")
    a.e("s_add_u32 s40, s40, %d" % XNF)
    a.e("v_lshlrev_b32 v31, 14, v7")
    a.e("v_lshl_add_u32 v31, v6, 1, v31")
    a.e("s_mul_i32 s41, s4, %d" % (80 * 4096))
    a.e("s_add_u32 s41, s41, %d" % YT)
    for i in range(5):
        a.e("global_load_dwordx2 v[%d:%d], v28, s[%d:%d] offset:%d" % (EX + 2 * i, EX + 2 * i + 1, P_U, P_U + 1, 32 * i))
        vm.issue("epi")
        a.e("global_load_dwordx2 v[%d:%d], v29, s[%d:%d] offset:%d" % (EDS + 2 * i, EDS + 2 * i + 1, P_DSK, P_DSK + 1, 32 * i))
        vm.issue("epi")
        a.e("buffer_load_dwordx2 v[%d:%d], v30, s[%d:%d], s40 offen offset:%d" % (EXN + 2 * i, EXN + 2 * i + 1, SRD_WS, SRD_WS + 3, 512 * i))
        vm.issue("epi")
        for r in range(4):
            a.e("s_add_u32 s42, s41, %d" % ((16 * i + r) * 4096))
            a.e("buffer_load_ushort v%d, v31, s[%d:%d], s42 offen" % (EY + 4 * i + r, SRD_WS, SRD_WS + 3))
            vm.issue("epi")
    for i in range(20):
        a.e("v_mov_b32 v%d, 0" % (ACC + i))
    gemm_loop(a, vm, 27, 2, 5, 4, G2_NSLOT, G2_SLOT, None, None, None, 1, ACC, REG, VL16, VRA, VRB, SB, SL)
    vm.waitall()
    a.e("s_nop 7")
    T = 32
    for i in range(5):
        acc = ACC + 4 * i
        x, xn, ds, y = T, T + 4, T + 8, EY + 4 * i
        for (dst, src) in ((x, EX + 2 * i), (xn, EXN + 2 * i), (ds, EDS + 2 * i)):
            a.e("v_lshlrev_b32 v%d, 16, v%d" % (dst, src))
            a.e("v_and_b32 v%d, 0xffff0000, v%d" % (dst + 1, src))
            a.e("v_lshlrev_b32 v%d, 16, v%d" % (dst + 2, src + 1))
            a.e("v_and_b32 v%d, 0xffff0000, v%d" % (dst + 3, src + 1))
        for r in range(4):
            a.e("v_lshlrev_b32 v%d, 16, v%d" % (y + r, y + r))
            a.e("v_mul_f32 v%d, v%d, v%d" % (xn + r, xn + r, ds + r))

        def rnd4(b):
            a.e("v_cvt_pk_bf16_f32 v%d, v%d, v%d" % (T + 12, b, b + 1))
            a.e("v_cvt_pk_bf16_f32 v%d, v%d, v%d" % (T + 13, b + 2, b + 3))
            a.e("v_lshlrev_b32 v%d, 16, v%d" % (b, T + 12))
            a.e("v_and_b32 v%d, 0xffff0000, v%d" % (b + 1, T + 12))
            a.e("v_lshlrev_b32 v%d, 16, v%d" % (b + 2, T + 13))
            a.e("v_and_b32 v%d, 0xffff0000, v%d" % (b + 3, T + 13))
        rnd4(xn)
        for r in range(4):
            a.e("v_add_f32 v%d, v%d, v%d" % (xn + r, xn + r, y + r))
        rnd4(xn)
        for r in range(4):
            a.e("v_add_f32 v%d, v%d, v%d" % (xn + r, xn + r, x + r))
        rnd4(xn)
        rnd4(acc)
        for r in range(4):
            a.e("v_add_f32 v%d, v%d, v%d" % (xn + r, xn + r, acc + r))
        o = 60 + 2 * i
        a.e("v_cvt_pk_bf16_f32 v%d, v%d, v%d" % (o, xn, xn + 1))
        a.e("v_cvt_pk_bf16_f32 v%d, v%d, v%d" % (o + 1, xn + 2, xn + 3))
        a.e("global_store_dwordx2 v28, v[%d:%d], s[%d:%d] offset:%d" % (o, o + 1, P_OUT, P_OUT + 1, 32 * i))
    a.label("L_end_p3")
    a.e("s_endpgm")


def kd(name, vgpr):
    nv = (vgpr + 7) // 8 * 8
    return """.amdhsa_kernel %s
  .amdhsa_next_free_vgpr %d
  .amdhsa_next_free_sgpr 96
  .amdhsa_accum_offset %d
  .amdhsa_group_segment_fixed_size 0
  .amdhsa_kernarg_size 112
  .amdhsa_user_sgpr_count 2
  .amdhsa_user_sgpr_kernarg_segment_ptr 1
  .amdhsa_system_sgpr_workgroup_id_x 1
.end_amdhsa_kernel
""" % (name, nv, nv)


def main():
    hdr = open("cdna_kernels/%s.s.ref" % NAME).read().splitlines()
    hdr = [l for l in hdr if l.startswith(";") and "@launch" not in l]
    out = hdr[:]
    out.append("; @launch kernel=prep_kernel grid=(%d,1,1) block=(256,1,1) lds=%d" % (P1_WGS, P1_LDS))
    out.append("; @launch kernel=mid_kernel grid=(%d,1,1) block=(256,1,1) lds=%d" % (P2_WGS, P2_LDS))
    out.append("; @launch kernel=fin_kernel grid=(%d,1,1) block=(256,1,1) lds=%d" % (P3_WGS, P3_LDS))
    out.append('.amdgcn_target "amdgcn-amd-amdhsa--gfx950"')
    out.append(".text")
    a = Asm()
    for (g, n) in ((gen_phase1, "prep_kernel"), (gen_phase2, "mid_kernel"), (gen_phase3, "fin_kernel")):
        a.lines.append(".globl %s" % n)
        a.lines.append(".p2align 8")
        a.lines.append(".type %s,@function" % n)
        g(a)
    out += a.lines
    out.append('.section .rodata,"a"')
    out.append(".p2align 6")
    out.append(kd("prep_kernel", 104))
    out.append(".p2align 6")
    out.append(kd("mid_kernel", 192))
    out.append(".p2align 6")
    out.append(kd("fin_kernel", 184))
    open("cdna_kernels/%s.s" % NAME, "w").write("\n".join(out) + "\n")


if __name__ == "__main__":
    main()
```

```python
import sys, os
SKIP = os.environ.get("SKIP", "").split(",")

NAME = "parallel_sum__ssm_conv_s4d__dense_activation_mish__prompt"

L, D, NS, F = 2048, 640, 128, 1728

XNF = 0
XNT = XNF + 128 * 20 * 1024
XNT_STR = 4352
W1F = XNT + 640 * XNT_STR
W2F = W1F + 108 * 20 * 1024
KR0 = W2F + 40 * 54 * 1024
KR_STR = 4384
KR1 = KR0 + 640 * KR_STR
ACTF = KR1 + 640 * KR_STR
YT = ACTF + 128 * 54 * 1024
WS_END = YT + 640 * 4096

LOG2E = 0x3fb8aa3b
INV2PI = 0x3e22f983


STAMP = os.environ.get("STAMP", "")
ILV = int(os.environ.get("ILV", "1"))
TRACE = os.environ.get("TRACE", "")


class Asm:
    def __init__(self):
        self.lines = []
        self.lab = 0
        self.nst = 0

    def stamp(self):
        if not STAMP or STAMP.split(":")[0] != self.kname:
            return
        i = self.nst
        self.nst += 1
        assert i < 12
        self.e("s_memtime s[%d:%d]" % (64 + 2 * i, 65 + 2 * i))

    def stamp_out(self):
        if TRACE:
            lab = self.newlabel("L_tr")
            self.e("s_waitcnt vmcnt(0) lgkmcnt(0)")
            self.e("s_memrealtime s[90:91]")
            self.e("s_cmp_lg_u32 s3, 0")
            self.e("s_cbranch_scc1 %s" % lab)
            self.e("s_lshl_b32 s92, s2, 3")
            self.e("s_add_u32 s92, s92, %d" % (64 * 1024 * 1024 + 65536 * int(self.kname[1])))
            self.e("v_mov_b32 v1, s92")
            self.e("s_waitcnt lgkmcnt(0)")
            self.e("v_mov_b32 v2, s88")
            self.e("v_mov_b32 v3, s90")
            self.e("global_store_dwordx2 v1, v[2:3], s[%d:%d]" % (P_WS, P_WS + 1))
            self.label(lab)
            return
        if not STAMP or STAMP.split(":")[0] != self.kname:
            return
        wg = int(STAMP.split(":")[1])
        self.e("s_memrealtime s[90:91]")
        self.stamp()
        self.e("s_waitcnt lgkmcnt(0)")
        lab = self.newlabel("L_st")
        self.e("s_cmp_lg_u32 s2, %d" % wg)
        self.e("s_cbranch_scc1 %s" % lab)
        self.e("s_cmp_lg_u32 s3, 0")
        self.e("s_cbranch_scc1 %s" % lab)
        self.e("v_mov_b32 v1, 0")
        for i in range(self.nst):
            self.e("s_sub_u32 s92, s%d, s64" % (64 + 2 * i))
            self.e("v_mov_b32 v2, s92")
            self.e("global_store_dword v1, v2, s[%d:%d] offset:%d" % (P_DBG, P_DBG + 1, 4 * i))
        self.e("s_sub_u32 s92, s90, s88")
        self.e("v_mov_b32 v2, s92")
        self.e("global_store_dword v1, v2, s[%d:%d] offset:%d" % (P_DBG, P_DBG + 1, 60))
        self.label(lab)
        self.nst = 1

    def e(self, s):
        self.lines.append("    " + s)

    def c(self, s):
        self.lines.append("    ; " + s)

    def label(self, name):
        self.lines.append(name + ":")

    def newlabel(self, p="L"):
        self.lab += 1
        return "%s_%d" % (p, self.lab)


def vr(a, n=1):
    return "v%d" % a if n == 1 else "v[%d:%d]" % (a, a + n - 1)


def sr(a, n=1):
    return "s%d" % a if n == 1 else "s[%d:%d]" % (a, a + n - 1)


P_U, P_LOGA, P_AIM, P_CRE, P_CIM, P_LDT, P_DSK, P_BX, P_W1, P_B1, P_W2, P_OUT, P_DBG, P_WS = [8 + 2 * i for i in range(14)]
SRD_WS = 36


def prologue(a, nwg):
    if TRACE:
        a.e("s_memrealtime s[88:89]")
    if STAMP and STAMP.split(":")[0] == a.kname:
        a.e("s_memrealtime s[88:89]")
        a.e("s_memtime s[64:65]")
        a.nst = 1
    a.e("s_cmp_ge_u32 s2, %d" % nwg)
    a.e("s_cbranch_scc1 L_end_%s" % a.kname)
    a.e("s_load_dwordx16 s[8:23], s[0:1], 0")
    a.e("s_load_dwordx8 s[24:31], s[0:1], 64")
    a.e("s_load_dwordx4 s[32:35], s[0:1], 96")
    a.e("v_lshrrev_b32 v1, 6, v0")
    a.e("v_and_b32 v0, 63, v0")
    a.e("s_nop 0")
    a.e("v_readfirstlane_b32 s3, v1")
    a.e("s_waitcnt lgkmcnt(0)")
    a.e("s_mov_b32 s%d, s%d" % (SRD_WS, P_WS))
    a.e("s_and_b32 s%d, s%d, 0xffff" % (SRD_WS + 1, P_WS + 1))
    a.e("s_mov_b32 s%d, %d" % (SRD_WS + 2, WS_END))
    a.e("s_mov_b32 s%d, 0x00020000" % (SRD_WS + 3))


def make_srd(a, dst, ptr, nbytes):
    a.e("s_mov_b32 s%d, s%d" % (dst, ptr))
    a.e("s_and_b32 s%d, s%d, 0xffff" % (dst + 1, ptr + 1))
    a.e("s_mov_b32 s%d, %d" % (dst + 2, nbytes))
    a.e("s_mov_b32 s%d, 0x00020000" % (dst + 3))


def bf16r(a, dst, src):
    a.e("v_cvt_pk_bf16_f32 %s, %s, %s" % (vr(dst), vr(src), vr(src)))
    a.e("v_lshlrev_b32 %s, 16, %s" % (vr(dst), vr(dst)))


N_KG = 640
N_LN = 128
N_W1 = 108
N_W2 = 120
P1_WGS = N_KG + N_LN + N_W1 + N_W2
LN_BASE = 0
W1_BASE = N_LN
W2_BASE = N_LN + N_W1
KG_BASE = N_LN + N_W1 + N_W2


KG_BLK = 16 * 272
KG_WAVE = 2 * KG_BLK
KG_KD = 4 * KG_WAVE
KG_LDS = KG_KD + 2624


def f32bits(x):
    import struct
    return "0x%x" % struct.unpack("<I", struct.pack("<f", float(x)))[0]


def gen_kgen(a):
    a.c("---- K generation ----")
    if "kg" in SKIP:
        a.e("s_branch L_end_%s" % a.kname)
    a.e("s_sub_u32 s4, s2, %d" % KG_BASE)
    a.e("s_lshl_b32 s5, s4, 8")
    a.e("s_lshl_b32 s6, s3, 6")
    a.e("s_add_u32 s5, s5, s6")
    a.e("v_and_b32 v1, 31, v0")
    a.e("v_lshlrev_b32 v2, 1, v1")
    a.e("v_add_u32 v2, s5, v2")
    a.e("s_lshl_b32 s5, s4, 1")
    a.e("v_mov_b32 v3, s5")
    LA, AIM, CRE, CIM, DT = 10, 11, 12, 13, 14
    a.e("global_load_ushort v%d, v2, s[%d:%d]" % (LA, P_LOGA, P_LOGA + 1))
    a.e("global_load_ushort v%d, v2, s[%d:%d]" % (AIM, P_AIM, P_AIM + 1))
    a.e("global_load_ushort v%d, v2, s[%d:%d]" % (CRE, P_CRE, P_CRE + 1))
    a.e("global_load_ushort v%d, v2, s[%d:%d]" % (CIM, P_CIM, P_CIM + 1))
    a.e("global_load_ushort v%d, v3, s[%d:%d]" % (DT, P_LDT, P_LDT + 1))
    lab = a.newlabel("L_kgz")
    a.e("s_cmp_lg_u32 s3, 0")
    a.e("s_cbranch_scc1 %s" % lab)
    a.e("s_mul_i32 s6, s4, %d" % XNT_STR)
    a.e("s_add_u32 s6, s6, %d" % XNT)
    a.e("v_mov_b32 v3, 0")
    a.e("v_lshlrev_b32 v4, 2, v0")
    a.e("v_cmp_gt_u32 vcc, 60, v0")
    a.e("s_and_saveexec_b64 s[40:41], vcc")
    a.e("buffer_store_dword v3, v4, s[%d:%d], s6 offen" % (SRD_WS, SRD_WS + 3))
    a.e("s_mov_b64 exec, s[40:41]")
    a.label(lab)
    a.e("s_mul_i32 s42, s3, %d" % KG_WAVE)
    a.e("v_lshrrev_b32 v4, 5, v0")
    a.e("v_cvt_f32_u32 v9, v4")
    a.e("v_mul_u32_u24 v4, %d, v4" % KG_BLK)
    a.e("v_lshl_add_u32 v4, v1, 3, v4")
    a.e("v_add_u32 v4, s42, v4")
    a.e("v_and_b32 v5, 15, v0")
    a.e("v_mul_u32_u24 v5, 272, v5")
    a.e("v_lshrrev_b32 v6, 4, v0")
    a.e("v_lshl_add_u32 v5, v6, 6, v5")
    a.e("v_add_u32 v5, s42, v5")
    a.e("v_lshlrev_b32 v6, 4, v0")
    a.e("v_add_u32 v6, s42, v6")
    a.e("s_mov_b32 s43, 0x%x" % LOG2E)
    a.e("s_mov_b32 s44, 0x%x" % INV2PI)
    a.e("s_mov_b32 vcc_lo, 0")
    a.e("s_mov_b32 vcc_hi, -1")
    ACC = 100
    for i in range(16):
        a.e("v_mov_b32 v%d, 0" % (ACC + i))
    a.e("s_waitcnt vmcnt(0)")
    a.stamp()
    a.e("v_lshlrev_b32 v%d, 16, v%d" % (DT, DT))
    a.e("v_lshlrev_b32 v%d, 16, v%d" % (LA, LA))
    a.e("v_mul_f32 v%d, s43, v%d" % (DT, DT))
    a.e("v_mul_f32 v%d, s43, v%d" % (LA, LA))
    a.e("v_exp_f32 v%d, v%d" % (DT, DT))
    a.e("v_exp_f32 v%d, v%d" % (LA, LA))
    a.e("v_lshlrev_b32 v%d, 16, v%d" % (AIM, AIM))
    a.e("v_lshlrev_b32 v%d, 16, v%d" % (CRE, CRE))
    a.e("v_lshlrev_b32 v%d, 16, v%d" % (CIM, CIM))
    bf16r(a, DT, DT)
    bf16r(a, LA, LA)
    a.e("v_mul_f32 v%d, v%d, v%d" % (LA, LA, DT))
    a.e("v_mul_f32 v%d, v%d, v%d" % (AIM, AIM, DT))
    a.e("v_mul_f32 v%d, v%d, v%d" % (CRE, CRE, DT))
    a.e("v_mul_f32 v%d, v%d, v%d" % (CIM, CIM, DT))
    a.e("v_mul_f32 v%d, s43, v%d" % (LA, LA))
    a.e("v_mul_f32 v%d, s44, v%d" % (AIM, AIM))
    a.e("v_add_f32 v%d, v%d, v%d" % (CRE, CRE, CRE))
    a.e("v_add_f32 v%d, v%d, v%d" % (CIM, CIM, CIM))
    NAIM = 15
    a.e("v_sub_f32 v%d, 0, v%d" % (NAIM, AIM))
    a.e("v_cndmask_b32 v%d, v%d, v%d, vcc" % (NAIM, NAIM, AIM))
    CM = 16
    a.e("v_cndmask_b32 v%d, 1.0, v%d, vcc" % (CM, CRE))
    a.e("v_cndmask_b32 v%d, 0, v%d, vcc" % (CM + 1, CIM))

    def cexps(lst, tbase):
        for i, (dst, p0, p1, ar) in enumerate(lst):
            t = tbase + 3 * i
            if p0 == p1:
                a.e("v_mov_b32 v%d, %s" % (t, f32bits(p0)))
            else:
                a.e("v_mul_f32 v%d, %s, v9" % (t, f32bits(p1 - p0)))
                a.e("v_add_f32 v%d, %s, v%d" % (t, f32bits(p0), t))
        for i, (dst, p0, p1, ar) in enumerate(lst):
            t = tbase + 3 * i
            a.e("v_mul_f32 v%d, -v%d, v%d" % (t + 1, LA, t))
            a.e("v_mul_f32 v%d, v%d, v%d" % (t + 2, ar, t))
        for i, (dst, p0, p1, ar) in enumerate(lst):
            t = tbase + 3 * i
            a.e("v_exp_f32 v%d, v%d" % (t + 1, t + 1))
            a.e("v_fract_f32 v%d, v%d" % (t + 2, t + 2))
        for i, (dst, p0, p1, ar) in enumerate(lst):
            t = tbase + 3 * i
            a.e("v_cos_f32 v%d, v%d" % (dst, t + 2))
            a.e("v_sin_f32 v%d, v%d" % (dst + 1, t + 2))
        a.e("s_nop 0")
        for i, (dst, p0, p1, ar) in enumerate(lst):
            t = tbase + 3 * i
            a.e("v_mul_f32 v%d, v%d, v%d" % (dst, dst, t + 1))
            a.e("v_mul_f32 v%d, v%d, v%d" % (dst + 1, dst + 1, t + 1))

    def cmul(d, x, y):
        return ["v_pk_mul_f32 v[%d:%d], v[%d:%d], v[%d:%d] op_sel:[0,0] op_sel_hi:[0,1]" % (d, d + 1, x, x + 1, y, y + 1),
                "v_pk_fma_f32 v[%d:%d], v[%d:%d], v[%d:%d], v[%d:%d] op_sel:[1,1,0] op_sel_hi:[1,0,1] neg_lo:[1,0,0]" % (
                    d, d + 1, x, x + 1, y, y + 1, d, d + 1)]

    def emit(lst):
        for s in lst:
            a.e(s)

    F1, S2, FA, FB, T0, T1, T2 = 18, 20, 22, 24, 26, 28, 30
    cexps([(F1, 8, 1, NAIM), (S2, 64, 128, NAIM), (FA, 2, 128, AIM), (FB, 128, 128, AIM),
           (T0, 256, 1024, AIM), (T1, 384, 1536, AIM), (T2, 512, 2048, AIM)], 60)
    a.stamp()
    Q, S1, S3 = 32, 34, 36
    CH = [40, 44, 48, 52]
    emit(cmul(Q, F1, F1))
    emit(cmul(CH[2], S2, CM))
    emit(cmul(S1, Q, Q))
    a.e("v_mov_b32 v%d, v%d" % (CH[0], CM))
    a.e("v_mov_b32 v%d, v%d" % (CH[0] + 1, CM + 1))
    emit(cmul(CH[1], S1, CM))
    emit(cmul(CH[3], S1, CH[2]))
    rows1 = [[0, 1, 2, 3], [4, 5, 6, 7], [8, 9, 10, 11], [12, 13, 14, 15]]
    rows2 = [[0, 1, 2, 3], [4, 5, 6, 7], [8, 10, 12, 14], [9, 11, 13, 15]]

    def chains(rows, facs):
        out = []
        for i in range(4):
            for q in range(4):
                cur = CH[q] + 2 * (i & 1)
                out.append("ds_write_b64 v4, v[%d:%d] offset:%d" % (cur, cur + 1, 272 * rows[q][i]))
            if i < 3:
                m = [cmul(CH[q] + 2 * ((i + 1) & 1), CH[q] + 2 * (i & 1), facs[q]) for q in range(4)]
                for s in range(2):
                    for q in range(4):
                        out.append(m[q][s])
        return out
    emit(chains(rows1, [F1] * 4))
    RY, RX = 64, 80
    for j in range(4):
        a.e("ds_read_b128 v[%d:%d], v5 offset:%d" % (RY + 4 * j, RY + 4 * j + 3, 16 * j))
        a.e("ds_read_b128 v[%d:%d], v5 offset:%d" % (RX + 4 * j, RX + 4 * j + 3, KG_BLK + 16 * j))
    a.stamp()
    pre = []
    pre += cmul(Q, FA, FA)
    pre += cmul(CH[0], T0, CRE)
    pre += cmul(CH[1], T1, CRE)
    pre += cmul(CH[2], T2, CRE)
    pre += cmul(CH[3], Q, CH[2])
    emit(pre)
    a.e("s_waitcnt lgkmcnt(0)")
    ch2 = chains(rows2, [FA, FA, FB, FB])
    mf = ["v_mfma_f32_16x16x4_f32 v[%d:%d], v%d, v%d, v[%d:%d]" % (
        ACC + 4 * (k & 1), ACC + 4 * (k & 1) + 3, RX + k, RY + k, ACC + 4 * (k & 1), ACC + 4 * (k & 1) + 3) for k in range(16)]
    per = (len(ch2) + 15) // 16
    idx = 0
    for k in range(16):
        a.e(mf[k])
        for s in ch2[idx:idx + per]:
            a.e(s)
        idx += per
    assert idx >= len(ch2)
    RX1, RX2 = 16, 32
    for j in range(4):
        a.e("ds_read_b128 v[%d:%d], v5 offset:%d" % (RX1 + 4 * j, RX1 + 4 * j + 3, 16 * j))
        a.e("ds_read_b128 v[%d:%d], v5 offset:%d" % (RX2 + 4 * j, RX2 + 4 * j + 3, KG_BLK + 16 * j))
    a.e("s_waitcnt lgkmcnt(0)")
    a.stamp()
    mf2 = []
    for k in range(16):
        mf2.append("v_mfma_f32_16x16x4_f32 v[%d:%d], v%d, v%d, v[%d:%d]" % (ACC + 8, ACC + 11, RX1 + k, RY + k, ACC + 8, ACC + 11))
        mf2.append("v_mfma_f32_16x16x4_f32 v[%d:%d], v%d, v%d, v[%d:%d]" % (ACC + 12, ACC + 15, RX2 + k, RY + k, ACC + 12, ACC + 15))
    im = []
    im.append("s_lshl_b32 s5, s3, 6")
    im.append("v_add_u32 v1, s5, v0")

    def srcaddr(dst, j, sh, segbase, t0, t1):
        im.append("v_lshrrev_b32 v%d, %d, v%d" % (t0, sh + 4, j))
        im.append("v_lshlrev_b32 v%d, %d, v%d" % (t0, sh, t0))
        if sh:
            im.append("v_and_b32 v%d, %d, v%d" % (t1, (1 << sh) - 1, j))
            im.append("v_add3_u32 v%d, v%d, v%d, %d" % (t0, t0, t1, segbase))
        else:
            im.append("v_add_u32 v%d, %d, v%d" % (t0, segbase, t0))
        im.append("v_bfe_u32 v%d, v%d, %d, 4" % (dst, j, sh))
        im.append("v_lshlrev_b32 v%d, 4, v%d" % (dst, dst))
        im.append("v_lshrrev_b32 v%d, 2, v%d" % (t1, t0))
        im.append("v_lshl_add_u32 v%d, v%d, 8, v%d" % (dst, t1, dst))
        im.append("v_and_b32 v%d, 3, v%d" % (t1, t0))
        im.append("v_lshl_add_u32 v%d, v%d, 2, v%d" % (dst, t1, dst))
    srcaddr(48, 1, 3, 0, 52, 53)
    im.append("v_and_b32 v54, 127, v1")
    srcaddr(49, 54, 2, 16, 52, 53)
    srcaddr(50, 54, 1, 24, 52, 53)
    im.append("v_cmp_gt_u32 vcc, 128, v1")
    im.append("v_cndmask_b32 v49, v50, v49, vcc")
    im.append("v_min_u32 v54, 128, v1")
    srcaddr(50, 54, 0, 32, 52, 53)
    im.append("v_lshlrev_b32 v51, 2, v1")
    im.append("v_add_u32 v51, %d, v51" % KG_KD)
    XA = 84
    im.append("v_lshlrev_b32 v52, 3, v1")
    im.append("v_sub_u32 v52, 2049, v52")
    im.append("v_cvt_f32_u32 v53, v52")
    im.append("v_lshlrev_b32 v52, 2, v52")
    im.append("v_add_u32 v52, %d, v52" % KG_KD)
    im.append("s_mov_b32 s45, 0x%x" % ((KG_KD - 4 * 17024) & 0xffffffff))
    TF = 116
    for e in range(9):
        im.append("v_subrev_f32 v%d, %s, v53" % (TF + e, "%d.0" % e if e in (0, 1, 2, 4) else f32bits(e)))
        im.append("v_max_f32 v%d, 0x43000000, v%d" % (TF + e, TF + e))
    for e in range(0, 9, 2):
        im.append("v_cvt_pk_bf16_f32 v%d, v%d, v%d" % (TF + e, TF + e, TF + e + 1 if e < 8 else TF + e))
    for e in range(9):
        if e & 1:
            im.append("v_lshrrev_b32 v%d, 16, v%d" % (XA + e, TF + e - 1))
        else:
            im.append("v_and_b32 v%d, 0xffff, v%d" % (XA + e, TF + e))
        im.append("v_lshl_add_u32 v%d, v%d, 2, s45" % (XA + e, XA + e))
        im.append("v_subrev_u32 v%d, %d, v52" % (TF + 9, 4 * e))
        im.append("v_min_u32 v%d, v%d, v%d" % (XA + e, XA + e, TF + 9))
    im.append("v_lshlrev_b32 v5, 4, v1")
    per = (len(im) + 31) // 32
    idx = 0
    for k in range(32):
        a.e(mf2[k])
        for s in im[idx:idx + per]:
            a.e(s)
        idx += per
    assert idx >= len(im)
    a.e("s_nop 7")
    a.e("s_nop 7")
    for i in range(4):
        a.e("v_add_f32 v%d, v%d, v%d" % (ACC + 4 + i, ACC + 4 + i, ACC + i))
    for b in range(3):
        a.e("ds_write_b128 v6, v[%d:%d] offset:%d" % (ACC + 4 + 4 * b, ACC + 7 + 4 * b, 1024 * b))
    a.e("s_waitcnt lgkmcnt(0)")
    a.e("s_barrier")
    a.stamp()
    RR = 16
    for r in range(3):
        for w in range(4):
            a.e("ds_read_b32 v%d, v%d offset:%d" % (RR + 4 * r + w, 48 + r, KG_WAVE * w))
    for r in range(3):
        a.e("s_waitcnt lgkmcnt(%d)" % (8 - 4 * r))
        a.e("v_add_f32 v%d, v%d, v%d" % (RR + 4 * r, RR + 4 * r, RR + 1 + 4 * r))
        a.e("v_add_f32 v%d, v%d, v%d" % (RR + 2 + 4 * r, RR + 2 + 4 * r, RR + 3 + 4 * r))
        a.e("v_add_f32 v%d, v%d, v%d" % (RR + 4 * r, RR + 4 * r, RR + 2 + 4 * r))
    a.e("ds_write_b32 v51, v%d" % RR)
    a.e("ds_write_b32 v51, v%d offset:1024" % (RR + 4))
    a.e("v_cmp_gt_u32 vcc, 129, v1")
    a.e("s_and_saveexec_b64 s[40:41], vcc")
    a.e("ds_write_b32 v51, v%d offset:2048" % (RR + 8))
    a.e("s_mov_b64 exec, s[40:41]")
    a.e("s_mul_i32 s6, s4, %d" % KR_STR)
    a.e("s_add_u32 s6, s6, %d" % KR0)
    a.e("s_add_u32 s7, s6, %d" % (KR1 - KR0))
    a.e("s_waitcnt lgkmcnt(0)")
    a.e("s_barrier")
    a.stamp()
    for e in range(9):
        a.e("ds_read_b32 v%d, v%d" % (50 + e, XA + e))
    lab = a.newlabel("L_kgx")
    a.e("s_cmp_lg_u32 s3, 3")
    a.e("s_cbranch_scc1 %s" % lab)
    a.e("v_mov_b32 v30, %d" % KG_KD)
    a.e("ds_read_b64 v[32:33], v30")
    for i in range(8):
        a.e("v_mov_b32 v%d, 0" % (36 + i))
    a.e("v_lshlrev_b32 v31, 4, v0")
    a.e("v_add_u32 v31, 4096, v31")
    a.e("v_cmp_eq_u32 vcc, 0, v0")
    a.e("s_waitcnt lgkmcnt(0)")
    a.e("v_cvt_pk_bf16_f32 v34, v32, v36")
    a.e("v_cvt_pk_bf16_f32 v35, v33, v32")
    a.e("v_cndmask_b32 v36, v36, v34, vcc")
    a.e("v_cndmask_b32 v40, v40, v35, vcc")
    a.e("v_cmp_gt_u32 vcc, 18, v0")
    a.e("s_and_saveexec_b64 s[40:41], vcc")
    a.e("buffer_store_dwordx4 v[36:39], v31, s[%d:%d], s6 offen" % (SRD_WS, SRD_WS + 3))
    a.e("buffer_store_dwordx4 v[40:43], v31, s[%d:%d], s7 offen" % (SRD_WS, SRD_WS + 3))
    a.e("s_mov_b64 exec, s[40:41]")
    a.label(lab)
    a.e("v_cmp_ne_u32 vcc, 0, v1")
    a.e("s_waitcnt lgkmcnt(0)")
    a.e("v_cndmask_b32 v50, 0, v50, vcc")
    a.e("v_cndmask_b32 v51, 0, v51, vcc")
    for e in range(4):
        a.e("v_cvt_pk_bf16_f32 v%d, v%d, v%d" % (60 + e, 51 + 2 * e, 52 + 2 * e))
        a.e("v_cvt_pk_bf16_f32 v%d, v%d, v%d" % (64 + e, 50 + 2 * e, 51 + 2 * e))
    a.e("buffer_store_dwordx4 v[60:63], v5, s[%d:%d], s6 offen" % (SRD_WS, SRD_WS + 3))
    a.e("buffer_store_dwordx4 v[64:67], v5, s[%d:%d], s7 offen" % (SRD_WS, SRD_WS + 3))
    a.stamp_out()
    a.e("s_branch L_end_%s" % a.kname)


def gen_ln(a):
    a.c("---- LayerNorm: row block s2-640 ----")
    if "ln" in SKIP:
        a.e("s_branch L_end_%s" % a.kname)
    a.e("s_sub_u32 s4, s2, %d" % LN_BASE)
    a.e("s_lshl_b32 s5, s4, 4")
    a.e("s_lshl_b32 s6, s3, 2")
    a.e("s_add_u32 s5, s5, s6")
    a.e("v_lshrrev_b32 v1, 4, v0")
    a.e("v_and_b32 v2, 15, v0")
    a.e("v_add_u32 v3, s5, v1")
    a.e("v_mul_u32_u24 v3, 1280, v3")
    a.e("v_lshl_add_u32 v3, v2, 4, v3")
    for i in range(5):
        a.e("global_load_dwordx4 v[%d:%d], v3, s[%d:%d] offset:%d" % (10 + 4 * i, 13 + 4 * i, P_U, P_U + 1, 256 * i))
    a.e("s_waitcnt vmcnt(0)")
    for j in range(20):
        a.e("v_lshlrev_b32 v%d, 16, v%d" % (40 + 2 * j, 10 + j))
        a.e("v_and_b32 v%d, 0xffff0000, v%d" % (41 + 2 * j, 10 + j))
    a.e("v_add_f32 v4, v40, v41")
    for j in range(2, 40):
        a.e("v_add_f32 v4, v4, v%d" % (40 + j))

    def red16(reg, tmp):
        for off in (0x041F, 0x081F, 0x101F, 0x201F):
            a.e("ds_swizzle_b32 v%d, v%d offset:0x%x" % (tmp, reg, off))
            a.e("s_waitcnt lgkmcnt(0)")
            a.e("v_add_f32 v%d, v%d, v%d" % (reg, reg, tmp))
    red16(4, 5)
    a.e("s_mov_b32 s7, 0x3acccccd")
    a.e("v_mul_f32 v4, s7, v4")
    a.e("v_sub_f32 v6, v40, v4")
    a.e("v_mul_f32 v5, v6, v6")
    for j in range(1, 40):
        a.e("v_sub_f32 v6, v%d, v4" % (40 + j))
        a.e("v_fma_f32 v5, v6, v6, v5")
    red16(5, 6)
    a.e("v_mul_f32 v5, s7, v5")
    bf16r(a, 4, 4)
    bf16r(a, 5, 5)
    a.e("v_add_f32 v5, 0x3727c5ac, v5")
    bf16r(a, 5, 5)
    a.e("v_sqrt_f32 v5, v5")
    a.e("s_nop 0")
    bf16r(a, 5, 5)
    a.e("v_rcp_f32 v6, v5")
    for j in range(0, 40, 2):
        x0, x1 = 40 + j, 41 + j
        a.e("v_sub_f32 v%d, v%d, v4" % (x0, x0))
        a.e("v_sub_f32 v%d, v%d, v4" % (x1, x1))
        a.e("v_cvt_pk_bf16_f32 v7, v%d, v%d" % (x0, x1))
        a.e("v_lshlrev_b32 v%d, 16, v7" % x0)
        a.e("v_and_b32 v%d, 0xffff0000, v7" % x1)
        a.e("v_mul_f32 v7, v%d, v6" % x0)
        a.e("v_mul_f32 v8, v%d, v6" % x1)
        a.e("v_fma_f32 v%d, -v7, v5, v%d" % (x0, x0))
        a.e("v_fma_f32 v%d, -v8, v5, v%d" % (x1, x1))
        a.e("v_fma_f32 v7, v%d, v6, v7" % x0)
        a.e("v_fma_f32 v8, v%d, v6, v8" % x1)
        a.e("v_cvt_pk_bf16_f32 v%d, v7, v8" % (10 + j // 2))
    a.e("s_mul_i32 s40, s4, 20480")
    a.e("s_add_u32 s40, s40, %d" % XNF)
    a.e("v_lshrrev_b32 v7, 2, v2")
    a.e("v_lshlrev_b32 v7, 10, v7")
    a.e("v_and_b32 v8, 3, v2")
    a.e("v_lshl_add_u32 v7, v8, 8, v7")
    a.e("v_add_u32 v8, s6, v1")
    a.e("v_lshl_add_u32 v7, v8, 4, v7")
    for i in range(5):
        a.e("s_add_u32 s41, s40, %d" % (4096 * i))
        a.e("buffer_store_dwordx4 v[%d:%d], v7, s[%d:%d], s41 offen" % (10 + 4 * i, 13 + 4 * i, SRD_WS, SRD_WS + 3))
    LSTR = 1296
    a.e("v_mul_u32_u24 v9, %d, v8" % LSTR)
    a.e("v_lshl_add_u32 v9, v2, 4, v9")
    for i in range(5):
        a.e("ds_write_b128 v9, v[%d:%d] offset:%d" % (10 + 4 * i, 13 + 4 * i, 256 * i))
    a.e("s_waitcnt lgkmcnt(0)")
    a.e("s_barrier")
    a.e("s_lshl_b32 s5, s3, 6")
    a.e("v_add_u32 v1, s5, v0")
    a.e("s_lshl_b32 s40, s4, 5")
    a.e("s_add_u32 s40, s40, %d" % (XNT + 240))
    for j in range(3):
        a.e("v_add_u32 v2, %d, v1" % (256 * j))
        if j == 2:
            a.e("v_cmp_gt_u32 vcc, 640, v2")
            a.e("s_and_saveexec_b64 s[42:43], vcc")
        a.e("v_lshlrev_b32 v3, 1, v2")
        for r in range(16):
            a.e("ds_read_u16 v%d, v3 offset:%d" % (64 + r, LSTR * r))
        a.e("v_mul_u32_u24 v4, %d, v2" % XNT_STR)
        a.e("s_waitcnt lgkmcnt(0)")
        for r in range(8):
            a.e("v_lshl_or_b32 v%d, v%d, 16, v%d" % (40 + 8 * j + r, 65 + 2 * r, 64 + 2 * r))
        a.e("buffer_store_dwordx4 v[%d:%d], v4, s[%d:%d], s40 offen" % (40 + 8 * j, 43 + 8 * j, SRD_WS, SRD_WS + 3))
        a.e("buffer_store_dwordx4 v[%d:%d], v4, s[%d:%d], s40 offen offset:16" % (44 + 8 * j, 47 + 8 * j, SRD_WS, SRD_WS + 3))
        if j == 2:
            a.e("s_mov_b64 exec, s[42:43]")
    a.stamp_out()
    a.e("s_branch L_end_%s" % a.kname)


def gen_wt(a, which):
    if which == 1:
        base_id = W1_BASE
        ncols = F
        ptr = P_W1
        dst = W1F
        nkb = 20
        nj = 5
    else:
        base_id = W2_BASE
        ncols = D
        ptr = P_W2
        dst = W2F
        nkb = 54
        nj = 5
    a.c("---- W%d transposition ----" % which)
    if "wt" in SKIP:
        a.e("s_branch L_end_%s" % a.kname)
    a.e("s_sub_u32 s4, s2, %d" % base_id)
    if which == 1:
        a.e("s_mov_b32 s5, s4")
        a.e("s_mov_b32 s6, s3")
        a.e("s_mov_b32 s7, 20")
    else:
        a.e("s_cmp_ge_u32 s4, 40")
        a.e("s_cselect_b32 s40, 1, 0")
        a.e("s_cmp_ge_u32 s4, 80")
        a.e("s_cselect_b32 s41, 1, 0")
        a.e("s_add_u32 s40, s40, s41")
        a.e("s_mul_i32 s41, s40, 40")
        a.e("s_sub_u32 s5, s4, s41")
        a.e("s_mul_i32 s6, s40, 18")
        a.e("s_add_u32 s7, s6, 18")
        a.e("s_add_u32 s6, s6, s3")
    make_srd(a, 44, ptr, D * F * 2)
    a.e("v_lshrrev_b32 v1, 4, v0")
    a.e("v_mul_u32_u24 v1, %d, v1" % (8 * ncols * 2))
    a.e("v_and_b32 v2, 15, v0")
    a.e("v_lshl_add_u32 v1, v2, 1, v1")
    a.e("s_lshl_b32 s40, s5, 5")
    a.e("v_add_u32 v1, s40, v1")
    a.e("v_lshlrev_b32 v2, 4, v0")
    a.e("s_mul_i32 s41, s5, %d" % (nkb * 1024))
    a.e("s_add_u32 s41, s41, %d" % dst)
    for j in range(nj):
        lab = a.newlabel("L_wt")
        a.e("s_add_u32 s42, s6, %d" % (4 * j))
        a.e("s_cmp_ge_u32 s42, s7")
        a.e("s_cbranch_scc1 %s" % lab)
        a.e("s_mul_i32 s43, s42, %d" % (32 * ncols * 2))
        for e in range(8):
            a.e("s_add_u32 s48, s43, %d" % (e * ncols * 2))
            a.e("buffer_load_ushort v%d, v1, s[44:47], s48 offen" % (40 + 8 * j + e))
        a.label(lab)
    for j in range(nj):
        lab = a.newlabel("L_wt")
        a.e("s_add_u32 s42, s6, %d" % (4 * j))
        a.e("s_cmp_ge_u32 s42, s7")
        a.e("s_cbranch_scc1 %s" % lab)
        a.e("s_lshl_b32 s43, s42, 10")
        a.e("s_add_u32 s43, s43, s41")
        a.e("s_waitcnt vmcnt(0)")
        for e in range(4):
            a.e("v_lshl_or_b32 v%d, v%d, 16, v%d" % (10 + 4 * j + e, 41 + 8 * j + 2 * e, 40 + 8 * j + 2 * e))
        a.e("buffer_store_dwordx4 v[%d:%d], v2, s[%d:%d], s43 offen" % (10 + 4 * j, 13 + 4 * j, SRD_WS, SRD_WS + 3))
        a.label(lab)
    a.stamp_out()
    a.e("s_branch L_end_%s" % a.kname)


def gen_phase1(a):
    a.kname = "p1"
    a.label("prep_kernel")
    prologue(a, P1_WGS)
    a.e("s_cmp_ge_u32 s2, %d" % KG_BASE)
    a.e("s_cbranch_scc1 L_p1_kg")
    a.e("s_cmp_lt_u32 s2, %d" % W1_BASE)
    a.e("s_cbranch_scc1 L_p1_ln")
    a.e("s_cmp_lt_u32 s2, %d" % W2_BASE)
    a.e("s_cbranch_scc1 L_p1_w1")
    gen_wt(a, 2)
    a.label("L_p1_w1")
    gen_wt(a, 1)
    a.label("L_p1_ln")
    gen_ln(a)
    a.label("L_p1_kg")
    gen_kgen(a)
    a.label("L_end_p1")
    a.e("s_endpgm")


class VM:
    def __init__(self, a):
        self.a = a
        self.q = []

    def issue(self, tag):
        self.q.append(tag)

    def wait(self, tag):
        idx = [i for i, t in enumerate(self.q) if t == tag]
        if not idx:
            return
        n = len(self.q) - 1 - idx[-1]
        assert n <= 63
        self.a.e("s_waitcnt vmcnt(%d)" % n)
        self.q = self.q[idx[-1] + 1:]

    def wait2(self, t1, t2):
        idx = [i for i, t in enumerate(self.q) if t in (t1, t2)]
        if not idx:
            return
        n = len(self.q) - 1 - idx[-1]
        assert n <= 63
        self.a.e("s_waitcnt vmcnt(%d)" % n)
        self.q = self.q[idx[-1] + 1:]

    def waitall(self):
        if self.q:
            self.a.e("s_waitcnt vmcnt(0)")
            self.q = []


def gemm_loop(a, vm, nst, kbs, nA, nB, nslots, slot_bytes, a_src, b_src, a_kstride_chunks,
              wave_bcols, acc0, regs, vlane16, vrdA, vrdB, sbase, sldso):
    nch = kbs * (nA + nB)
    nld = (nch + 3) // 4

    def dma(st):
        slot = st % nslots
        out = []
        for j in range(nld):
            out.append(["s_add_u32 m0, s%d, %d" % (sldso + j, slot * slot_bytes),
                        "s_add_u32 s6, s%d, %d" % (sbase + j, st * kbs * 1024),
                        "buffer_load_dwordx4 v%d, s[%d:%d], s6 offen lds" % (vlane16, SRD_WS, SRD_WS + 3)])
        return out

    def reads(st, rs):
        slot = st % nslots
        r = regs[rs]
        out = []
        for kk in range(kbs):
            for i in range(nA):
                off = slot * slot_bytes + (kk * nA + i) * 1024
                va = vrdA
                if off >= 65536:
                    off -= 32768
                    va = vrdA + 2
                out.append(["ds_read_b128 v[%d:%d], v%d offset:%d" % (r, r + 3, va, off)])
                r += 4
            for jj in range(wave_bcols):
                off = slot * slot_bytes + (kbs * nA + kk * nB + jj) * 1024
                vb = vrdB
                if off + (nB - wave_bcols) * 1024 >= 65536:
                    off -= 32768
                    vb = vrdB + 2
                out.append(["ds_read_b128 v[%d:%d], v%d offset:%d" % (r, r + 3, vb, off)])
                r += 4
        return out

    def mfmas(rs):
        per = (nA + wave_bcols) * 4
        out = []
        for kk in range(kbs):
            r = regs[rs] + kk * per
            for i in range(nA):
                for jj in range(wave_bcols):
                    acc = acc0 + (i * wave_bcols + jj) * 4
                    out.append("v_mfma_f32_16x16x32_bf16 v[%d:%d], v[%d:%d], v[%d:%d], v[%d:%d]" % (
                        acc, acc + 3, r + 4 * i, r + 4 * i + 3, r + 4 * (nA + jj), r + 4 * (nA + jj) + 3, acc, acc + 3))
        return out

    def emit(groups, tag=None):
        for g in groups:
            for s in g:
                a.e(s)
            if tag and g[-1].startswith("buffer"):
                vm.issue(tag)

    for st in range(min(nslots, nst)):
        emit(dma(st), "st%d" % st)
    vm.wait("st0")
    a.stamp()
    a.e("s_barrier")
    emit(reads(0, 0))
    for i in range(nst):
        a.e("s_waitcnt lgkmcnt(0)")
        other = []
        if i + 1 < nst:
            vm.wait("st%d" % (i + 1))
            a.e("s_barrier")
            rd = reads(i + 1, (i + 1) % 2)
            dm = dma(i + nslots) if i + nslots < nst else []
            if ILV == 0:
                emit(dm, "st%d" % (i + nslots))
                emit(rd)
            else:
                k = 0
                while rd or dm:
                    if rd:
                        other.append(rd.pop(0))
                    if rd and k % 2 == 0:
                        other.append(rd.pop(0))
                    if dm:
                        other.append(dm.pop(0))
                    k += 1
        m = mfmas(i % 2)
        no = len(other)
        nm = len(m)
        done = 0
        for k in range(nm):
            a.e(m[k])
            tgt = ((k + 1) * no + nm - 1) // nm if ILV == 1 else min(no, (k + 1) * ILV)
            while done < tgt:
                emit([other[done]], "st%d" % (i + nslots))
                done += 1
        assert done == no


def gemm_loop2(a, vm, nst, nAc, nA, nBw, nslots, kstride, acc0, aregs, bregs, nb,
               vlane16, vrdA, sbase, sldso, sB, bstride, bcolstride, after_prologue=None):
    nfull = nAc // 4
    rem = nAc - 4 * nfull
    slot_bytes = nAc * 1024

    def dma(st):
        slot = st % nslots
        out = []
        for j in range(nfull):
            out.append(["s_add_u32 m0, s%d, %d" % (sldso + j, slot * slot_bytes),
                        "s_add_u32 s6, s%d, %d" % (sbase + j, st * kstride),
                        "buffer_load_dwordx4 v%d, s[%d:%d], s6 offen lds" % (vlane16, SRD_WS, SRD_WS + 3)])
        if rem:
            j = nfull
            out.append(["s_add_u32 m0, s%d, %d" % (sldso + j, slot * slot_bytes),
                        "s_add_u32 s6, s%d, %d" % (sbase + j, st * kstride),
                        "s_mov_b64 exec, 0x%x" % ((1 << (16 * rem)) - 1),
                        "buffer_load_dwordx4 v%d, s[%d:%d], s6 offen lds" % (vlane16, SRD_WS, SRD_WS + 3),
                        "s_mov_b64 exec, -1"])
        return out

    def bload(st):
        out = []
        r = bregs + (st % nb) * 4 * nBw
        for jj in range(nBw):
            out.append(["s_add_u32 s7, s%d, %d" % (sB, st * bstride + jj * bcolstride),
                        "buffer_load_dwordx4 v[%d:%d], v%d, s[%d:%d], s7 offen" % (r + 4 * jj, r + 4 * jj + 3, vlane16, SRD_WS, SRD_WS + 3)])
        return out

    def reads(st):
        slot = st % nslots
        r = aregs + (st % 2) * 4 * nA
        out = []
        for i in range(nA):
            off = slot * slot_bytes + i * 1024
            assert off + (nAc - nA) * 1024 < 65536
            out.append(["ds_read_b128 v[%d:%d], v%d offset:%d" % (r + 4 * i, r + 4 * i + 3, vrdA, off)])
        return out

    def mfmas(st):
        ra = aregs + (st % 2) * 4 * nA
        rb = bregs + (st % nb) * 4 * nBw
        out = []
        for i in range(nA):
            for jj in range(nBw):
                acc = acc0 + (i * nBw + jj) * 4
                out.append("v_mfma_f32_16x16x32_bf16 v[%d:%d], v[%d:%d], v[%d:%d], v[%d:%d]" % (
                    acc, acc + 3, ra + 4 * i, ra + 4 * i + 3, rb + 4 * jj, rb + 4 * jj + 3, acc, acc + 3))
        return out

    def emit(groups, tag=None):
        for g in groups:
            for s in g:
                a.e(s)
            if tag:
                vm.issue(tag)

    for st in range(max(nslots, nb - 1)):
        if st < nslots and st < nst:
            emit(dma(st), "a%d" % st)
        if st < nb - 1 and st < nst:
            emit(bload(st), "b%d" % st)
    if after_prologue:
        after_prologue()
    vm.wait("a0")
    a.stamp()
    a.e("s_barrier")
    emit(reads(0))
    for i in range(nst):
        a.e("s_waitcnt lgkmcnt(0)")
        other = []
        vm.wait2("a%d" % (i + 1), "b%d" % i)
        if i + 1 < nst:
            a.e("s_barrier")
            rd = [(g, None) for g in reads(i + 1)]
            dm = [(g, "a%d" % (i + nslots)) for g in dma(i + nslots)] if i + nslots < nst else []
            bl = [(g, "b%d" % (i + nb - 1)) for g in bload(i + nb - 1)] if i + nb - 1 < nst else []
            mem = dm + bl
            EXP = os.environ.get("EXP", "")
            if "nomem" in EXP:
                mem = []
            if "nords" in EXP:
                rd = []
            if "front" in EXP:
                other = rd + mem
                rd = []
                mem = []
            k = 0
            while rd or mem:
                if rd:
                    other.append(rd.pop(0))
                if rd and len(rd) >= 2 * len(mem):
                    other.append(rd.pop(0))
                if mem:
                    other.append(mem.pop(0))
        m = mfmas(i)
        no = len(other)
        nm = len(m)
        done = 0
        for k in range(nm):
            a.e(m[k])
            tgt = ((k + 1) * no + nm - 1) // nm
            if "front" in os.environ.get("EXP", ""):
                tgt = min(no, k + 1)
            while done < tgt:
                emit([other[done][0]], other[done][1])
                done += 1
        assert done == no


def dma_setup(a, nAc, SB, SL, gaddr):
    nfull = nAc // 4
    rem = nAc - 4 * nfull
    for j in range(nfull):
        a.e("s_add_u32 s6, s3, %d" % (4 * j))
        a.e("s_lshl_b32 s%d, s6, 10" % (SL + j))
        gaddr(a, 6, SB + j)
    if rem:
        j = nfull
        a.e("s_mul_i32 s7, s3, %d" % (rem * 256))
        a.e("s_lshr_b32 s6, s7, 10")
        a.e("s_add_u32 s6, s6, %d" % (4 * nfull))
        a.e("s_and_b32 s7, s7, 1023")
        a.e("s_lshl_b32 s%d, s6, 10" % (SL + j))
        a.e("s_add_u32 s%d, s%d, s7" % (SL + j, SL + j))
        gaddr(a, 6, SB + j)
        a.e("s_add_u32 s%d, s%d, s7" % (SB + j, SB + j))


N_G1 = 192
N_CV = 640
P2_WGS = N_G1 + N_CV
G1_SLOT = 9 * 1024
G1_NSLOT = int(os.environ.get("G1_NSLOT", "5"))
P2_LDS = max(G1_SLOT * G1_NSLOT, 40960)


def gen_gemm1(a):
    a.c("---- GEMM1: mt (f tile of 144), nt (l tile of 128) ----")
    vm = VM(a)
    if "g1" in SKIP:
        a.e("s_branch L_end_%s" % a.kname)
    a.e("s_lshr_b32 s4, s2, 4")
    a.e("s_and_b32 s5, s2, 7")
    a.e("s_lshl_b32 s5, s5, 1")
    a.e("s_bfe_u32 s6, s2, 0x10003")
    a.e("s_add_u32 s5, s5, s6")
    if os.environ.get("FAKE"):
        a.e("s_mov_b32 s4, 0")
        a.e("s_mov_b32 s5, 0")
    SB, SL, SBB = 48, 56, 54

    def gaddr(a, sc, sdst):
        a.e("s_mul_i32 s40, s4, 9")
        a.e("s_add_u32 s40, s40, s%d" % sc)
        a.e("s_mul_i32 s40, s40, 20480")
        a.e("s_add_u32 s%d, s40, %d" % (sdst, W1F))
    dma_setup(a, 9, SB, SL, gaddr)
    a.e("s_lshl_b32 s40, s5, 3")
    a.e("s_lshl_b32 s41, s3, 1")
    a.e("s_add_u32 s40, s40, s41")
    a.e("s_mul_i32 s40, s40, 20480")
    a.e("s_add_u32 s%d, s40, %d" % (SBB, XNF))
    a.e("v_lshlrev_b32 v1, 4, v0")
    ACC = 8
    AREG = 80
    BREG = 152
    NB = 4
    BIAS = 184
    a.e("s_mul_i32 s6, s4, 288")
    a.e("v_lshrrev_b32 v6, 4, v0")
    a.e("v_lshlrev_b32 v6, 3, v6")
    a.e("v_add_u32 v6, s6, v6")
    for i in range(9):
        a.e("global_load_dwordx2 v[%d:%d], v6, s[%d:%d] offset:%d" % (BIAS + 2 * i, BIAS + 2 * i + 1, P_B1, P_B1 + 1, 32 * i))
        vm.issue("bias")
    for i in range(72):
        a.e("v_mov_b32 v%d, 0" % (ACC + i))
    gemm_loop2(a, vm, 20, 9, 9, 2, G1_NSLOT, 1024, ACC, AREG, BREG, NB, 1, 1, SB, SL, SBB, 1024, 20480)
    vm.waitall()
    a.stamp()
    a.e("v_lshrrev_b32 v6, 5, v0")
    a.e("v_lshlrev_b32 v6, 8, v6")
    a.e("v_and_b32 v7, 15, v0")
    a.e("v_lshl_add_u32 v6, v7, 4, v6")
    a.e("v_bfe_u32 v7, v0, 4, 1")
    a.e("v_lshl_add_u32 v6, v7, 3, v6")
    a.e("s_lshl_b32 s6, s5, 3")
    a.e("s_lshl_b32 s7, s3, 1")
    a.e("s_add_u32 s6, s6, s7")
    a.e("s_mul_i32 s6, s6, 55296")
    a.e("s_mul_i32 s7, s4, 4608")
    a.e("s_add_u32 s6, s6, s7")
    a.e("s_add_u32 s6, s6, %d" % ACTF)
    a.e("s_add_u32 s7, s6, 55296")
    a.e("s_add_u32 s40, s6, 4096")
    a.e("s_add_u32 s41, s7, 4096")
    a.e("s_mov_b32 s42, 0x%x" % LOG2E)
    a.e("s_mov_b32 s43, 0x%x" % LOG2E)
    a.e("s_mov_b32 s44, 0x41a00000")
    a.e("s_mov_b32 s46, 2.0")
    a.e("s_mov_b32 s47, 2.0")
    a.e("s_nop 4")
    T = 80

    def pk(op, d, x, y):
        return "v_pk_%s_f32 v[%d:%d], %s, %s" % (op, d, d + 1, x, y)

    def V(r):
        return "v[%d:%d]" % (r, r + 1)
    for i in range(9):
        b = BIAS + 2 * i
        a.e("v_lshlrev_b32 v%d, 16, v%d" % (T, b))
        a.e("v_and_b32 v%d, 0xffff0000, v%d" % (T + 1, b))
        a.e("v_lshlrev_b32 v%d, 16, v%d" % (T + 2, b + 1))
        a.e("v_and_b32 v%d, 0xffff0000, v%d" % (T + 3, b + 1))
        h = [T + 4 + 16 * jj for jj in range(2)]
        for jj in range(2):
            acc = ACC + (i * 2 + jj) * 4
            for r in (0, 2):
                a.e(pk("add", h[jj] + r, V(acc + r), V(T + r)))
        for jj in range(2):
            for r in range(4):
                a.e("v_min_f32 v%d, s44, v%d" % (h[jj] + 4 + r, h[jj] + r))
        for jj in range(2):
            for r in (0, 2):
                a.e(pk("mul", h[jj] + 4 + r, V(h[jj] + 4 + r), "s[42:43]"))
        for jj in range(2):
            for r in range(4):
                a.e("v_exp_f32 v%d, v%d" % (h[jj] + 4 + r, h[jj] + 4 + r))
        for jj in range(2):
            for r in (0, 2):
                a.e(pk("add", h[jj] + 8 + r, V(h[jj] + 4 + r), "s[46:47]"))
        for jj in range(2):
            for r in (0, 2):
                a.e(pk("mul", h[jj] + 8 + r, V(h[jj] + 8 + r), V(h[jj] + 4 + r)))
        for jj in range(2):
            for r in (0, 2):
                a.e(pk("add", h[jj] + 12 + r, V(h[jj] + 8 + r), "s[46:47]"))
        for jj in range(2):
            for r in range(4):
                a.e("v_rcp_f32 v%d, v%d" % (h[jj] + 12 + r, h[jj] + 12 + r))
        for jj in range(2):
            for r in (0, 2):
                a.e(pk("mul", h[jj] + 8 + r, V(h[jj] + 8 + r), V(h[jj] + r)))
        for jj in range(2):
            for r in (0, 2):
                a.e(pk("mul", h[jj] + 8 + r, V(h[jj] + 8 + r), V(h[jj] + 12 + r)))
        for jj in range(2):
            nu = h[jj] + 8
            o = 120 + 2 * ((i * 2 + jj) % 8)
            a.e("v_cvt_pk_bf16_f32 v%d, v%d, v%d" % (o, nu, nu + 1))
            a.e("v_cvt_pk_bf16_f32 v%d, v%d, v%d" % (o + 1, nu + 2, nu + 3))
            if i < 8:
                so, off = (6 + jj), 512 * i
            else:
                so, off = (40 + jj), 0
            a.e("buffer_store_dwordx2 v[%d:%d], v6, s[%d:%d], s%d offen offset:%d" % (o, o + 1, SRD_WS, SRD_WS + 3, so, off))
    a.stamp_out()
    a.e("s_branch L_end_%s" % a.kname)


CV_KSTR = 4384
CV_UB = 8 * CV_KSTR


def gen_conv(a):
    a.c("---- conv: channel s2 - 192 ----")
    if "cv" in SKIP:
        a.e("s_branch L_end_%s" % a.kname)
    a.e("s_sub_u32 s4, s2, %d" % N_G1)
    a.e("v_lshlrev_b32 v1, 4, v0")
    a.e("s_mul_i32 s5, s4, %d" % KR_STR)
    a.e("s_mul_i32 s7, s4, %d" % XNT_STR)
    a.e("s_add_u32 s7, s7, %d" % XNT)
    a.e("s_lshl_b32 s40, s3, 2")
    a.e("s_sub_u32 s40, 16, s40")
    a.e("s_add_u32 s40, s40, s5")
    a.e("s_add_u32 s41, s40, %d" % KR1)
    a.e("s_add_u32 s40, s40, %d" % KR0)
    a.e("s_mul_i32 s42, s3, %d" % (2 * CV_KSTR))
    a.e("s_add_u32 s43, s42, %d" % CV_KSTR)
    for (sg, sl) in ((40, 42), (41, 43)):
        for p in range(4):
            a.e("s_add_u32 m0, s%d, %d" % (sl, 1024 * p))
            a.e("s_add_u32 s6, s%d, %d" % (sg, 1024 * p))
            a.e("buffer_load_dwordx4 v1, s[%d:%d], s6 offen lds" % (SRD_WS, SRD_WS + 3))
    a.e("s_lshl_b32 s44, s3, 10")
    a.e("s_add_u32 m0, s44, %d" % CV_UB)
    a.e("s_add_u32 s6, s7, s44")
    a.e("buffer_load_dwordx4 v1, s[%d:%d], s6 offen lds" % (SRD_WS, SRD_WS + 3))
    a.e("s_mov_b64 exec, 0xffff")
    for (sg, sl) in ((40, 42), (41, 43)):
        a.e("s_add_u32 m0, s%d, 4096" % sl)
        a.e("s_add_u32 s6, s%d, 4096" % sg)
        a.e("buffer_load_dwordx4 v1, s[%d:%d], s6 offen lds" % (SRD_WS, SRD_WS + 3))
    a.e("s_mov_b32 m0, %d" % (CV_UB + 4096))
    a.e("s_add_u32 s6, s7, 4096")
    a.e("buffer_load_dwordx4 v1, s[%d:%d], s6 offen lds" % (SRD_WS, SRD_WS + 3))
    a.e("s_mov_b64 exec, -1")
    a.e("v_and_b32 v2, 7, v0")
    a.e("v_mul_u32_u24 v2, %d, v2" % CV_KSTR)
    a.e("v_bfe_u32 v3, v0, 3, 1")
    a.e("v_lshlrev_b32 v3, 8, v3")
    a.e("v_sub_u32 v2, v2, v3")
    a.e("v_lshrrev_b32 v3, 4, v0")
    a.e("v_lshl_add_u32 v2, v3, 4, v2")
    a.e("v_add_u32 v2, 640, v2")
    a.e("s_lshl_b32 s6, s3, 7")
    a.e("v_subrev_u32 v2, s6, v2")
    a.e("v_and_b32 v4, 15, v0")
    a.e("v_add_u32 v4, v4, v3")
    a.e("v_lshlrev_b32 v4, 4, v4")
    a.e("v_add_u32 v4, %d, v4" % CV_UB)
    a.e("v_subrev_u32 v4, s6, v4")
    ACC = 8
    RA, RB = 40, 72
    for i in range(32):
        a.e("v_mov_b32 v%d, 0" % (ACC + i))
    a.e("s_waitcnt vmcnt(0)")
    a.e("s_barrier")
    for rr in range(2):
        for x in range(8):
            a.e("ds_read_b128 v[%d:%d], v2 offset:%d" % (RA + 4 * x, RA + 4 * x + 3, (63 - 8 * x - rr) * 64 - 384))
            a.e("ds_read_b128 v[%d:%d], v4 offset:%d" % (RB + 4 * x, RB + 4 * x + 3, 64 * (8 * x - rr + 7)))
        a.e("s_waitcnt lgkmcnt(0)")
        for g in range(8):
            for aa in range(g + 1):
                bb = g - aa
                a.e("v_mfma_f32_16x16x32_bf16 v[%d:%d], v[%d:%d], v[%d:%d], v[%d:%d]" % (
                    ACC + 4 * g, ACC + 4 * g + 3, RA + 4 * aa, RA + 4 * aa + 3, RB + 4 * bb, RB + 4 * bb + 3,
                    ACC + 4 * g, ACC + 4 * g + 3))
    a.e("s_nop 7")
    a.e("s_barrier")
    a.e("s_lshl_b32 s6, s3, 13")
    a.e("v_add_u32 v5, s6, v1")
    for g in range(8):
        a.e("ds_write_b128 v5, v[%d:%d] offset:%d" % (ACC + 4 * g, ACC + 4 * g + 3, 1024 * g))
    a.e("s_waitcnt lgkmcnt(0)")
    a.e("s_barrier")
    a.e("s_lshl_b32 s6, s3, 11")
    a.e("v_add_u32 v5, s6, v1")
    for gg in range(2):
        for w in range(4):
            a.e("ds_read_b128 v[%d:%d], v5 offset:%d" % (RA + 16 * gg + 4 * w, RA + 16 * gg + 4 * w + 3, 8192 * w + 1024 * gg))
    a.e("v_lshrrev_b32 v6, 5, v0")
    a.e("v_lshlrev_b32 v6, 8, v6")
    a.e("v_and_b32 v7, 15, v0")
    a.e("v_lshl_add_u32 v6, v7, 4, v6")
    a.e("v_bfe_u32 v7, v0, 4, 1")
    a.e("v_lshl_add_u32 v6, v7, 3, v6")
    a.e("s_lshl_b32 s6, s4, 12")
    a.e("s_lshl_b32 s7, s3, 10")
    a.e("s_add_u32 s6, s6, s7")
    a.e("s_add_u32 s6, s6, %d" % YT)
    a.e("s_waitcnt lgkmcnt(0)")
    for gg in range(2):
        b = RA + 16 * gg
        for r in range(4):
            a.e("v_add_f32 v%d, v%d, v%d" % (b + r, b + r, b + 4 + r))
            a.e("v_add_f32 v%d, v%d, v%d" % (b + 8 + r, b + 8 + r, b + 12 + r))
        for r in range(4):
            a.e("v_add_f32 v%d, v%d, v%d" % (b + r, b + r, b + 8 + r))
        a.e("v_cvt_pk_bf16_f32 v%d, v%d, v%d" % (b + 4, b, b + 1))
        a.e("v_cvt_pk_bf16_f32 v%d, v%d, v%d" % (b + 5, b + 2, b + 3))
        a.e("buffer_store_dwordx2 v[%d:%d], v6, s[%d:%d], s6 offen offset:%d" % (b + 4, b + 5, SRD_WS, SRD_WS + 3, 512 * gg))
    a.stamp_out()
    a.e("s_branch L_end_%s" % a.kname)


def gen_phase2(a):
    a.kname = "p2"
    a.label("mid_kernel")
    prologue(a, P2_WGS)
    a.e("s_cmp_lt_u32 s2, %d" % N_G1)
    a.e("s_cbranch_scc1 L_p2_g1")
    gen_conv(a)
    a.label("L_p2_g1")
    gen_gemm1(a)
    a.label("L_end_p2")
    a.e("s_endpgm")


P3_WGS = 256
G2_NSLOT = int(os.environ.get("G2_NSLOT", "5"))
G2_NB = int(os.environ.get("G2_NB", "5"))
P3_LDS = 10240 * G2_NSLOT


def gen_phase3(a):
    a.kname = "p3"
    a.label("fin_kernel")
    prologue(a, P3_WGS)
    vm = VM(a)
    a.e("s_lshr_b32 s4, s2, 5")
    a.e("s_and_b32 s5, s2, 7")
    a.e("s_lshl_b32 s5, s5, 2")
    a.e("s_bfe_u32 s6, s2, 0x20003")
    a.e("s_add_u32 s5, s5, s6")
    SB, SL, SBB, SKH, SWP = 48, 56, 54, 46, 47
    a.e("s_lshr_b32 s%d, s3, 1" % SKH)
    a.e("s_and_b32 s40, s3, 1")
    a.e("s_lshl_b32 s%d, s40, 1" % SWP)
    a.e("s_add_u32 s%d, s%d, s%d" % (SWP, SWP, SKH))
    a.e("s_lshl_b32 s41, s5, 2")
    a.e("s_lshl_b32 s40, s40, 1")
    a.e("s_add_u32 s41, s41, s40")
    a.e("s_mul_i32 s41, s41, 54")
    a.e("s_add_u32 s41, s41, s%d" % SKH)
    a.e("s_lshl_b32 s41, s41, 10")
    a.e("s_add_u32 s%d, s41, %d" % (SBB, ACTF))

    def gaddr(a, sc, sdst):
        a.e("s_cmp_ge_u32 s%d, 5" % sc)
        a.e("s_cselect_b32 s40, 1, 0")
        a.e("s_mul_i32 s41, s40, 5")
        a.e("s_sub_u32 s41, s%d, s41" % sc)
        a.e("s_mul_i32 s42, s4, 5")
        a.e("s_add_u32 s42, s42, s41")
        a.e("s_mul_i32 s42, s42, 54")
        a.e("s_add_u32 s42, s42, s40")
        a.e("s_lshl_b32 s42, s42, 10")
        a.e("s_add_u32 s%d, s42, %d" % (sdst, W2F))
    dma_setup(a, 10, SB, SL, gaddr)
    a.e("v_lshlrev_b32 v1, 4, v0")
    a.e("s_mul_i32 s6, s%d, 5120" % SKH)
    a.e("v_add_u32 v2, s6, v1")
    ACC = 12
    AREG = 52
    BREG = 92
    EX, EXN, EDS, EY = 132, 142, 152, 164
    assert BREG + 8 * G2_NB <= EX
    a.e("s_lshl_b32 s6, s5, 6")
    a.e("s_lshl_b32 s7, s%d, 4" % SWP)
    a.e("s_add_u32 s6, s6, s7")
    a.e("v_and_b32 v6, 15, v0")
    a.e("v_add_u32 v6, s6, v6")
    a.e("v_lshrrev_b32 v7, 4, v0")
    a.e("s_mul_i32 s7, s4, 160")
    a.e("v_mul_u32_u24 v8, 1280, v6")
    a.e("v_lshl_add_u32 v8, v7, 3, v8")
    a.e("v_add_u32 v8, s7, v8")
    a.e("v_lshlrev_b32 v9, 3, v7")
    a.e("v_add_u32 v9, s7, v9")
    a.e("v_lshrrev_b32 v10, 5, v0")
    a.e("v_lshlrev_b32 v10, 8, v10")
    a.e("v_and_b32 v11, 15, v0")
    a.e("v_lshl_add_u32 v10, v11, 4, v10")
    a.e("v_bfe_u32 v11, v0, 4, 1")
    a.e("v_lshl_add_u32 v10, v11, 3, v10")
    a.e("s_lshr_b32 s40, s6, 4")
    a.e("s_mul_i32 s40, s40, 20480")
    a.e("s_mul_i32 s41, s4, 2560")
    a.e("s_add_u32 s40, s40, s41")
    a.e("s_add_u32 s40, s40, %d" % XNF)
    a.e("v_lshlrev_b32 v11, 14, v7")
    a.e("v_lshl_add_u32 v11, v6, 1, v11")
    a.e("s_mul_i32 s41, s4, %d" % (80 * 4096))
    a.e("s_add_u32 s41, s41, %d" % YT)
    for i in range(40):
        a.e("v_mov_b32 v%d, 0" % (ACC + i))

    def epi_loads():
        for i in range(5):
            a.e("global_load_dwordx2 v[%d:%d], v8, s[%d:%d] offset:%d" % (EX + 2 * i, EX + 2 * i + 1, P_U, P_U + 1, 32 * i))
            vm.issue("epi")
            a.e("global_load_dwordx2 v[%d:%d], v9, s[%d:%d] offset:%d" % (EDS + 2 * i, EDS + 2 * i + 1, P_DSK, P_DSK + 1, 32 * i))
            vm.issue("epi")
            a.e("buffer_load_dwordx2 v[%d:%d], v10, s[%d:%d], s40 offen offset:%d" % (EXN + 2 * i, EXN + 2 * i + 1, SRD_WS, SRD_WS + 3, 512 * i))
            vm.issue("epi")
            for r in range(4):
                a.e("s_add_u32 s42, s41, %d" % ((16 * i + r) * 4096))
                a.e("buffer_load_ushort v%d, v11, s[%d:%d], s42 offen" % (EY + 4 * i + r, SRD_WS, SRD_WS + 3))
                vm.issue("epi")
    gemm_loop2(a, vm, 27, 10, 5, 2, G2_NSLOT, 2048, ACC, AREG, BREG, G2_NB, 1, 2, SB, SL, SBB, 2048, 54 * 1024, epi_loads)
    vm.waitall()
    a.stamp()
    a.e("s_nop 7")
    a.e("s_barrier")
    a.e("s_mul_i32 s6, s3, 5120")
    a.e("v_add_u32 v3, s6, v1")
    a.e("s_xor_b32 s7, s3, 2")
    a.e("s_mul_i32 s7, s7, 5120")
    a.e("v_add_u32 v4, s7, v1")
    lab1 = a.newlabel("L_x")
    lab2 = a.newlabel("L_x")
    a.e("s_cmp_eq_u32 s%d, 0" % SKH)
    a.e("s_cbranch_scc1 %s" % lab1)
    for i in range(5):
        a.e("ds_write_b128 v3, v[%d:%d] offset:%d" % (ACC + 8 * i, ACC + 8 * i + 3, 1024 * i))
    a.e("s_nop 3")
    for i in range(5):
        for r in range(4):
            a.e("v_mov_b32 v%d, v%d" % (ACC + 8 * i + r, ACC + 8 * i + 4 + r))
    a.e("s_branch %s" % lab2)
    a.label(lab1)
    for i in range(5):
        a.e("ds_write_b128 v3, v[%d:%d] offset:%d" % (ACC + 8 * i + 4, ACC + 8 * i + 7, 1024 * i))
    a.label(lab2)
    a.e("s_waitcnt lgkmcnt(0)")
    a.e("s_barrier")
    for i in range(5):
        a.e("ds_read_b128 v[%d:%d], v4 offset:%d" % (ACC + 8 * i + 4, ACC + 8 * i + 7, 1024 * i))
    T = 52
    for i in range(5):
        acc = ACC + 8 * i
        x, xn, ds, y = T, T + 4, T + 8, EY + 4 * i
        for (dst, src) in ((x, EX + 2 * i), (xn, EXN + 2 * i), (ds, EDS + 2 * i)):
            a.e("v_lshlrev_b32 v%d, 16, v%d" % (dst, src))
            a.e("v_and_b32 v%d, 0xffff0000, v%d" % (dst + 1, src))
            a.e("v_lshlrev_b32 v%d, 16, v%d" % (dst + 2, src + 1))
            a.e("v_and_b32 v%d, 0xffff0000, v%d" % (dst + 3, src + 1))
        for r in range(4):
            a.e("v_lshlrev_b32 v%d, 16, v%d" % (y + r, y + r))
            a.e("v_mul_f32 v%d, v%d, v%d" % (xn + r, xn + r, ds + r))

        def rnd4(b):
            a.e("v_cvt_pk_bf16_f32 v%d, v%d, v%d" % (T + 12, b, b + 1))
            a.e("v_cvt_pk_bf16_f32 v%d, v%d, v%d" % (T + 13, b + 2, b + 3))
            a.e("v_lshlrev_b32 v%d, 16, v%d" % (b, T + 12))
            a.e("v_and_b32 v%d, 0xffff0000, v%d" % (b + 1, T + 12))
            a.e("v_lshlrev_b32 v%d, 16, v%d" % (b + 2, T + 13))
            a.e("v_and_b32 v%d, 0xffff0000, v%d" % (b + 3, T + 13))
        rnd4(xn)
        for r in range(4):
            a.e("v_add_f32 v%d, v%d, v%d" % (xn + r, xn + r, y + r))
        rnd4(xn)
        for r in range(4):
            a.e("v_add_f32 v%d, v%d, v%d" % (xn + r, xn + r, x + r))
        rnd4(xn)
        a.e("s_waitcnt lgkmcnt(%d)" % (4 - i))
        for r in range(4):
            a.e("v_add_f32 v%d, v%d, v%d" % (acc + r, acc + r, acc + 4 + r))
        rnd4(acc)
        for r in range(4):
            a.e("v_add_f32 v%d, v%d, v%d" % (xn + r, xn + r, acc + r))
        o = 80 + 2 * i
        a.e("v_cvt_pk_bf16_f32 v%d, v%d, v%d" % (o, xn, xn + 1))
        a.e("v_cvt_pk_bf16_f32 v%d, v%d, v%d" % (o + 1, xn + 2, xn + 3))
        a.e("global_store_dwordx2 v8, v[%d:%d], s[%d:%d] offset:%d" % (o, o + 1, P_OUT, P_OUT + 1, 32 * i))
    a.stamp_out()
    a.label("L_end_p3")
    a.e("s_endpgm")


def kd(name, vgpr):
    nv = (vgpr + 7) // 8 * 8
    return """.amdhsa_kernel %s
  .amdhsa_next_free_vgpr %d
  .amdhsa_next_free_sgpr 96
  .amdhsa_accum_offset %d
  .amdhsa_group_segment_fixed_size 0
  .amdhsa_kernarg_size 112
  .amdhsa_user_sgpr_count 2
  .amdhsa_user_sgpr_kernarg_segment_ptr 1
  .amdhsa_system_sgpr_workgroup_id_x 1
.end_amdhsa_kernel
""" % (name, nv, nv)


def main():
    hdr = open("cdna_kernels/%s.s.ref" % NAME).read().splitlines()
    hdr = [l for l in hdr if l.startswith(";") and "@launch" not in l]
    out = hdr[:]
    out.append("; @launch kernel=prep_kernel grid=(%d,1,1) block=(256,1,1) lds=%d" % (P1_WGS, KG_LDS))
    out.append("; @launch kernel=mid_kernel grid=(%d,1,1) block=(256,1,1) lds=%d" % (P2_WGS, P2_LDS))
    out.append("; @launch kernel=fin_kernel grid=(%d,1,1) block=(256,1,1) lds=%d" % (P3_WGS, P3_LDS))
    out.append('.amdgcn_target "amdgcn-amd-amdhsa--gfx950"')
    out.append(".text")
    a = Asm()
    for (g, n) in ((gen_phase1, "prep_kernel"), (gen_phase2, "mid_kernel"), (gen_phase3, "fin_kernel")):
        a.lines.append(".globl %s" % n)
        a.lines.append(".p2align 8")
        a.lines.append(".type %s,@function" % n)
        g(a)
    out += a.lines
    out.append('.section .rodata,"a"')
    out.append(".p2align 6")
    out.append(kd("prep_kernel", 128))
    out.append(".p2align 6")
    out.append(kd("mid_kernel", 208))
    out.append(".p2align 6")
    out.append(kd("fin_kernel", 184))
    dst = os.environ.get("OUT", "cdna_kernels/%s.s" % NAME)
    open(dst, "w").write("\n".join(out) + "\n")


if __name__ == "__main__":
    main()
```

```python
import sys, os
SKIP = os.environ.get("SKIP", "").split(",")

NAME = "parallel_sum__ssm_conv_s4d__dense_activation_mish__prompt"

L, D, NS, F = 2048, 640, 128, 1728

XNF = 0
XNT = XNF + 128 * 20 * 1024
XNT_STR = 4352
W1F = XNT + 640 * XNT_STR
W2F = W1F + 108 * 20 * 1024
KR0 = W2F + 40 * 54 * 1024
KR_STR = 4384
KR1 = KR0 + 640 * KR_STR
ACTF = KR1 + 640 * KR_STR
YT = ACTF + 128 * 54 * 1024
WS_END = YT + 640 * 4096

LOG2E = 0x3fb8aa3b
INV2PI = 0x3e22f983


STAMP = os.environ.get("STAMP", "")
ILV = int(os.environ.get("ILV", "1"))
STOREFLAG = os.environ.get("STOREFLAG", "sc0 sc1")
STOREK = os.environ.get("STOREK", "p1,p2,p3").split(",")
TRACE = os.environ.get("TRACE", "")


class Asm:
    def __init__(self):
        self.lines = []
        self.lab = 0
        self.nst = 0

    def stamp(self):
        if not STAMP or STAMP.split(":")[0] != self.kname:
            return
        i = self.nst
        self.nst += 1
        assert i < 12
        self.e("s_memtime s[%d:%d]" % (64 + 2 * i, 65 + 2 * i))

    def stamp_out(self):
        if TRACE:
            lab = self.newlabel("L_tr")
            self.e("s_waitcnt vmcnt(0) lgkmcnt(0)")
            self.e("s_memrealtime s[90:91]")
            self.e("s_cmp_lg_u32 s3, 0")
            self.e("s_cbranch_scc1 %s" % lab)
            self.e("s_lshl_b32 s92, s2, 3")
            self.e("s_add_u32 s92, s92, %d" % (64 * 1024 * 1024 + 65536 * int(self.kname[1])))
            self.e("v_mov_b32 v1, s92")
            self.e("s_waitcnt lgkmcnt(0)")
            self.e("v_mov_b32 v2, s88")
            self.e("v_mov_b32 v3, s90")
            self.e("global_store_dwordx2 v1, v[2:3], s[%d:%d]" % (P_WS, P_WS + 1))
            self.label(lab)
            return
        if not STAMP or STAMP.split(":")[0] != self.kname:
            return
        wg = int(STAMP.split(":")[1])
        self.e("s_memrealtime s[90:91]")
        self.stamp()
        self.e("s_waitcnt lgkmcnt(0)")
        lab = self.newlabel("L_st")
        self.e("s_cmp_lg_u32 s2, %d" % wg)
        self.e("s_cbranch_scc1 %s" % lab)
        self.e("s_cmp_lg_u32 s3, 0")
        self.e("s_cbranch_scc1 %s" % lab)
        self.e("v_mov_b32 v1, 0")
        for i in range(self.nst):
            self.e("s_sub_u32 s92, s%d, s64" % (64 + 2 * i))
            self.e("v_mov_b32 v2, s92")
            self.e("global_store_dword v1, v2, s[%d:%d] offset:%d" % (P_DBG, P_DBG + 1, 4 * i))
        self.e("s_sub_u32 s92, s90, s88")
        self.e("v_mov_b32 v2, s92")
        self.e("global_store_dword v1, v2, s[%d:%d] offset:%d" % (P_DBG, P_DBG + 1, 60))
        self.label(lab)
        self.nst = 1

    def e(self, s):
        if (s.startswith("buffer_store") or s.startswith("global_store")) and self.kname in STOREK:
            s = s + " " + STOREFLAG
        self.lines.append("    " + s)

    def c(self, s):
        self.lines.append("    ; " + s)

    def label(self, name):
        self.lines.append(name + ":")

    def newlabel(self, p="L"):
        self.lab += 1
        return "%s_%d" % (p, self.lab)


def vr(a, n=1):
    return "v%d" % a if n == 1 else "v[%d:%d]" % (a, a + n - 1)


def sr(a, n=1):
    return "s%d" % a if n == 1 else "s[%d:%d]" % (a, a + n - 1)


P_U, P_LOGA, P_AIM, P_CRE, P_CIM, P_LDT, P_DSK, P_BX, P_W1, P_B1, P_W2, P_OUT, P_DBG, P_WS = [8 + 2 * i for i in range(14)]
SRD_WS = 36


def prologue(a, nwg):
    if TRACE:
        a.e("s_memrealtime s[88:89]")
    if STAMP and STAMP.split(":")[0] == a.kname:
        a.e("s_memrealtime s[88:89]")
        a.e("s_memtime s[64:65]")
        a.nst = 1
    a.e("s_cmp_ge_u32 s2, %d" % nwg)
    a.e("s_cbranch_scc1 L_end_%s" % a.kname)
    a.e("s_load_dwordx16 s[8:23], s[0:1], 0")
    a.e("s_load_dwordx8 s[24:31], s[0:1], 64")
    a.e("s_load_dwordx4 s[32:35], s[0:1], 96")
    a.e("v_lshrrev_b32 v1, 6, v0")
    a.e("v_and_b32 v0, 63, v0")
    a.e("s_nop 0")
    a.e("v_readfirstlane_b32 s3, v1")
    a.e("s_waitcnt lgkmcnt(0)")
    a.e("s_mov_b32 s%d, s%d" % (SRD_WS, P_WS))
    a.e("s_and_b32 s%d, s%d, 0xffff" % (SRD_WS + 1, P_WS + 1))
    a.e("s_mov_b32 s%d, %d" % (SRD_WS + 2, WS_END))
    a.e("s_mov_b32 s%d, 0x00020000" % (SRD_WS + 3))


def make_srd(a, dst, ptr, nbytes):
    a.e("s_mov_b32 s%d, s%d" % (dst, ptr))
    a.e("s_and_b32 s%d, s%d, 0xffff" % (dst + 1, ptr + 1))
    a.e("s_mov_b32 s%d, %d" % (dst + 2, nbytes))
    a.e("s_mov_b32 s%d, 0x00020000" % (dst + 3))


def bf16r(a, dst, src):
    a.e("v_cvt_pk_bf16_f32 %s, %s, %s" % (vr(dst), vr(src), vr(src)))
    a.e("v_lshlrev_b32 %s, 16, %s" % (vr(dst), vr(dst)))


N_KG = 640
N_LN = 128
N_W1 = 108
N_W2 = 120
P1_WGS = N_KG + N_LN + N_W1 + N_W2
LN_BASE = 0
W1_BASE = N_LN
W2_BASE = N_LN + N_W1
KG_BASE = N_LN + N_W1 + N_W2


KG_BLK = 16 * 272
KG_WAVE = 2 * KG_BLK
KG_KD = 4 * KG_WAVE
KG_LDS = KG_KD + 2624


def f32bits(x):
    import struct
    return "0x%x" % struct.unpack("<I", struct.pack("<f", float(x)))[0]


def gen_kgen(a):
    a.c("---- K generation ----")
    if "kg" in SKIP:
        a.e("s_branch L_end_%s" % a.kname)
    a.e("s_sub_u32 s4, s2, %d" % KG_BASE)
    a.e("s_lshl_b32 s5, s4, 8")
    a.e("s_lshl_b32 s6, s3, 6")
    a.e("s_add_u32 s5, s5, s6")
    a.e("v_and_b32 v1, 31, v0")
    a.e("v_lshlrev_b32 v2, 1, v1")
    a.e("v_add_u32 v2, s5, v2")
    a.e("s_lshl_b32 s5, s4, 1")
    a.e("v_mov_b32 v3, s5")
    LA, AIM, CRE, CIM, DT = 10, 11, 12, 13, 14
    a.e("global_load_ushort v%d, v2, s[%d:%d]" % (LA, P_LOGA, P_LOGA + 1))
    a.e("global_load_ushort v%d, v2, s[%d:%d]" % (AIM, P_AIM, P_AIM + 1))
    a.e("global_load_ushort v%d, v2, s[%d:%d]" % (CRE, P_CRE, P_CRE + 1))
    a.e("global_load_ushort v%d, v2, s[%d:%d]" % (CIM, P_CIM, P_CIM + 1))
    a.e("global_load_ushort v%d, v3, s[%d:%d]" % (DT, P_LDT, P_LDT + 1))
    lab = a.newlabel("L_kgz")
    a.e("s_cmp_lg_u32 s3, 0")
    a.e("s_cbranch_scc1 %s" % lab)
    a.e("s_mul_i32 s6, s4, %d" % XNT_STR)
    a.e("s_add_u32 s6, s6, %d" % XNT)
    a.e("v_mov_b32 v3, 0")
    a.e("v_lshlrev_b32 v4, 2, v0")
    a.e("v_cmp_gt_u32 vcc, 60, v0")
    a.e("s_and_saveexec_b64 s[40:41], vcc")
    a.e("buffer_store_dword v3, v4, s[%d:%d], s6 offen" % (SRD_WS, SRD_WS + 3))
    a.e("s_mov_b64 exec, s[40:41]")
    a.label(lab)
    a.e("s_mul_i32 s42, s3, %d" % KG_WAVE)
    a.e("v_lshrrev_b32 v4, 5, v0")
    a.e("v_cvt_f32_u32 v9, v4")
    a.e("v_mul_u32_u24 v4, %d, v4" % KG_BLK)
    a.e("v_lshl_add_u32 v4, v1, 3, v4")
    a.e("v_add_u32 v4, s42, v4")
    a.e("v_and_b32 v5, 15, v0")
    a.e("v_mul_u32_u24 v5, 272, v5")
    a.e("v_lshrrev_b32 v6, 4, v0")
    a.e("v_lshl_add_u32 v5, v6, 6, v5")
    a.e("v_add_u32 v5, s42, v5")
    a.e("v_lshlrev_b32 v6, 4, v0")
    a.e("v_add_u32 v6, s42, v6")
    a.e("s_mov_b32 s43, 0x%x" % LOG2E)
    a.e("s_mov_b32 s44, 0x%x" % INV2PI)
    a.e("s_mov_b32 vcc_lo, 0")
    a.e("s_mov_b32 vcc_hi, -1")
    ACC = 100
    for i in range(16):
        a.e("v_mov_b32 v%d, 0" % (ACC + i))
    a.e("s_waitcnt vmcnt(0)")
    a.stamp()
    a.e("v_lshlrev_b32 v%d, 16, v%d" % (DT, DT))
    a.e("v_lshlrev_b32 v%d, 16, v%d" % (LA, LA))
    a.e("v_mul_f32 v%d, s43, v%d" % (DT, DT))
    a.e("v_mul_f32 v%d, s43, v%d" % (LA, LA))
    a.e("v_exp_f32 v%d, v%d" % (DT, DT))
    a.e("v_exp_f32 v%d, v%d" % (LA, LA))
    a.e("v_lshlrev_b32 v%d, 16, v%d" % (AIM, AIM))
    a.e("v_lshlrev_b32 v%d, 16, v%d" % (CRE, CRE))
    a.e("v_lshlrev_b32 v%d, 16, v%d" % (CIM, CIM))
    bf16r(a, DT, DT)
    bf16r(a, LA, LA)
    a.e("v_mul_f32 v%d, v%d, v%d" % (LA, LA, DT))
    a.e("v_mul_f32 v%d, v%d, v%d" % (AIM, AIM, DT))
    a.e("v_mul_f32 v%d, v%d, v%d" % (CRE, CRE, DT))
    a.e("v_mul_f32 v%d, v%d, v%d" % (CIM, CIM, DT))
    a.e("v_mul_f32 v%d, s43, v%d" % (LA, LA))
    a.e("v_mul_f32 v%d, s44, v%d" % (AIM, AIM))
    a.e("v_add_f32 v%d, v%d, v%d" % (CRE, CRE, CRE))
    a.e("v_add_f32 v%d, v%d, v%d" % (CIM, CIM, CIM))
    NAIM = 15
    a.e("v_sub_f32 v%d, 0, v%d" % (NAIM, AIM))
    a.e("v_cndmask_b32 v%d, v%d, v%d, vcc" % (NAIM, NAIM, AIM))
    CM = 16
    a.e("v_cndmask_b32 v%d, 1.0, v%d, vcc" % (CM, CRE))
    a.e("v_cndmask_b32 v%d, 0, v%d, vcc" % (CM + 1, CIM))

    def cexps(lst, tbase):
        for i, (dst, p0, p1, ar) in enumerate(lst):
            t = tbase + 3 * i
            if p0 == p1:
                a.e("v_mov_b32 v%d, %s" % (t, f32bits(p0)))
            else:
                a.e("v_mul_f32 v%d, %s, v9" % (t, f32bits(p1 - p0)))
                a.e("v_add_f32 v%d, %s, v%d" % (t, f32bits(p0), t))
        for i, (dst, p0, p1, ar) in enumerate(lst):
            t = tbase + 3 * i
            a.e("v_mul_f32 v%d, -v%d, v%d" % (t + 1, LA, t))
            a.e("v_mul_f32 v%d, v%d, v%d" % (t + 2, ar, t))
        for i, (dst, p0, p1, ar) in enumerate(lst):
            t = tbase + 3 * i
            a.e("v_exp_f32 v%d, v%d" % (t + 1, t + 1))
            a.e("v_fract_f32 v%d, v%d" % (t + 2, t + 2))
        for i, (dst, p0, p1, ar) in enumerate(lst):
            t = tbase + 3 * i
            a.e("v_cos_f32 v%d, v%d" % (dst, t + 2))
            a.e("v_sin_f32 v%d, v%d" % (dst + 1, t + 2))
        a.e("s_nop 0")
        for i, (dst, p0, p1, ar) in enumerate(lst):
            t = tbase + 3 * i
            a.e("v_mul_f32 v%d, v%d, v%d" % (dst, dst, t + 1))
            a.e("v_mul_f32 v%d, v%d, v%d" % (dst + 1, dst + 1, t + 1))

    def cmul(d, x, y):
        return ["v_pk_mul_f32 v[%d:%d], v[%d:%d], v[%d:%d] op_sel:[0,0] op_sel_hi:[0,1]" % (d, d + 1, x, x + 1, y, y + 1),
                "v_pk_fma_f32 v[%d:%d], v[%d:%d], v[%d:%d], v[%d:%d] op_sel:[1,1,0] op_sel_hi:[1,0,1] neg_lo:[1,0,0]" % (
                    d, d + 1, x, x + 1, y, y + 1, d, d + 1)]

    def emit(lst):
        for s in lst:
            a.e(s)

    F1, S2, FA, FB, T0, T1, T2 = 18, 20, 22, 24, 26, 28, 30
    cexps([(F1, 8, 1, NAIM), (S2, 64, 128, NAIM), (FA, 2, 128, AIM), (FB, 128, 128, AIM),
           (T0, 256, 1024, AIM), (T1, 384, 1536, AIM), (T2, 512, 2048, AIM)], 60)
    a.stamp()
    Q, S1, S3 = 32, 34, 36
    CH = [40, 44, 48, 52]
    emit(cmul(Q, F1, F1))
    emit(cmul(CH[2], S2, CM))
    emit(cmul(S1, Q, Q))
    a.e("v_mov_b32 v%d, v%d" % (CH[0], CM))
    a.e("v_mov_b32 v%d, v%d" % (CH[0] + 1, CM + 1))
    emit(cmul(CH[1], S1, CM))
    emit(cmul(CH[3], S1, CH[2]))
    rows1 = [[0, 1, 2, 3], [4, 5, 6, 7], [8, 9, 10, 11], [12, 13, 14, 15]]
    rows2 = [[0, 1, 2, 3], [4, 5, 6, 7], [8, 10, 12, 14], [9, 11, 13, 15]]

    def chains(rows, facs):
        out = []
        for i in range(4):
            for q in range(4):
                cur = CH[q] + 2 * (i & 1)
                out.append("ds_write_b64 v4, v[%d:%d] offset:%d" % (cur, cur + 1, 272 * rows[q][i]))
            if i < 3:
                m = [cmul(CH[q] + 2 * ((i + 1) & 1), CH[q] + 2 * (i & 1), facs[q]) for q in range(4)]
                for s in range(2):
                    for q in range(4):
                        out.append(m[q][s])
        return out
    emit(chains(rows1, [F1] * 4))
    RY, RX = 64, 80
    for j in range(4):
        a.e("ds_read_b128 v[%d:%d], v5 offset:%d" % (RY + 4 * j, RY + 4 * j + 3, 16 * j))
        a.e("ds_read_b128 v[%d:%d], v5 offset:%d" % (RX + 4 * j, RX + 4 * j + 3, KG_BLK + 16 * j))
    a.stamp()
    pre = []
    pre += cmul(Q, FA, FA)
    pre += cmul(CH[0], T0, CRE)
    pre += cmul(CH[1], T1, CRE)
    pre += cmul(CH[2], T2, CRE)
    pre += cmul(CH[3], Q, CH[2])
    emit(pre)
    a.e("s_waitcnt lgkmcnt(0)")
    ch2 = chains(rows2, [FA, FA, FB, FB])
    mf = ["v_mfma_f32_16x16x4_f32 v[%d:%d], v%d, v%d, v[%d:%d]" % (
        ACC + 4 * (k & 1), ACC + 4 * (k & 1) + 3, RX + k, RY + k, ACC + 4 * (k & 1), ACC + 4 * (k & 1) + 3) for k in range(16)]
    per = (len(ch2) + 15) // 16
    idx = 0
    for k in range(16):
        a.e(mf[k])
        for s in ch2[idx:idx + per]:
            a.e(s)
        idx += per
    assert idx >= len(ch2)
    RX1, RX2 = 16, 32
    for j in range(4):
        a.e("ds_read_b128 v[%d:%d], v5 offset:%d" % (RX1 + 4 * j, RX1 + 4 * j + 3, 16 * j))
        a.e("ds_read_b128 v[%d:%d], v5 offset:%d" % (RX2 + 4 * j, RX2 + 4 * j + 3, KG_BLK + 16 * j))
    a.e("s_waitcnt lgkmcnt(0)")
    a.stamp()
    mf2 = []
    for k in range(16):
        mf2.append("v_mfma_f32_16x16x4_f32 v[%d:%d], v%d, v%d, v[%d:%d]" % (ACC + 8, ACC + 11, RX1 + k, RY + k, ACC + 8, ACC + 11))
        mf2.append("v_mfma_f32_16x16x4_f32 v[%d:%d], v%d, v%d, v[%d:%d]" % (ACC + 12, ACC + 15, RX2 + k, RY + k, ACC + 12, ACC + 15))
    im = []
    im.append("s_lshl_b32 s5, s3, 6")
    im.append("v_add_u32 v1, s5, v0")

    def srcaddr(dst, j, sh, segbase, t0, t1):
        im.append("v_lshrrev_b32 v%d, %d, v%d" % (t0, sh + 4, j))
        im.append("v_lshlrev_b32 v%d, %d, v%d" % (t0, sh, t0))
        if sh:
            im.append("v_and_b32 v%d, %d, v%d" % (t1, (1 << sh) - 1, j))
            im.append("v_add3_u32 v%d, v%d, v%d, %d" % (t0, t0, t1, segbase))
        else:
            im.append("v_add_u32 v%d, %d, v%d" % (t0, segbase, t0))
        im.append("v_bfe_u32 v%d, v%d, %d, 4" % (dst, j, sh))
        im.append("v_lshlrev_b32 v%d, 4, v%d" % (dst, dst))
        im.append("v_lshrrev_b32 v%d, 2, v%d" % (t1, t0))
        im.append("v_lshl_add_u32 v%d, v%d, 8, v%d" % (dst, t1, dst))
        im.append("v_and_b32 v%d, 3, v%d" % (t1, t0))
        im.append("v_lshl_add_u32 v%d, v%d, 2, v%d" % (dst, t1, dst))
    srcaddr(48, 1, 3, 0, 52, 53)
    im.append("v_and_b32 v54, 127, v1")
    srcaddr(49, 54, 2, 16, 52, 53)
    srcaddr(50, 54, 1, 24, 52, 53)
    im.append("v_cmp_gt_u32 vcc, 128, v1")
    im.append("v_cndmask_b32 v49, v50, v49, vcc")
    im.append("v_min_u32 v54, 128, v1")
    srcaddr(50, 54, 0, 32, 52, 53)
    im.append("v_lshlrev_b32 v51, 2, v1")
    im.append("v_add_u32 v51, %d, v51" % KG_KD)
    XA = 84
    im.append("v_lshlrev_b32 v52, 3, v1")
    im.append("v_sub_u32 v52, 2049, v52")
    im.append("v_cvt_f32_u32 v53, v52")
    im.append("v_lshlrev_b32 v52, 2, v52")
    im.append("v_add_u32 v52, %d, v52" % KG_KD)
    im.append("s_mov_b32 s45, 0x%x" % ((KG_KD - 4 * 17024) & 0xffffffff))
    TF = 116
    for e in range(9):
        im.append("v_subrev_f32 v%d, %s, v53" % (TF + e, "%d.0" % e if e in (0, 1, 2, 4) else f32bits(e)))
        im.append("v_max_f32 v%d, 0x43000000, v%d" % (TF + e, TF + e))
    for e in range(0, 9, 2):
        im.append("v_cvt_pk_bf16_f32 v%d, v%d, v%d" % (TF + e, TF + e, TF + e + 1 if e < 8 else TF + e))
    for e in range(9):
        if e & 1:
            im.append("v_lshrrev_b32 v%d, 16, v%d" % (XA + e, TF + e - 1))
        else:
            im.append("v_and_b32 v%d, 0xffff, v%d" % (XA + e, TF + e))
        im.append("v_lshl_add_u32 v%d, v%d, 2, s45" % (XA + e, XA + e))
        im.append("v_subrev_u32 v%d, %d, v52" % (TF + 9, 4 * e))
        im.append("v_min_u32 v%d, v%d, v%d" % (XA + e, XA + e, TF + 9))
    im.append("v_lshlrev_b32 v5, 4, v1")
    per = (len(im) + 31) // 32
    idx = 0
    for k in range(32):
        a.e(mf2[k])
        for s in im[idx:idx + per]:
            a.e(s)
        idx += per
    assert idx >= len(im)
    a.e("s_nop 7")
    a.e("s_nop 7")
    for i in range(4):
        a.e("v_add_f32 v%d, v%d, v%d" % (ACC + 4 + i, ACC + 4 + i, ACC + i))
    for b in range(3):
        a.e("ds_write_b128 v6, v[%d:%d] offset:%d" % (ACC + 4 + 4 * b, ACC + 7 + 4 * b, 1024 * b))
    a.e("s_waitcnt lgkmcnt(0)")
    a.e("s_barrier")
    a.stamp()
    RR = 16
    for r in range(3):
        for w in range(4):
            a.e("ds_read_b32 v%d, v%d offset:%d" % (RR + 4 * r + w, 48 + r, KG_WAVE * w))
    for r in range(3):
        a.e("s_waitcnt lgkmcnt(%d)" % (8 - 4 * r))
        a.e("v_add_f32 v%d, v%d, v%d" % (RR + 4 * r, RR + 4 * r, RR + 1 + 4 * r))
        a.e("v_add_f32 v%d, v%d, v%d" % (RR + 2 + 4 * r, RR + 2 + 4 * r, RR + 3 + 4 * r))
        a.e("v_add_f32 v%d, v%d, v%d" % (RR + 4 * r, RR + 4 * r, RR + 2 + 4 * r))
    a.e("ds_write_b32 v51, v%d" % RR)
    a.e("ds_write_b32 v51, v%d offset:1024" % (RR + 4))
    a.e("v_cmp_gt_u32 vcc, 129, v1")
    a.e("s_and_saveexec_b64 s[40:41], vcc")
    a.e("ds_write_b32 v51, v%d offset:2048" % (RR + 8))
    a.e("s_mov_b64 exec, s[40:41]")
    a.e("s_mul_i32 s6, s4, %d" % KR_STR)
    a.e("s_add_u32 s6, s6, %d" % KR0)
    a.e("s_add_u32 s7, s6, %d" % (KR1 - KR0))
    a.e("s_waitcnt lgkmcnt(0)")
    a.e("s_barrier")
    a.stamp()
    for e in range(9):
        a.e("ds_read_b32 v%d, v%d" % (50 + e, XA + e))
    lab = a.newlabel("L_kgx")
    a.e("s_cmp_lg_u32 s3, 3")
    a.e("s_cbranch_scc1 %s" % lab)
    a.e("v_mov_b32 v30, %d" % KG_KD)
    a.e("ds_read_b64 v[32:33], v30")
    for i in range(8):
        a.e("v_mov_b32 v%d, 0" % (36 + i))
    a.e("v_lshlrev_b32 v31, 4, v0")
    a.e("v_add_u32 v31, 4096, v31")
    a.e("v_cmp_eq_u32 vcc, 0, v0")
    a.e("s_waitcnt lgkmcnt(0)")
    a.e("v_cvt_pk_bf16_f32 v34, v32, v36")
    a.e("v_cvt_pk_bf16_f32 v35, v33, v32")
    a.e("v_cndmask_b32 v36, v36, v34, vcc")
    a.e("v_cndmask_b32 v40, v40, v35, vcc")
    a.e("v_cmp_gt_u32 vcc, 18, v0")
    a.e("s_and_saveexec_b64 s[40:41], vcc")
    a.e("buffer_store_dwordx4 v[36:39], v31, s[%d:%d], s6 offen" % (SRD_WS, SRD_WS + 3))
    a.e("buffer_store_dwordx4 v[40:43], v31, s[%d:%d], s7 offen" % (SRD_WS, SRD_WS + 3))
    a.e("s_mov_b64 exec, s[40:41]")
    a.label(lab)
    a.e("v_cmp_ne_u32 vcc, 0, v1")
    a.e("s_waitcnt lgkmcnt(0)")
    a.e("v_cndmask_b32 v50, 0, v50, vcc")
    a.e("v_cndmask_b32 v51, 0, v51, vcc")
    for e in range(4):
        a.e("v_cvt_pk_bf16_f32 v%d, v%d, v%d" % (60 + e, 51 + 2 * e, 52 + 2 * e))
        a.e("v_cvt_pk_bf16_f32 v%d, v%d, v%d" % (64 + e, 50 + 2 * e, 51 + 2 * e))
    a.e("buffer_store_dwordx4 v[60:63], v5, s[%d:%d], s6 offen" % (SRD_WS, SRD_WS + 3))
    a.e("buffer_store_dwordx4 v[64:67], v5, s[%d:%d], s7 offen" % (SRD_WS, SRD_WS + 3))
    a.stamp_out()
    a.e("s_branch L_end_%s" % a.kname)


def gen_ln(a):
    a.c("---- LayerNorm: row block s2-640 ----")
    if "ln" in SKIP:
        a.e("s_branch L_end_%s" % a.kname)
    a.e("s_sub_u32 s4, s2, %d" % LN_BASE)
    a.e("s_lshl_b32 s5, s4, 4")
    a.e("s_lshl_b32 s6, s3, 2")
    a.e("s_add_u32 s5, s5, s6")
    a.e("v_lshrrev_b32 v1, 4, v0")
    a.e("v_and_b32 v2, 15, v0")
    a.e("v_add_u32 v3, s5, v1")
    a.e("v_mul_u32_u24 v3, 1280, v3")
    a.e("v_lshl_add_u32 v3, v2, 4, v3")
    for i in range(5):
        a.e("global_load_dwordx4 v[%d:%d], v3, s[%d:%d] offset:%d" % (10 + 4 * i, 13 + 4 * i, P_U, P_U + 1, 256 * i))
    a.e("s_waitcnt vmcnt(0)")
    for j in range(20):
        a.e("v_lshlrev_b32 v%d, 16, v%d" % (40 + 2 * j, 10 + j))
        a.e("v_and_b32 v%d, 0xffff0000, v%d" % (41 + 2 * j, 10 + j))
    a.e("v_add_f32 v4, v40, v41")
    for j in range(2, 40):
        a.e("v_add_f32 v4, v4, v%d" % (40 + j))

    def red16(reg, tmp):
        for off in (0x041F, 0x081F, 0x101F, 0x201F):
            a.e("ds_swizzle_b32 v%d, v%d offset:0x%x" % (tmp, reg, off))
            a.e("s_waitcnt lgkmcnt(0)")
            a.e("v_add_f32 v%d, v%d, v%d" % (reg, reg, tmp))
    red16(4, 5)
    a.e("s_mov_b32 s7, 0x3acccccd")
    a.e("v_mul_f32 v4, s7, v4")
    a.e("v_sub_f32 v6, v40, v4")
    a.e("v_mul_f32 v5, v6, v6")
    for j in range(1, 40):
        a.e("v_sub_f32 v6, v%d, v4" % (40 + j))
        a.e("v_fma_f32 v5, v6, v6, v5")
    red16(5, 6)
    a.e("v_mul_f32 v5, s7, v5")
    bf16r(a, 4, 4)
    bf16r(a, 5, 5)
    a.e("v_add_f32 v5, 0x3727c5ac, v5")
    bf16r(a, 5, 5)
    a.e("v_sqrt_f32 v5, v5")
    a.e("s_nop 0")
    bf16r(a, 5, 5)
    a.e("v_rcp_f32 v6, v5")
    for j in range(0, 40, 2):
        x0, x1 = 40 + j, 41 + j
        a.e("v_sub_f32 v%d, v%d, v4" % (x0, x0))
        a.e("v_sub_f32 v%d, v%d, v4" % (x1, x1))
        a.e("v_cvt_pk_bf16_f32 v7, v%d, v%d" % (x0, x1))
        a.e("v_lshlrev_b32 v%d, 16, v7" % x0)
        a.e("v_and_b32 v%d, 0xffff0000, v7" % x1)
        a.e("v_mul_f32 v7, v%d, v6" % x0)
        a.e("v_mul_f32 v8, v%d, v6" % x1)
        a.e("v_fma_f32 v%d, -v7, v5, v%d" % (x0, x0))
        a.e("v_fma_f32 v%d, -v8, v5, v%d" % (x1, x1))
        a.e("v_fma_f32 v7, v%d, v6, v7" % x0)
        a.e("v_fma_f32 v8, v%d, v6, v8" % x1)
        a.e("v_cvt_pk_bf16_f32 v%d, v7, v8" % (10 + j // 2))
    a.e("s_mul_i32 s40, s4, 20480")
    a.e("s_add_u32 s40, s40, %d" % XNF)
    a.e("v_lshrrev_b32 v7, 2, v2")
    a.e("v_lshlrev_b32 v7, 10, v7")
    a.e("v_and_b32 v8, 3, v2")
    a.e("v_lshl_add_u32 v7, v8, 8, v7")
    a.e("v_add_u32 v8, s6, v1")
    a.e("v_lshl_add_u32 v7, v8, 4, v7")
    for i in range(5):
        a.e("s_add_u32 s41, s40, %d" % (4096 * i))
        a.e("buffer_store_dwordx4 v[%d:%d], v7, s[%d:%d], s41 offen" % (10 + 4 * i, 13 + 4 * i, SRD_WS, SRD_WS + 3))
    LSTR = 1296
    a.e("v_mul_u32_u24 v9, %d, v8" % LSTR)
    a.e("v_lshl_add_u32 v9, v2, 4, v9")
    for i in range(5):
        a.e("ds_write_b128 v9, v[%d:%d] offset:%d" % (10 + 4 * i, 13 + 4 * i, 256 * i))
    a.e("s_waitcnt lgkmcnt(0)")
    a.e("s_barrier")
    a.e("s_lshl_b32 s5, s3, 6")
    a.e("v_add_u32 v1, s5, v0")
    a.e("s_lshl_b32 s40, s4, 5")
    a.e("s_add_u32 s40, s40, %d" % (XNT + 240))
    for j in range(3):
        a.e("v_add_u32 v2, %d, v1" % (256 * j))
        if j == 2:
            a.e("v_cmp_gt_u32 vcc, 640, v2")
            a.e("s_and_saveexec_b64 s[42:43], vcc")
        a.e("v_lshlrev_b32 v3, 1, v2")
        for r in range(16):
            a.e("ds_read_u16 v%d, v3 offset:%d" % (64 + r, LSTR * r))
        a.e("v_mul_u32_u24 v4, %d, v2" % XNT_STR)
        a.e("s_waitcnt lgkmcnt(0)")
        for r in range(8):
            a.e("v_lshl_or_b32 v%d, v%d, 16, v%d" % (40 + 8 * j + r, 65 + 2 * r, 64 + 2 * r))
        a.e("buffer_store_dwordx4 v[%d:%d], v4, s[%d:%d], s40 offen" % (40 + 8 * j, 43 + 8 * j, SRD_WS, SRD_WS + 3))
        a.e("buffer_store_dwordx4 v[%d:%d], v4, s[%d:%d], s40 offen offset:16" % (44 + 8 * j, 47 + 8 * j, SRD_WS, SRD_WS + 3))
        if j == 2:
            a.e("s_mov_b64 exec, s[42:43]")
    a.stamp_out()
    a.e("s_branch L_end_%s" % a.kname)


def gen_wt(a, which):
    if which == 1:
        base_id = W1_BASE
        ncols = F
        ptr = P_W1
        dst = W1F
        nkb = 20
        nj = 5
    else:
        base_id = W2_BASE
        ncols = D
        ptr = P_W2
        dst = W2F
        nkb = 54
        nj = 5
    a.c("---- W%d transposition ----" % which)
    if "wt" in SKIP:
        a.e("s_branch L_end_%s" % a.kname)
    a.e("s_sub_u32 s4, s2, %d" % base_id)
    if which == 1:
        a.e("s_mov_b32 s5, s4")
        a.e("s_mov_b32 s6, s3")
        a.e("s_mov_b32 s7, 20")
    else:
        a.e("s_cmp_ge_u32 s4, 40")
        a.e("s_cselect_b32 s40, 1, 0")
        a.e("s_cmp_ge_u32 s4, 80")
        a.e("s_cselect_b32 s41, 1, 0")
        a.e("s_add_u32 s40, s40, s41")
        a.e("s_mul_i32 s41, s40, 40")
        a.e("s_sub_u32 s5, s4, s41")
        a.e("s_mul_i32 s6, s40, 18")
        a.e("s_add_u32 s7, s6, 18")
        a.e("s_add_u32 s6, s6, s3")
    make_srd(a, 44, ptr, D * F * 2)
    a.e("v_lshrrev_b32 v1, 4, v0")
    a.e("v_mul_u32_u24 v1, %d, v1" % (8 * ncols * 2))
    a.e("v_and_b32 v2, 15, v0")
    a.e("v_lshl_add_u32 v1, v2, 1, v1")
    a.e("s_lshl_b32 s40, s5, 5")
    a.e("v_add_u32 v1, s40, v1")
    a.e("v_lshlrev_b32 v2, 4, v0")
    a.e("s_mul_i32 s41, s5, %d" % (nkb * 1024))
    a.e("s_add_u32 s41, s41, %d" % dst)
    for j in range(nj):
        lab = a.newlabel("L_wt")
        a.e("s_add_u32 s42, s6, %d" % (4 * j))
        a.e("s_cmp_ge_u32 s42, s7")
        a.e("s_cbranch_scc1 %s" % lab)
        a.e("s_mul_i32 s43, s42, %d" % (32 * ncols * 2))
        for e in range(8):
            a.e("s_add_u32 s48, s43, %d" % (e * ncols * 2))
            a.e("buffer_load_ushort v%d, v1, s[44:47], s48 offen" % (40 + 8 * j + e))
        a.label(lab)
    for j in range(nj):
        lab = a.newlabel("L_wt")
        a.e("s_add_u32 s42, s6, %d" % (4 * j))
        a.e("s_cmp_ge_u32 s42, s7")
        a.e("s_cbranch_scc1 %s" % lab)
        a.e("s_lshl_b32 s43, s42, 10")
        a.e("s_add_u32 s43, s43, s41")
        a.e("s_waitcnt vmcnt(0)")
        for e in range(4):
            a.e("v_lshl_or_b32 v%d, v%d, 16, v%d" % (10 + 4 * j + e, 41 + 8 * j + 2 * e, 40 + 8 * j + 2 * e))
        a.e("buffer_store_dwordx4 v[%d:%d], v2, s[%d:%d], s43 offen" % (10 + 4 * j, 13 + 4 * j, SRD_WS, SRD_WS + 3))
        a.label(lab)
    a.stamp_out()
    a.e("s_branch L_end_%s" % a.kname)


def gen_phase1(a):
    a.kname = "p1"
    a.label("prep_kernel")
    prologue(a, P1_WGS)
    a.e("s_cmp_ge_u32 s2, %d" % KG_BASE)
    a.e("s_cbranch_scc1 L_p1_kg")
    a.e("s_cmp_lt_u32 s2, %d" % W1_BASE)
    a.e("s_cbranch_scc1 L_p1_ln")
    a.e("s_cmp_lt_u32 s2, %d" % W2_BASE)
    a.e("s_cbranch_scc1 L_p1_w1")
    gen_wt(a, 2)
    a.label("L_p1_w1")
    gen_wt(a, 1)
    a.label("L_p1_ln")
    gen_ln(a)
    a.label("L_p1_kg")
    gen_kgen(a)
    a.label("L_end_p1")
    a.e("s_endpgm")


class VM:
    def __init__(self, a):
        self.a = a
        self.q = []

    def issue(self, tag):
        self.q.append(tag)

    def wait(self, tag):
        idx = [i for i, t in enumerate(self.q) if t == tag]
        if not idx:
            return
        n = len(self.q) - 1 - idx[-1]
        assert n <= 63
        self.a.e("s_waitcnt vmcnt(%d)" % n)
        self.q = self.q[idx[-1] + 1:]

    def wait2(self, t1, t2):
        idx = [i for i, t in enumerate(self.q) if t in (t1, t2)]
        if not idx:
            return
        n = len(self.q) - 1 - idx[-1]
        assert n <= 63
        self.a.e("s_waitcnt vmcnt(%d)" % n)
        self.q = self.q[idx[-1] + 1:]

    def waitall(self):
        if self.q:
            self.a.e("s_waitcnt vmcnt(0)")
            self.q = []


def gemm_loop(a, vm, nst, kbs, nA, nB, nslots, slot_bytes, a_src, b_src, a_kstride_chunks,
              wave_bcols, acc0, regs, vlane16, vrdA, vrdB, sbase, sldso):
    nch = kbs * (nA + nB)
    nld = (nch + 3) // 4

    def dma(st):
        slot = st % nslots
        out = []
        for j in range(nld):
            out.append(["s_add_u32 m0, s%d, %d" % (sldso + j, slot * slot_bytes),
                        "s_add_u32 s6, s%d, %d" % (sbase + j, st * kbs * 1024),
                        "buffer_load_dwordx4 v%d, s[%d:%d], s6 offen lds" % (vlane16, SRD_WS, SRD_WS + 3)])
        return out

    def reads(st, rs):
        slot = st % nslots
        r = regs[rs]
        out = []
        for kk in range(kbs):
            for i in range(nA):
                off = slot * slot_bytes + (kk * nA + i) * 1024
                va = vrdA
                if off >= 65536:
                    off -= 32768
                    va = vrdA + 2
                out.append(["ds_read_b128 v[%d:%d], v%d offset:%d" % (r, r + 3, va, off)])
                r += 4
            for jj in range(wave_bcols):
                off = slot * slot_bytes + (kbs * nA + kk * nB + jj) * 1024
                vb = vrdB
                if off + (nB - wave_bcols) * 1024 >= 65536:
                    off -= 32768
                    vb = vrdB + 2
                out.append(["ds_read_b128 v[%d:%d], v%d offset:%d" % (r, r + 3, vb, off)])
                r += 4
        return out

    def mfmas(rs):
        per = (nA + wave_bcols) * 4
        out = []
        for kk in range(kbs):
            r = regs[rs] + kk * per
            for i in range(nA):
                for jj in range(wave_bcols):
                    acc = acc0 + (i * wave_bcols + jj) * 4
                    out.append("v_mfma_f32_16x16x32_bf16 v[%d:%d], v[%d:%d], v[%d:%d], v[%d:%d]" % (
                        acc, acc + 3, r + 4 * i, r + 4 * i + 3, r + 4 * (nA + jj), r + 4 * (nA + jj) + 3, acc, acc + 3))
        return out

    def emit(groups, tag=None):
        for g in groups:
            for s in g:
                a.e(s)
            if tag and g[-1].startswith("buffer"):
                vm.issue(tag)

    for st in range(min(nslots, nst)):
        emit(dma(st), "st%d" % st)
    vm.wait("st0")
    a.stamp()
    a.e("s_barrier")
    emit(reads(0, 0))
    for i in range(nst):
        a.e("s_waitcnt lgkmcnt(0)")
        other = []
        if i + 1 < nst:
            vm.wait("st%d" % (i + 1))
            a.e("s_barrier")
            rd = reads(i + 1, (i + 1) % 2)
            dm = dma(i + nslots) if i + nslots < nst else []
            if ILV == 0:
                emit(dm, "st%d" % (i + nslots))
                emit(rd)
            else:
                k = 0
                while rd or dm:
                    if rd:
                        other.append(rd.pop(0))
                    if rd and k % 2 == 0:
                        other.append(rd.pop(0))
                    if dm:
                        other.append(dm.pop(0))
                    k += 1
        m = mfmas(i % 2)
        no = len(other)
        nm = len(m)
        done = 0
        for k in range(nm):
            a.e(m[k])
            tgt = ((k + 1) * no + nm - 1) // nm if ILV == 1 else min(no, (k + 1) * ILV)
            while done < tgt:
                emit([other[done]], "st%d" % (i + nslots))
                done += 1
        assert done == no


def gemm_loop2(a, vm, nst, nAc, nA, nBw, nslots, kstride, acc0, aregs, bregs, nb,
               vlane16, vrdA, sbase, sldso, sB, bstride, bcolstride, after_prologue=None):
    nfull = nAc // 4
    rem = nAc - 4 * nfull
    slot_bytes = nAc * 1024

    def dma(st):
        slot = st % nslots
        out = []
        for j in range(nfull):
            out.append(["s_add_u32 m0, s%d, %d" % (sldso + j, slot * slot_bytes),
                        "s_add_u32 s6, s%d, %d" % (sbase + j, st * kstride),
                        "buffer_load_dwordx4 v%d, s[%d:%d], s6 offen lds" % (vlane16, SRD_WS, SRD_WS + 3)])
        if rem:
            j = nfull
            out.append(["s_add_u32 m0, s%d, %d" % (sldso + j, slot * slot_bytes),
                        "s_add_u32 s6, s%d, %d" % (sbase + j, st * kstride),
                        "s_mov_b64 exec, 0x%x" % ((1 << (16 * rem)) - 1),
                        "buffer_load_dwordx4 v%d, s[%d:%d], s6 offen lds" % (vlane16, SRD_WS, SRD_WS + 3),
                        "s_mov_b64 exec, -1"])
        return out

    def bload(st):
        out = []
        r = bregs + (st % nb) * 4 * nBw
        for jj in range(nBw):
            out.append(["s_add_u32 s7, s%d, %d" % (sB, st * bstride + jj * bcolstride),
                        "buffer_load_dwordx4 v[%d:%d], v%d, s[%d:%d], s7 offen" % (r + 4 * jj, r + 4 * jj + 3, vlane16, SRD_WS, SRD_WS + 3)])
        return out

    def reads(st):
        slot = st % nslots
        r = aregs + (st % 2) * 4 * nA
        out = []
        for i in range(nA):
            off = slot * slot_bytes + i * 1024
            assert off + (nAc - nA) * 1024 < 65536
            out.append(["ds_read_b128 v[%d:%d], v%d offset:%d" % (r + 4 * i, r + 4 * i + 3, vrdA, off)])
        return out

    def mfmas(st):
        ra = aregs + (st % 2) * 4 * nA
        rb = bregs + (st % nb) * 4 * nBw
        out = []
        for i in range(nA):
            for jj in range(nBw):
                acc = acc0 + (i * nBw + jj) * 4
                out.append("v_mfma_f32_16x16x32_bf16 v[%d:%d], v[%d:%d], v[%d:%d], v[%d:%d]" % (
                    acc, acc + 3, ra + 4 * i, ra + 4 * i + 3, rb + 4 * jj, rb + 4 * jj + 3, acc, acc + 3))
        return out

    def emit(groups, tag=None):
        for g in groups:
            for s in g:
                a.e(s)
            if tag:
                vm.issue(tag)

    for st in range(max(nslots, nb - 1)):
        if st < nslots and st < nst:
            emit(dma(st), "a%d" % st)
        if st < nb - 1 and st < nst:
            emit(bload(st), "b%d" % st)
    if after_prologue:
        after_prologue()
    vm.wait("a0")
    a.stamp()
    a.e("s_barrier")
    emit(reads(0))
    for i in range(nst):
        a.e("s_waitcnt lgkmcnt(0)")
        other = []
        vm.wait2("a%d" % (i + 1), "b%d" % i)
        if i + 1 < nst:
            a.e("s_barrier")
            rd = [(g, None) for g in reads(i + 1)]
            dm = [(g, "a%d" % (i + nslots)) for g in dma(i + nslots)] if i + nslots < nst else []
            bl = [(g, "b%d" % (i + nb - 1)) for g in bload(i + nb - 1)] if i + nb - 1 < nst else []
            mem = dm + bl
            EXP = os.environ.get("EXP", "")
            if "nomem" in EXP:
                mem = []
            if "nords" in EXP:
                rd = []
            if "front" in EXP:
                other = rd + mem
                rd = []
                mem = []
            k = 0
            while rd or mem:
                if rd:
                    other.append(rd.pop(0))
                if rd and len(rd) >= 2 * len(mem):
                    other.append(rd.pop(0))
                if mem:
                    other.append(mem.pop(0))
        m = mfmas(i)
        no = len(other)
        nm = len(m)
        done = 0
        for k in range(nm):
            a.e(m[k])
            tgt = ((k + 1) * no + nm - 1) // nm
            if "front" in os.environ.get("EXP", ""):
                tgt = min(no, k + 1)
            while done < tgt:
                emit([other[done][0]], other[done][1])
                done += 1
        assert done == no


def dma_setup(a, nAc, SB, SL, gaddr):
    nfull = nAc // 4
    rem = nAc - 4 * nfull
    for j in range(nfull):
        a.e("s_add_u32 s6, s3, %d" % (4 * j))
        a.e("s_lshl_b32 s%d, s6, 10" % (SL + j))
        gaddr(a, 6, SB + j)
    if rem:
        j = nfull
        a.e("s_mul_i32 s7, s3, %d" % (rem * 256))
        a.e("s_lshr_b32 s6, s7, 10")
        a.e("s_add_u32 s6, s6, %d" % (4 * nfull))
        a.e("s_and_b32 s7, s7, 1023")
        a.e("s_lshl_b32 s%d, s6, 10" % (SL + j))
        a.e("s_add_u32 s%d, s%d, s7" % (SL + j, SL + j))
        gaddr(a, 6, SB + j)
        a.e("s_add_u32 s%d, s%d, s7" % (SB + j, SB + j))


N_G1 = 256
N_CV = 640
P2_WGS = N_G1 + N_CV
G1_SLOT = 8 * 1024
G1_NSLOT = int(os.environ.get("G1_NSLOT", "5"))
P2_LDS = max(G1_SLOT * G1_NSLOT, 40960)


def gen_gemm1(a):
    a.c("---- GEMM1: mt (f tile of 7 or 6 frags), nt (l tile of 128) ----")
    vm = VM(a)
    if "g1" in SKIP:
        a.e("s_branch L_end_%s" % a.kname)
    NA = 7
    a.e("s_lshr_b32 s4, s2, 4")
    a.e("s_and_b32 s5, s2, 7")
    a.e("s_lshl_b32 s5, s5, 1")
    a.e("s_bfe_u32 s6, s2, 0x10003")
    a.e("s_add_u32 s5, s5, s6")
    a.e("s_mul_i32 s6, s4, 7")
    a.e("s_mul_i32 s7, s4, 6")
    a.e("s_add_u32 s7, s7, 12")
    a.e("s_cmp_lt_u32 s4, 12")
    a.e("s_cselect_b32 s4, s6, s7")
    a.e("s_cselect_b32 s45, 6, 5")
    SB, SL, SBB = 48, 56, 54

    def gaddr(a, sc, sdst):
        a.e("s_min_u32 s40, s%d, s45" % sc)
        a.e("s_add_u32 s40, s40, s4")
        a.e("s_mul_i32 s40, s40, 20480")
        a.e("s_add_u32 s%d, s40, %d" % (sdst, W1F))
    dma_setup(a, 8, SB, SL, gaddr)
    a.e("s_lshl_b32 s40, s5, 3")
    a.e("s_lshl_b32 s41, s3, 1")
    a.e("s_add_u32 s40, s40, s41")
    a.e("s_mul_i32 s40, s40, 20480")
    a.e("s_add_u32 s%d, s40, %d" % (SBB, XNF))
    a.e("v_lshlrev_b32 v1, 4, v0")
    ACC = 8
    AREG = 64
    BREG = 120
    NB = 4
    BIAS = 152

    def after():
        a.e("s_lshl_b32 s6, s4, 5")
        a.e("v_lshrrev_b32 v6, 4, v0")
        a.e("v_lshlrev_b32 v6, 3, v6")
        a.e("v_add_u32 v6, s6, v6")
        a.e("s_lshl_b32 s6, s45, 5")
        a.e("v_add_u32 v7, s6, v6")
        for i in range(NA):
            if i < NA - 1:
                a.e("global_load_dwordx2 v[%d:%d], v6, s[%d:%d] offset:%d" % (BIAS + 2 * i, BIAS + 2 * i + 1, P_B1, P_B1 + 1, 32 * i))
            else:
                a.e("global_load_dwordx2 v[%d:%d], v7, s[%d:%d]" % (BIAS + 2 * i, BIAS + 2 * i + 1, P_B1, P_B1 + 1))
            vm.issue("bias")
        for i in range(8 * NA):
            a.e("v_mov_b32 v%d, 0" % (ACC + i))
    gemm_loop2(a, vm, 20, 8, NA, 2, G1_NSLOT, 1024, ACC, AREG, BREG, NB, 1, 1, SB, SL, SBB, 1024, 20480, after)
    vm.waitall()
    a.stamp()
    a.e("v_lshrrev_b32 v6, 5, v0")
    a.e("v_lshlrev_b32 v6, 8, v6")
    a.e("v_and_b32 v7, 15, v0")
    a.e("v_lshl_add_u32 v6, v7, 4, v6")
    a.e("v_bfe_u32 v7, v0, 4, 1")
    a.e("v_lshl_add_u32 v6, v7, 3, v6")
    a.e("s_lshl_b32 s6, s5, 3")
    a.e("s_lshl_b32 s7, s3, 1")
    a.e("s_add_u32 s6, s6, s7")
    a.e("s_mul_i32 s6, s6, 55296")
    a.e("s_lshl_b32 s7, s4, 9")
    a.e("s_add_u32 s6, s6, s7")
    a.e("s_add_u32 s6, s6, %d" % ACTF)
    a.e("s_add_u32 s7, s6, 55296")
    a.e("s_lshl_b32 s41, s45, 9")
    a.e("s_add_u32 s40, s6, s41")
    a.e("s_add_u32 s41, s7, s41")
    a.e("s_mov_b32 s42, 0x%x" % LOG2E)
    a.e("s_mov_b32 s43, 0x%x" % LOG2E)
    a.e("s_mov_b32 s44, 0x41a00000")
    a.e("s_mov_b32 s46, 2.0")
    a.e("s_mov_b32 s47, 2.0")
    a.e("s_nop 4")
    T = 64

    def pk(op, d, x, y):
        return "v_pk_%s_f32 v[%d:%d], %s, %s" % (op, d, d + 1, x, y)

    def V(r):
        return "v[%d:%d]" % (r, r + 1)
    for i in range(NA):
        b = BIAS + 2 * i
        a.e("v_lshlrev_b32 v%d, 16, v%d" % (T, b))
        a.e("v_and_b32 v%d, 0xffff0000, v%d" % (T + 1, b))
        a.e("v_lshlrev_b32 v%d, 16, v%d" % (T + 2, b + 1))
        a.e("v_and_b32 v%d, 0xffff0000, v%d" % (T + 3, b + 1))
        h = [T + 4 + 16 * jj for jj in range(2)]
        for jj in range(2):
            acc = ACC + (i * 2 + jj) * 4
            for r in (0, 2):
                a.e(pk("add", h[jj] + r, V(acc + r), V(T + r)))
        for jj in range(2):
            for r in range(4):
                a.e("v_min_f32 v%d, s44, v%d" % (h[jj] + 4 + r, h[jj] + r))
        for jj in range(2):
            for r in (0, 2):
                a.e(pk("mul", h[jj] + 4 + r, V(h[jj] + 4 + r), "s[42:43]"))
        for jj in range(2):
            for r in range(4):
                a.e("v_exp_f32 v%d, v%d" % (h[jj] + 4 + r, h[jj] + 4 + r))
        for jj in range(2):
            for r in (0, 2):
                a.e(pk("add", h[jj] + 8 + r, V(h[jj] + 4 + r), "s[46:47]"))
        for jj in range(2):
            for r in (0, 2):
                a.e(pk("mul", h[jj] + 8 + r, V(h[jj] + 8 + r), V(h[jj] + 4 + r)))
        for jj in range(2):
            for r in (0, 2):
                a.e(pk("add", h[jj] + 12 + r, V(h[jj] + 8 + r), "s[46:47]"))
        for jj in range(2):
            for r in range(4):
                a.e("v_rcp_f32 v%d, v%d" % (h[jj] + 12 + r, h[jj] + 12 + r))
        for jj in range(2):
            for r in (0, 2):
                a.e(pk("mul", h[jj] + 8 + r, V(h[jj] + 8 + r), V(h[jj] + r)))
        for jj in range(2):
            for r in (0, 2):
                a.e(pk("mul", h[jj] + 8 + r, V(h[jj] + 8 + r), V(h[jj] + 12 + r)))
        for jj in range(2):
            nu = h[jj] + 8
            o = 100 + 2 * ((i * 2 + jj) % 8)
            a.e("v_cvt_pk_bf16_f32 v%d, v%d, v%d" % (o, nu, nu + 1))
            a.e("v_cvt_pk_bf16_f32 v%d, v%d, v%d" % (o + 1, nu + 2, nu + 3))
            if i < NA - 1:
                so, off = (6 + jj), 512 * i
            else:
                so, off = (40 + jj), 0
            a.e("buffer_store_dwordx2 v[%d:%d], v6, s[%d:%d], s%d offen offset:%d" % (o, o + 1, SRD_WS, SRD_WS + 3, so, off))
    a.stamp_out()
    a.e("s_branch L_end_%s" % a.kname)


CV_KSTR = 4384
CV_UB = 8 * CV_KSTR


def gen_conv(a):
    a.c("---- conv: channel s2 - 192 ----")
    if "cv" in SKIP:
        a.e("s_branch L_end_%s" % a.kname)
    a.e("s_sub_u32 s4, s2, %d" % N_G1)
    a.e("v_lshlrev_b32 v1, 4, v0")
    a.e("s_mul_i32 s5, s4, %d" % KR_STR)
    a.e("s_mul_i32 s7, s4, %d" % XNT_STR)
    a.e("s_add_u32 s7, s7, %d" % XNT)
    a.e("s_lshl_b32 s40, s3, 2")
    a.e("s_sub_u32 s40, 16, s40")
    a.e("s_add_u32 s40, s40, s5")
    a.e("s_add_u32 s41, s40, %d" % KR1)
    a.e("s_add_u32 s40, s40, %d" % KR0)
    a.e("s_mul_i32 s42, s3, %d" % (2 * CV_KSTR))
    a.e("s_add_u32 s43, s42, %d" % CV_KSTR)
    for (sg, sl) in ((40, 42), (41, 43)):
        for p in range(4):
            a.e("s_add_u32 m0, s%d, %d" % (sl, 1024 * p))
            a.e("s_add_u32 s6, s%d, %d" % (sg, 1024 * p))
            a.e("buffer_load_dwordx4 v1, s[%d:%d], s6 offen lds" % (SRD_WS, SRD_WS + 3))
    a.e("s_lshl_b32 s44, s3, 10")
    a.e("s_add_u32 m0, s44, %d" % CV_UB)
    a.e("s_add_u32 s6, s7, s44")
    a.e("buffer_load_dwordx4 v1, s[%d:%d], s6 offen lds" % (SRD_WS, SRD_WS + 3))
    a.e("s_mov_b64 exec, 0xffff")
    for (sg, sl) in ((40, 42), (41, 43)):
        a.e("s_add_u32 m0, s%d, 4096" % sl)
        a.e("s_add_u32 s6, s%d, 4096" % sg)
        a.e("buffer_load_dwordx4 v1, s[%d:%d], s6 offen lds" % (SRD_WS, SRD_WS + 3))
    a.e("s_mov_b32 m0, %d" % (CV_UB + 4096))
    a.e("s_add_u32 s6, s7, 4096")
    a.e("buffer_load_dwordx4 v1, s[%d:%d], s6 offen lds" % (SRD_WS, SRD_WS + 3))
    a.e("s_mov_b64 exec, -1")
    a.e("v_and_b32 v2, 7, v0")
    a.e("v_mul_u32_u24 v2, %d, v2" % CV_KSTR)
    a.e("v_bfe_u32 v3, v0, 3, 1")
    a.e("v_lshlrev_b32 v3, 8, v3")
    a.e("v_sub_u32 v2, v2, v3")
    a.e("v_lshrrev_b32 v3, 4, v0")
    a.e("v_lshl_add_u32 v2, v3, 4, v2")
    a.e("v_add_u32 v2, 640, v2")
    a.e("s_lshl_b32 s6, s3, 7")
    a.e("v_subrev_u32 v2, s6, v2")
    a.e("v_and_b32 v4, 15, v0")
    a.e("v_add_u32 v4, v4, v3")
    a.e("v_lshlrev_b32 v4, 4, v4")
    a.e("v_add_u32 v4, %d, v4" % CV_UB)
    a.e("v_subrev_u32 v4, s6, v4")
    ACC = 8
    RA, RB = 40, 72
    for i in range(32):
        a.e("v_mov_b32 v%d, 0" % (ACC + i))
    a.e("s_waitcnt vmcnt(0)")
    a.e("s_barrier")
    for rr in range(2):
        for x in range(8):
            a.e("ds_read_b128 v[%d:%d], v2 offset:%d" % (RA + 4 * x, RA + 4 * x + 3, (63 - 8 * x - rr) * 64 - 384))
            a.e("ds_read_b128 v[%d:%d], v4 offset:%d" % (RB + 4 * x, RB + 4 * x + 3, 64 * (8 * x - rr + 7)))
        a.e("s_waitcnt lgkmcnt(0)")
        for g in range(8):
            for aa in range(g + 1):
                bb = g - aa
                a.e("v_mfma_f32_16x16x32_bf16 v[%d:%d], v[%d:%d], v[%d:%d], v[%d:%d]" % (
                    ACC + 4 * g, ACC + 4 * g + 3, RA + 4 * aa, RA + 4 * aa + 3, RB + 4 * bb, RB + 4 * bb + 3,
                    ACC + 4 * g, ACC + 4 * g + 3))
    a.e("s_nop 7")
    a.e("s_barrier")
    a.e("s_lshl_b32 s6, s3, 13")
    a.e("v_add_u32 v5, s6, v1")
    for g in range(8):
        a.e("ds_write_b128 v5, v[%d:%d] offset:%d" % (ACC + 4 * g, ACC + 4 * g + 3, 1024 * g))
    a.e("s_waitcnt lgkmcnt(0)")
    a.e("s_barrier")
    a.e("s_lshl_b32 s6, s3, 11")
    a.e("v_add_u32 v5, s6, v1")
    for gg in range(2):
        for w in range(4):
            a.e("ds_read_b128 v[%d:%d], v5 offset:%d" % (RA + 16 * gg + 4 * w, RA + 16 * gg + 4 * w + 3, 8192 * w + 1024 * gg))
    a.e("v_lshrrev_b32 v6, 5, v0")
    a.e("v_lshlrev_b32 v6, 8, v6")
    a.e("v_and_b32 v7, 15, v0")
    a.e("v_lshl_add_u32 v6, v7, 4, v6")
    a.e("v_bfe_u32 v7, v0, 4, 1")
    a.e("v_lshl_add_u32 v6, v7, 3, v6")
    a.e("s_lshl_b32 s6, s4, 12")
    a.e("s_lshl_b32 s7, s3, 10")
    a.e("s_add_u32 s6, s6, s7")
    a.e("s_add_u32 s6, s6, %d" % YT)
    a.e("s_waitcnt lgkmcnt(0)")
    for gg in range(2):
        b = RA + 16 * gg
        for r in range(4):
            a.e("v_add_f32 v%d, v%d, v%d" % (b + r, b + r, b + 4 + r))
            a.e("v_add_f32 v%d, v%d, v%d" % (b + 8 + r, b + 8 + r, b + 12 + r))
        for r in range(4):
            a.e("v_add_f32 v%d, v%d, v%d" % (b + r, b + r, b + 8 + r))
        a.e("v_cvt_pk_bf16_f32 v%d, v%d, v%d" % (b + 4, b, b + 1))
        a.e("v_cvt_pk_bf16_f32 v%d, v%d, v%d" % (b + 5, b + 2, b + 3))
        a.e("buffer_store_dwordx2 v[%d:%d], v6, s[%d:%d], s6 offen offset:%d" % (b + 4, b + 5, SRD_WS, SRD_WS + 3, 512 * gg))
    a.stamp_out()
    a.e("s_branch L_end_%s" % a.kname)


def gen_phase2(a):
    a.kname = "p2"
    a.label("mid_kernel")
    prologue(a, P2_WGS)
    a.e("s_cmp_lt_u32 s2, %d" % N_G1)
    a.e("s_cbranch_scc1 L_p2_g1")
    gen_conv(a)
    a.label("L_p2_g1")
    gen_gemm1(a)
    a.label("L_end_p2")
    a.e("s_endpgm")


P3_WGS = 256
G2_NSLOT = int(os.environ.get("G2_NSLOT", "5"))
G2_NB = int(os.environ.get("G2_NB", "5"))
P3_LDS = 10240 * G2_NSLOT


def gen_phase3(a):
    a.kname = "p3"
    a.label("fin_kernel")
    prologue(a, P3_WGS)
    vm = VM(a)
    a.e("s_lshr_b32 s4, s2, 5")
    a.e("s_and_b32 s5, s2, 7")
    a.e("s_lshl_b32 s5, s5, 2")
    a.e("s_bfe_u32 s6, s2, 0x20003")
    a.e("s_add_u32 s5, s5, s6")
    SB, SL, SBB, SKH, SWP = 48, 56, 54, 46, 47
    a.e("s_lshr_b32 s%d, s3, 1" % SKH)
    a.e("s_and_b32 s40, s3, 1")
    a.e("s_lshl_b32 s%d, s40, 1" % SWP)
    a.e("s_add_u32 s%d, s%d, s%d" % (SWP, SWP, SKH))
    a.e("s_lshl_b32 s41, s5, 2")
    a.e("s_lshl_b32 s40, s40, 1")
    a.e("s_add_u32 s41, s41, s40")
    a.e("s_mul_i32 s41, s41, 54")
    a.e("s_add_u32 s41, s41, s%d" % SKH)
    a.e("s_lshl_b32 s41, s41, 10")
    a.e("s_add_u32 s%d, s41, %d" % (SBB, ACTF))

    def gaddr(a, sc, sdst):
        a.e("s_cmp_ge_u32 s%d, 5" % sc)
        a.e("s_cselect_b32 s40, 1, 0")
        a.e("s_mul_i32 s41, s40, 5")
        a.e("s_sub_u32 s41, s%d, s41" % sc)
        a.e("s_mul_i32 s42, s4, 5")
        a.e("s_add_u32 s42, s42, s41")
        a.e("s_mul_i32 s42, s42, 54")
        a.e("s_add_u32 s42, s42, s40")
        a.e("s_lshl_b32 s42, s42, 10")
        a.e("s_add_u32 s%d, s42, %d" % (sdst, W2F))
    dma_setup(a, 10, SB, SL, gaddr)
    a.e("v_lshlrev_b32 v1, 4, v0")
    a.e("s_mul_i32 s6, s%d, 5120" % SKH)
    a.e("v_add_u32 v2, s6, v1")
    ACC = 12
    AREG = 52
    BREG = 92
    EX, EXN, EDS, EY = 132, 142, 152, 164
    assert BREG + 8 * G2_NB <= EX
    def epi_loads():
        a.e("s_lshl_b32 s6, s5, 6")
        a.e("s_lshl_b32 s7, s%d, 4" % SWP)
        a.e("s_add_u32 s6, s6, s7")
        a.e("v_and_b32 v6, 15, v0")
        a.e("v_add_u32 v6, s6, v6")
        a.e("v_lshrrev_b32 v7, 4, v0")
        a.e("s_mul_i32 s7, s4, 160")
        a.e("v_mul_u32_u24 v8, 1280, v6")
        a.e("v_lshl_add_u32 v8, v7, 3, v8")
        a.e("v_add_u32 v8, s7, v8")
        a.e("v_lshlrev_b32 v9, 3, v7")
        a.e("v_add_u32 v9, s7, v9")
        a.e("v_lshrrev_b32 v10, 5, v0")
        a.e("v_lshlrev_b32 v10, 8, v10")
        a.e("v_and_b32 v11, 15, v0")
        a.e("v_lshl_add_u32 v10, v11, 4, v10")
        a.e("v_bfe_u32 v11, v0, 4, 1")
        a.e("v_lshl_add_u32 v10, v11, 3, v10")
        a.e("s_lshr_b32 s40, s6, 4")
        a.e("s_mul_i32 s40, s40, 20480")
        a.e("s_mul_i32 s41, s4, 2560")
        a.e("s_add_u32 s40, s40, s41")
        a.e("s_add_u32 s40, s40, %d" % XNF)
        a.e("v_lshlrev_b32 v11, 14, v7")
        a.e("v_lshl_add_u32 v11, v6, 1, v11")
        a.e("s_mul_i32 s41, s4, %d" % (80 * 4096))
        a.e("s_add_u32 s41, s41, %d" % YT)
        for i in range(40):
            a.e("v_mov_b32 v%d, 0" % (ACC + i))

        for i in range(5):
            a.e("global_load_dwordx2 v[%d:%d], v8, s[%d:%d] offset:%d" % (EX + 2 * i, EX + 2 * i + 1, P_U, P_U + 1, 32 * i))
            vm.issue("epi")
            a.e("global_load_dwordx2 v[%d:%d], v9, s[%d:%d] offset:%d" % (EDS + 2 * i, EDS + 2 * i + 1, P_DSK, P_DSK + 1, 32 * i))
            vm.issue("epi")
            a.e("buffer_load_dwordx2 v[%d:%d], v10, s[%d:%d], s40 offen offset:%d" % (EXN + 2 * i, EXN + 2 * i + 1, SRD_WS, SRD_WS + 3, 512 * i))
            vm.issue("epi")
            for r in range(4):
                a.e("s_add_u32 s42, s41, %d" % ((16 * i + r) * 4096))
                a.e("buffer_load_ushort v%d, v11, s[%d:%d], s42 offen" % (EY + 4 * i + r, SRD_WS, SRD_WS + 3))
                vm.issue("epi")
    gemm_loop2(a, vm, 27, 10, 5, 2, G2_NSLOT, 2048, ACC, AREG, BREG, G2_NB, 1, 2, SB, SL, SBB, 2048, 54 * 1024, epi_loads)
    vm.waitall()
    a.stamp()
    a.e("s_nop 7")
    a.e("s_barrier")
    a.e("s_mul_i32 s6, s3, 5120")
    a.e("v_add_u32 v3, s6, v1")
    a.e("s_xor_b32 s7, s3, 2")
    a.e("s_mul_i32 s7, s7, 5120")
    a.e("v_add_u32 v4, s7, v1")
    lab1 = a.newlabel("L_x")
    lab2 = a.newlabel("L_x")
    a.e("s_cmp_eq_u32 s%d, 0" % SKH)
    a.e("s_cbranch_scc1 %s" % lab1)
    for i in range(5):
        a.e("ds_write_b128 v3, v[%d:%d] offset:%d" % (ACC + 8 * i, ACC + 8 * i + 3, 1024 * i))
    a.e("s_nop 3")
    for i in range(5):
        for r in range(4):
            a.e("v_mov_b32 v%d, v%d" % (ACC + 8 * i + r, ACC + 8 * i + 4 + r))
    a.e("s_branch %s" % lab2)
    a.label(lab1)
    for i in range(5):
        a.e("ds_write_b128 v3, v[%d:%d] offset:%d" % (ACC + 8 * i + 4, ACC + 8 * i + 7, 1024 * i))
    a.label(lab2)
    a.e("s_waitcnt lgkmcnt(0)")
    a.e("s_barrier")
    for i in range(5):
        a.e("ds_read_b128 v[%d:%d], v4 offset:%d" % (ACC + 8 * i + 4, ACC + 8 * i + 7, 1024 * i))
    T = 52
    for i in range(5):
        acc = ACC + 8 * i
        x, xn, ds, y = T, T + 4, T + 8, EY + 4 * i
        for (dst, src) in ((x, EX + 2 * i), (xn, EXN + 2 * i), (ds, EDS + 2 * i)):
            a.e("v_lshlrev_b32 v%d, 16, v%d" % (dst, src))
            a.e("v_and_b32 v%d, 0xffff0000, v%d" % (dst + 1, src))
            a.e("v_lshlrev_b32 v%d, 16, v%d" % (dst + 2, src + 1))
            a.e("v_and_b32 v%d, 0xffff0000, v%d" % (dst + 3, src + 1))
        for r in range(4):
            a.e("v_lshlrev_b32 v%d, 16, v%d" % (y + r, y + r))
            a.e("v_mul_f32 v%d, v%d, v%d" % (xn + r, xn + r, ds + r))

        def rnd4(b):
            a.e("v_cvt_pk_bf16_f32 v%d, v%d, v%d" % (T + 12, b, b + 1))
            a.e("v_cvt_pk_bf16_f32 v%d, v%d, v%d" % (T + 13, b + 2, b + 3))
            a.e("v_lshlrev_b32 v%d, 16, v%d" % (b, T + 12))
            a.e("v_and_b32 v%d, 0xffff0000, v%d" % (b + 1, T + 12))
            a.e("v_lshlrev_b32 v%d, 16, v%d" % (b + 2, T + 13))
            a.e("v_and_b32 v%d, 0xffff0000, v%d" % (b + 3, T + 13))
        rnd4(xn)
        for r in range(4):
            a.e("v_add_f32 v%d, v%d, v%d" % (xn + r, xn + r, y + r))
        rnd4(xn)
        for r in range(4):
            a.e("v_add_f32 v%d, v%d, v%d" % (xn + r, xn + r, x + r))
        rnd4(xn)
        a.e("s_waitcnt lgkmcnt(%d)" % (4 - i))
        for r in range(4):
            a.e("v_add_f32 v%d, v%d, v%d" % (acc + r, acc + r, acc + 4 + r))
        rnd4(acc)
        for r in range(4):
            a.e("v_add_f32 v%d, v%d, v%d" % (xn + r, xn + r, acc + r))
        o = 80 + 2 * i
        a.e("v_cvt_pk_bf16_f32 v%d, v%d, v%d" % (o, xn, xn + 1))
        a.e("v_cvt_pk_bf16_f32 v%d, v%d, v%d" % (o + 1, xn + 2, xn + 3))
        a.e("global_store_dwordx2 v8, v[%d:%d], s[%d:%d] offset:%d" % (o, o + 1, P_OUT, P_OUT + 1, 32 * i))
    a.stamp_out()
    a.label("L_end_p3")
    a.e("s_endpgm")


def kd(name, vgpr):
    nv = (vgpr + 7) // 8 * 8
    return """.amdhsa_kernel %s
  .amdhsa_next_free_vgpr %d
  .amdhsa_next_free_sgpr 96
  .amdhsa_accum_offset %d
  .amdhsa_group_segment_fixed_size 0
  .amdhsa_kernarg_size 112
  .amdhsa_user_sgpr_count 2
  .amdhsa_user_sgpr_kernarg_segment_ptr 1
  .amdhsa_system_sgpr_workgroup_id_x 1
.end_amdhsa_kernel
""" % (name, nv, nv)


def main():
    hdr = open("cdna_kernels/%s.s.ref" % NAME).read().splitlines()
    hdr = [l for l in hdr if l.startswith(";") and "@launch" not in l]
    out = hdr[:]
    out.append("; @launch kernel=prep_kernel grid=(%d,1,1) block=(256,1,1) lds=%d" % (P1_WGS, KG_LDS))
    out.append("; @launch kernel=mid_kernel grid=(%d,1,1) block=(256,1,1) lds=%d" % (P2_WGS, P2_LDS))
    out.append("; @launch kernel=fin_kernel grid=(%d,1,1) block=(256,1,1) lds=%d" % (P3_WGS, P3_LDS))
    out.append('.amdgcn_target "amdgcn-amd-amdhsa--gfx950"')
    out.append(".text")
    a = Asm()
    for (g, n) in ((gen_phase1, "prep_kernel"), (gen_phase2, "mid_kernel"), (gen_phase3, "fin_kernel")):
        a.lines.append(".globl %s" % n)
        a.lines.append(".p2align 8")
        a.lines.append(".type %s,@function" % n)
        g(a)
    out += a.lines
    out.append('.section .rodata,"a"')
    out.append(".p2align 6")
    out.append(kd("prep_kernel", 128))
    out.append(".p2align 6")
    out.append(kd("mid_kernel", 168))
    out.append(".p2align 6")
    out.append(kd("fin_kernel", 184))
    dst = os.environ.get("OUT", "cdna_kernels/%s.s" % NAME)
    open(dst, "w").write("\n".join(out) + "\n")


if __name__ == "__main__":
    main()
```

```python
import sys, os
SKIP = os.environ.get("SKIP", "").split(",")

NAME = "parallel_sum__ssm_conv_s4d__dense_activation_mish__prompt"

L, D, NS, F = 2048, 640, 128, 1728

XNF = 0
XNT = XNF + 128 * 20 * 1024
XNT_STR = 4352
W1F = XNT + 640 * XNT_STR
W2F = W1F + 108 * 20 * 1024
KR0 = W2F + 40 * 54 * 1024
KR_STR = 4384
KR1 = KR0 + 640 * KR_STR
ACTF = KR1 + 640 * KR_STR
YT = ACTF + 128 * 54 * 1024
WS_END = YT + 640 * 4096

LOG2E = 0x3fb8aa3b
INV2PI = 0x3e22f983


STAMP = os.environ.get("STAMP", "")
ILV = int(os.environ.get("ILV", "1"))
STOREFLAG = os.environ.get("STOREFLAG", "sc0 sc1")
STOREK = os.environ.get("STOREK", "p1,p2,p3").split(",")
TRACE = os.environ.get("TRACE", "")


class Asm:
    def __init__(self):
        self.lines = []
        self.lab = 0
        self.nst = 0

    def stamp(self):
        if not STAMP or STAMP.split(":")[0] != self.kname:
            return
        i = self.nst
        self.nst += 1
        assert i < 12
        self.e("s_memtime s[%d:%d]" % (64 + 2 * i, 65 + 2 * i))

    def stamp_out(self):
        if TRACE:
            lab = self.newlabel("L_tr")
            self.e("s_waitcnt vmcnt(0) lgkmcnt(0)")
            self.e("s_memrealtime s[90:91]")
            self.e("s_cmp_lg_u32 s3, 0")
            self.e("s_cbranch_scc1 %s" % lab)
            self.e("s_lshl_b32 s92, s2, 3")
            self.e("s_add_u32 s92, s92, %d" % (64 * 1024 * 1024 + 65536 * int(self.kname[1])))
            self.e("v_mov_b32 v1, s92")
            self.e("s_waitcnt lgkmcnt(0)")
            self.e("v_mov_b32 v2, s88")
            self.e("v_mov_b32 v3, s90")
            self.e("global_store_dwordx2 v1, v[2:3], s[%d:%d]" % (P_WS, P_WS + 1))
            self.label(lab)
            return
        if not STAMP or STAMP.split(":")[0] != self.kname:
            return
        wg = int(STAMP.split(":")[1])
        self.e("s_memrealtime s[90:91]")
        self.stamp()
        self.e("s_waitcnt lgkmcnt(0)")
        lab = self.newlabel("L_st")
        self.e("s_cmp_lg_u32 s2, %d" % wg)
        self.e("s_cbranch_scc1 %s" % lab)
        self.e("s_cmp_lg_u32 s3, 0")
        self.e("s_cbranch_scc1 %s" % lab)
        self.e("v_mov_b32 v1, 0")
        for i in range(self.nst):
            self.e("s_sub_u32 s92, s%d, s64" % (64 + 2 * i))
            self.e("v_mov_b32 v2, s92")
            self.e("global_store_dword v1, v2, s[%d:%d] offset:%d" % (P_DBG, P_DBG + 1, 4 * i))
        self.e("s_sub_u32 s92, s90, s88")
        self.e("v_mov_b32 v2, s92")
        self.e("global_store_dword v1, v2, s[%d:%d] offset:%d" % (P_DBG, P_DBG + 1, 60))
        self.label(lab)
        self.nst = 1

    def e(self, s):
        if (s.startswith("buffer_store") or s.startswith("global_store")) and self.kname in STOREK:
            s = s + " " + STOREFLAG
        self.lines.append("    " + s)

    def c(self, s):
        self.lines.append("    ; " + s)

    def label(self, name):
        self.lines.append(name + ":")

    def newlabel(self, p="L"):
        self.lab += 1
        return "%s_%d" % (p, self.lab)


def vr(a, n=1):
    return "v%d" % a if n == 1 else "v[%d:%d]" % (a, a + n - 1)


def sr(a, n=1):
    return "s%d" % a if n == 1 else "s[%d:%d]" % (a, a + n - 1)


P_U, P_LOGA, P_AIM, P_CRE, P_CIM, P_LDT, P_DSK, P_BX, P_W1, P_B1, P_W2, P_OUT, P_DBG, P_WS = [8 + 2 * i for i in range(14)]
SRD_WS = 36


def prologue(a, nwg):
    if TRACE:
        a.e("s_memrealtime s[88:89]")
    if STAMP and STAMP.split(":")[0] == a.kname:
        a.e("s_memrealtime s[88:89]")
        a.e("s_memtime s[64:65]")
        a.nst = 1
    a.e("s_cmp_ge_u32 s2, %d" % nwg)
    a.e("s_cbranch_scc1 L_end_%s" % a.kname)
    a.e("s_load_dwordx16 s[8:23], s[0:1], 0")
    a.e("s_load_dwordx8 s[24:31], s[0:1], 64")
    a.e("s_load_dwordx4 s[32:35], s[0:1], 96")
    a.e("v_lshrrev_b32 v1, 6, v0")
    a.e("v_and_b32 v0, 63, v0")
    a.e("s_nop 0")
    a.e("v_readfirstlane_b32 s3, v1")
    a.e("s_waitcnt lgkmcnt(0)")
    a.stamp()
    a.e("s_mov_b32 s%d, s%d" % (SRD_WS, P_WS))
    a.e("s_and_b32 s%d, s%d, 0xffff" % (SRD_WS + 1, P_WS + 1))
    a.e("s_mov_b32 s%d, %d" % (SRD_WS + 2, WS_END))
    a.e("s_mov_b32 s%d, 0x00020000" % (SRD_WS + 3))


def make_srd(a, dst, ptr, nbytes):
    a.e("s_mov_b32 s%d, s%d" % (dst, ptr))
    a.e("s_and_b32 s%d, s%d, 0xffff" % (dst + 1, ptr + 1))
    a.e("s_mov_b32 s%d, %d" % (dst + 2, nbytes))
    a.e("s_mov_b32 s%d, 0x00020000" % (dst + 3))


def bf16r(a, dst, src):
    a.e("v_cvt_pk_bf16_f32 %s, %s, %s" % (vr(dst), vr(src), vr(src)))
    a.e("v_lshlrev_b32 %s, 16, %s" % (vr(dst), vr(dst)))


N_KG = 640
N_LN = 128
N_W1 = 108
N_W2 = 120
P1_WGS = N_KG + N_LN + N_W1 + N_W2
if os.environ.get("KGFIRST", "0") == "1":
    KG_BASE = 0
    LN_BASE = N_KG
    W1_BASE = N_KG + N_LN
    W2_BASE = N_KG + N_LN + N_W1
else:
    LN_BASE = 0
    W1_BASE = N_LN
    W2_BASE = N_LN + N_W1
    KG_BASE = N_LN + N_W1 + N_W2


KG_BLK = 16 * 272
KG_WAVE = 2 * KG_BLK
KG_KD = 4 * KG_WAVE
KG_LDS = KG_KD + 2624


def f32bits(x):
    import struct
    return "0x%x" % struct.unpack("<I", struct.pack("<f", float(x)))[0]


def gen_kgen(a):
    a.c("---- K generation ----")
    if "kg" in SKIP:
        a.e("s_branch L_end_%s" % a.kname)
    a.e("s_sub_u32 s4, s2, %d" % KG_BASE)
    a.e("s_lshl_b32 s5, s4, 8")
    a.e("s_lshl_b32 s6, s3, 6")
    a.e("s_add_u32 s5, s5, s6")
    a.e("v_and_b32 v1, 31, v0")
    a.e("v_lshlrev_b32 v2, 1, v1")
    a.e("v_add_u32 v2, s5, v2")
    a.e("s_lshl_b32 s5, s4, 1")
    a.e("v_mov_b32 v3, s5")
    LA, AIM, CRE, CIM, DT = 10, 11, 12, 13, 14
    a.e("global_load_ushort v%d, v2, s[%d:%d]" % (LA, P_LOGA, P_LOGA + 1))
    a.e("global_load_ushort v%d, v2, s[%d:%d]" % (AIM, P_AIM, P_AIM + 1))
    a.e("global_load_ushort v%d, v2, s[%d:%d]" % (CRE, P_CRE, P_CRE + 1))
    a.e("global_load_ushort v%d, v2, s[%d:%d]" % (CIM, P_CIM, P_CIM + 1))
    a.e("global_load_ushort v%d, v3, s[%d:%d]" % (DT, P_LDT, P_LDT + 1))
    lab = a.newlabel("L_kgz")
    a.e("s_cmp_lg_u32 s3, 0")
    a.e("s_cbranch_scc1 %s" % lab)
    a.e("s_mul_i32 s6, s4, %d" % XNT_STR)
    a.e("s_add_u32 s6, s6, %d" % XNT)
    a.e("v_mov_b32 v3, 0")
    a.e("v_lshlrev_b32 v4, 2, v0")
    a.e("v_cmp_gt_u32 vcc, 60, v0")
    a.e("s_and_saveexec_b64 s[40:41], vcc")
    a.e("buffer_store_dword v3, v4, s[%d:%d], s6 offen" % (SRD_WS, SRD_WS + 3))
    a.e("s_mov_b64 exec, s[40:41]")
    a.label(lab)
    a.e("s_mul_i32 s42, s3, %d" % KG_WAVE)
    a.e("v_lshrrev_b32 v4, 5, v0")
    a.e("v_cvt_f32_u32 v9, v4")
    a.e("v_mul_u32_u24 v4, %d, v4" % KG_BLK)
    a.e("v_lshl_add_u32 v4, v1, 3, v4")
    a.e("v_add_u32 v4, s42, v4")
    a.e("v_and_b32 v5, 15, v0")
    a.e("v_mul_u32_u24 v5, 272, v5")
    a.e("v_lshrrev_b32 v6, 4, v0")
    a.e("v_lshl_add_u32 v5, v6, 6, v5")
    a.e("v_add_u32 v5, s42, v5")
    a.e("v_lshlrev_b32 v6, 4, v0")
    a.e("v_add_u32 v6, s42, v6")
    a.e("s_mov_b32 s43, 0x%x" % LOG2E)
    a.e("s_mov_b32 s44, 0x%x" % INV2PI)
    a.e("s_mov_b32 vcc_lo, 0")
    a.e("s_mov_b32 vcc_hi, -1")
    ACC = 100
    for i in range(16):
        a.e("v_mov_b32 v%d, 0" % (ACC + i))
    a.e("s_waitcnt vmcnt(0)")
    a.stamp()
    a.e("v_lshlrev_b32 v%d, 16, v%d" % (DT, DT))
    a.e("v_lshlrev_b32 v%d, 16, v%d" % (LA, LA))
    a.e("v_mul_f32 v%d, s43, v%d" % (DT, DT))
    a.e("v_mul_f32 v%d, s43, v%d" % (LA, LA))
    a.e("v_exp_f32 v%d, v%d" % (DT, DT))
    a.e("v_exp_f32 v%d, v%d" % (LA, LA))
    a.e("v_lshlrev_b32 v%d, 16, v%d" % (AIM, AIM))
    a.e("v_lshlrev_b32 v%d, 16, v%d" % (CRE, CRE))
    a.e("v_lshlrev_b32 v%d, 16, v%d" % (CIM, CIM))
    bf16r(a, DT, DT)
    bf16r(a, LA, LA)
    a.e("v_mul_f32 v%d, v%d, v%d" % (LA, LA, DT))
    a.e("v_mul_f32 v%d, v%d, v%d" % (AIM, AIM, DT))
    a.e("v_mul_f32 v%d, v%d, v%d" % (CRE, CRE, DT))
    a.e("v_mul_f32 v%d, v%d, v%d" % (CIM, CIM, DT))
    a.e("v_mul_f32 v%d, s43, v%d" % (LA, LA))
    a.e("v_mul_f32 v%d, s44, v%d" % (AIM, AIM))
    a.e("v_add_f32 v%d, v%d, v%d" % (CRE, CRE, CRE))
    a.e("v_add_f32 v%d, v%d, v%d" % (CIM, CIM, CIM))
    NAIM = 15
    a.e("v_sub_f32 v%d, 0, v%d" % (NAIM, AIM))
    a.e("v_cndmask_b32 v%d, v%d, v%d, vcc" % (NAIM, NAIM, AIM))
    CM = 16
    a.e("v_cndmask_b32 v%d, 1.0, v%d, vcc" % (CM, CRE))
    a.e("v_cndmask_b32 v%d, 0, v%d, vcc" % (CM + 1, CIM))

    def cexps(lst, tbase):
        for i, (dst, p0, p1, ar) in enumerate(lst):
            t = tbase + 3 * i
            if p0 == p1:
                a.e("v_mov_b32 v%d, %s" % (t, f32bits(p0)))
            else:
                a.e("v_mul_f32 v%d, %s, v9" % (t, f32bits(p1 - p0)))
                a.e("v_add_f32 v%d, %s, v%d" % (t, f32bits(p0), t))
        for i, (dst, p0, p1, ar) in enumerate(lst):
            t = tbase + 3 * i
            a.e("v_mul_f32 v%d, -v%d, v%d" % (t + 1, LA, t))
            a.e("v_mul_f32 v%d, v%d, v%d" % (t + 2, ar, t))
        for i, (dst, p0, p1, ar) in enumerate(lst):
            t = tbase + 3 * i
            a.e("v_exp_f32 v%d, v%d" % (t + 1, t + 1))
            a.e("v_fract_f32 v%d, v%d" % (t + 2, t + 2))
        for i, (dst, p0, p1, ar) in enumerate(lst):
            t = tbase + 3 * i
            a.e("v_cos_f32 v%d, v%d" % (dst, t + 2))
            a.e("v_sin_f32 v%d, v%d" % (dst + 1, t + 2))
        a.e("s_nop 0")
        for i, (dst, p0, p1, ar) in enumerate(lst):
            t = tbase + 3 * i
            a.e("v_mul_f32 v%d, v%d, v%d" % (dst, dst, t + 1))
            a.e("v_mul_f32 v%d, v%d, v%d" % (dst + 1, dst + 1, t + 1))

    def cmul(d, x, y):
        return ["v_pk_mul_f32 v[%d:%d], v[%d:%d], v[%d:%d] op_sel:[0,0] op_sel_hi:[0,1]" % (d, d + 1, x, x + 1, y, y + 1),
                "v_pk_fma_f32 v[%d:%d], v[%d:%d], v[%d:%d], v[%d:%d] op_sel:[1,1,0] op_sel_hi:[1,0,1] neg_lo:[1,0,0]" % (
                    d, d + 1, x, x + 1, y, y + 1, d, d + 1)]

    def emit(lst):
        for s in lst:
            a.e(s)

    F1, S2, FA, FB, T0, T1, T2 = 18, 20, 22, 24, 26, 28, 30
    cexps([(F1, 8, 1, NAIM), (S2, 64, 128, NAIM), (FA, 2, 128, AIM), (FB, 128, 128, AIM),
           (T0, 256, 1024, AIM), (T1, 384, 1536, AIM), (T2, 512, 2048, AIM)], 60)
    a.stamp()
    Q, S1, S3 = 32, 34, 36
    CH = [40, 44, 48, 52]
    emit(cmul(Q, F1, F1))
    emit(cmul(CH[2], S2, CM))
    emit(cmul(S1, Q, Q))
    a.e("v_mov_b32 v%d, v%d" % (CH[0], CM))
    a.e("v_mov_b32 v%d, v%d" % (CH[0] + 1, CM + 1))
    emit(cmul(CH[1], S1, CM))
    emit(cmul(CH[3], S1, CH[2]))
    rows1 = [[0, 1, 2, 3], [4, 5, 6, 7], [8, 9, 10, 11], [12, 13, 14, 15]]
    rows2 = [[0, 1, 2, 3], [4, 5, 6, 7], [8, 10, 12, 14], [9, 11, 13, 15]]

    def chains(rows, facs):
        out = []
        for i in range(4):
            for q in range(4):
                cur = CH[q] + 2 * (i & 1)
                out.append("ds_write_b64 v4, v[%d:%d] offset:%d" % (cur, cur + 1, 272 * rows[q][i]))
            if i < 3:
                m = [cmul(CH[q] + 2 * ((i + 1) & 1), CH[q] + 2 * (i & 1), facs[q]) for q in range(4)]
                for s in range(2):
                    for q in range(4):
                        out.append(m[q][s])
        return out
    emit(chains(rows1, [F1] * 4))
    RY, RX = 64, 80
    for j in range(4):
        a.e("ds_read_b128 v[%d:%d], v5 offset:%d" % (RY + 4 * j, RY + 4 * j + 3, 16 * j))
        a.e("ds_read_b128 v[%d:%d], v5 offset:%d" % (RX + 4 * j, RX + 4 * j + 3, KG_BLK + 16 * j))
    a.stamp()
    pre = []
    pre += cmul(Q, FA, FA)
    pre += cmul(CH[0], T0, CRE)
    pre += cmul(CH[1], T1, CRE)
    pre += cmul(CH[2], T2, CRE)
    pre += cmul(CH[3], Q, CH[2])
    emit(pre)
    a.e("s_waitcnt lgkmcnt(0)")
    ch2 = chains(rows2, [FA, FA, FB, FB])
    mf = ["v_mfma_f32_16x16x4_f32 v[%d:%d], v%d, v%d, v[%d:%d]" % (
        ACC + 4 * (k & 1), ACC + 4 * (k & 1) + 3, RX + k, RY + k, ACC + 4 * (k & 1), ACC + 4 * (k & 1) + 3) for k in range(16)]
    per = (len(ch2) + 15) // 16
    idx = 0
    for k in range(16):
        a.e(mf[k])
        for s in ch2[idx:idx + per]:
            a.e(s)
        idx += per
    assert idx >= len(ch2)
    RX1, RX2 = 16, 32
    for j in range(4):
        a.e("ds_read_b128 v[%d:%d], v5 offset:%d" % (RX1 + 4 * j, RX1 + 4 * j + 3, 16 * j))
        a.e("ds_read_b128 v[%d:%d], v5 offset:%d" % (RX2 + 4 * j, RX2 + 4 * j + 3, KG_BLK + 16 * j))
    a.e("s_waitcnt lgkmcnt(0)")
    a.stamp()
    mf2 = []
    for k in range(16):
        mf2.append("v_mfma_f32_16x16x4_f32 v[%d:%d], v%d, v%d, v[%d:%d]" % (ACC + 8, ACC + 11, RX1 + k, RY + k, ACC + 8, ACC + 11))
        mf2.append("v_mfma_f32_16x16x4_f32 v[%d:%d], v%d, v%d, v[%d:%d]" % (ACC + 12, ACC + 15, RX2 + k, RY + k, ACC + 12, ACC + 15))
    im = []
    im.append("s_lshl_b32 s5, s3, 6")
    im.append("v_add_u32 v1, s5, v0")

    def srcaddr(dst, j, sh, segbase, t0, t1):
        im.append("v_lshrrev_b32 v%d, %d, v%d" % (t0, sh + 4, j))
        im.append("v_lshlrev_b32 v%d, %d, v%d" % (t0, sh, t0))
        if sh:
            im.append("v_and_b32 v%d, %d, v%d" % (t1, (1 << sh) - 1, j))
            im.append("v_add3_u32 v%d, v%d, v%d, %d" % (t0, t0, t1, segbase))
        else:
            im.append("v_add_u32 v%d, %d, v%d" % (t0, segbase, t0))
        im.append("v_bfe_u32 v%d, v%d, %d, 4" % (dst, j, sh))
        im.append("v_lshlrev_b32 v%d, 4, v%d" % (dst, dst))
        im.append("v_lshrrev_b32 v%d, 2, v%d" % (t1, t0))
        im.append("v_lshl_add_u32 v%d, v%d, 8, v%d" % (dst, t1, dst))
        im.append("v_and_b32 v%d, 3, v%d" % (t1, t0))
        im.append("v_lshl_add_u32 v%d, v%d, 2, v%d" % (dst, t1, dst))
    srcaddr(48, 1, 3, 0, 52, 53)
    im.append("v_and_b32 v54, 127, v1")
    srcaddr(49, 54, 2, 16, 52, 53)
    srcaddr(50, 54, 1, 24, 52, 53)
    im.append("v_cmp_gt_u32 vcc, 128, v1")
    im.append("v_cndmask_b32 v49, v50, v49, vcc")
    im.append("v_min_u32 v54, 128, v1")
    srcaddr(50, 54, 0, 32, 52, 53)
    im.append("v_lshlrev_b32 v51, 2, v1")
    im.append("v_add_u32 v51, %d, v51" % KG_KD)
    XA = 84
    im.append("v_lshlrev_b32 v52, 3, v1")
    im.append("v_sub_u32 v52, 2049, v52")
    im.append("v_cvt_f32_u32 v53, v52")
    im.append("v_lshlrev_b32 v52, 2, v52")
    im.append("v_add_u32 v52, %d, v52" % KG_KD)
    im.append("s_mov_b32 s45, 0x%x" % ((KG_KD - 4 * 17024) & 0xffffffff))
    TF = 116
    for e in range(9):
        im.append("v_subrev_f32 v%d, %s, v53" % (TF + e, "%d.0" % e if e in (0, 1, 2, 4) else f32bits(e)))
        im.append("v_max_f32 v%d, 0x43000000, v%d" % (TF + e, TF + e))
    for e in range(0, 9, 2):
        im.append("v_cvt_pk_bf16_f32 v%d, v%d, v%d" % (TF + e, TF + e, TF + e + 1 if e < 8 else TF + e))
    for e in range(9):
        if e & 1:
            im.append("v_lshrrev_b32 v%d, 16, v%d" % (XA + e, TF + e - 1))
        else:
            im.append("v_and_b32 v%d, 0xffff, v%d" % (XA + e, TF + e))
        im.append("v_lshl_add_u32 v%d, v%d, 2, s45" % (XA + e, XA + e))
        im.append("v_subrev_u32 v%d, %d, v52" % (TF + 9, 4 * e))
        im.append("v_min_u32 v%d, v%d, v%d" % (XA + e, XA + e, TF + 9))
    im.append("v_lshlrev_b32 v5, 4, v1")
    per = (len(im) + 31) // 32
    idx = 0
    for k in range(32):
        a.e(mf2[k])
        for s in im[idx:idx + per]:
            a.e(s)
        idx += per
    assert idx >= len(im)
    a.e("s_nop 7")
    a.e("s_nop 7")
    for i in range(4):
        a.e("v_add_f32 v%d, v%d, v%d" % (ACC + 4 + i, ACC + 4 + i, ACC + i))
    for b in range(3):
        a.e("ds_write_b128 v6, v[%d:%d] offset:%d" % (ACC + 4 + 4 * b, ACC + 7 + 4 * b, 1024 * b))
    a.e("s_waitcnt lgkmcnt(0)")
    a.e("s_barrier")
    a.stamp()
    RR = 16
    for r in range(3):
        for w in range(4):
            a.e("ds_read_b32 v%d, v%d offset:%d" % (RR + 4 * r + w, 48 + r, KG_WAVE * w))
    for r in range(3):
        a.e("s_waitcnt lgkmcnt(%d)" % (8 - 4 * r))
        a.e("v_add_f32 v%d, v%d, v%d" % (RR + 4 * r, RR + 4 * r, RR + 1 + 4 * r))
        a.e("v_add_f32 v%d, v%d, v%d" % (RR + 2 + 4 * r, RR + 2 + 4 * r, RR + 3 + 4 * r))
        a.e("v_add_f32 v%d, v%d, v%d" % (RR + 4 * r, RR + 4 * r, RR + 2 + 4 * r))
    a.e("ds_write_b32 v51, v%d" % RR)
    a.e("ds_write_b32 v51, v%d offset:1024" % (RR + 4))
    a.e("v_cmp_gt_u32 vcc, 129, v1")
    a.e("s_and_saveexec_b64 s[40:41], vcc")
    a.e("ds_write_b32 v51, v%d offset:2048" % (RR + 8))
    a.e("s_mov_b64 exec, s[40:41]")
    a.e("s_mul_i32 s6, s4, %d" % KR_STR)
    a.e("s_add_u32 s6, s6, %d" % KR0)
    a.e("s_add_u32 s7, s6, %d" % (KR1 - KR0))
    a.e("s_waitcnt lgkmcnt(0)")
    a.e("s_barrier")
    a.stamp()
    for e in range(9):
        a.e("ds_read_b32 v%d, v%d" % (50 + e, XA + e))
    lab = a.newlabel("L_kgx")
    a.e("s_cmp_lg_u32 s3, 3")
    a.e("s_cbranch_scc1 %s" % lab)
    a.e("v_mov_b32 v30, %d" % KG_KD)
    a.e("ds_read_b64 v[32:33], v30")
    for i in range(8):
        a.e("v_mov_b32 v%d, 0" % (36 + i))
    a.e("v_lshlrev_b32 v31, 4, v0")
    a.e("v_add_u32 v31, 4096, v31")
    a.e("v_cmp_eq_u32 vcc, 0, v0")
    a.e("s_waitcnt lgkmcnt(0)")
    a.e("v_cvt_pk_bf16_f32 v34, v32, v36")
    a.e("v_cvt_pk_bf16_f32 v35, v33, v32")
    a.e("v_cndmask_b32 v36, v36, v34, vcc")
    a.e("v_cndmask_b32 v40, v40, v35, vcc")
    a.e("v_cmp_gt_u32 vcc, 18, v0")
    a.e("s_and_saveexec_b64 s[40:41], vcc")
    a.e("buffer_store_dwordx4 v[36:39], v31, s[%d:%d], s6 offen" % (SRD_WS, SRD_WS + 3))
    a.e("buffer_store_dwordx4 v[40:43], v31, s[%d:%d], s7 offen" % (SRD_WS, SRD_WS + 3))
    a.e("s_mov_b64 exec, s[40:41]")
    a.label(lab)
    a.e("v_cmp_ne_u32 vcc, 0, v1")
    a.e("s_waitcnt lgkmcnt(0)")
    a.e("v_cndmask_b32 v50, 0, v50, vcc")
    a.e("v_cndmask_b32 v51, 0, v51, vcc")
    for e in range(4):
        a.e("v_cvt_pk_bf16_f32 v%d, v%d, v%d" % (60 + e, 51 + 2 * e, 52 + 2 * e))
        a.e("v_cvt_pk_bf16_f32 v%d, v%d, v%d" % (64 + e, 50 + 2 * e, 51 + 2 * e))
    a.e("buffer_store_dwordx4 v[60:63], v5, s[%d:%d], s6 offen" % (SRD_WS, SRD_WS + 3))
    a.e("buffer_store_dwordx4 v[64:67], v5, s[%d:%d], s7 offen" % (SRD_WS, SRD_WS + 3))
    a.stamp_out()
    a.e("s_branch L_end_%s" % a.kname)


def gen_ln(a):
    a.c("---- LayerNorm: row block s2-640 ----")
    if "ln" in SKIP:
        a.e("s_branch L_end_%s" % a.kname)
    a.e("s_sub_u32 s4, s2, %d" % LN_BASE)
    a.e("s_lshl_b32 s5, s4, 4")
    a.e("s_lshl_b32 s6, s3, 2")
    a.e("s_add_u32 s5, s5, s6")
    a.e("v_lshrrev_b32 v1, 4, v0")
    a.e("v_and_b32 v2, 15, v0")
    a.e("v_add_u32 v3, s5, v1")
    a.e("v_mul_u32_u24 v3, 1280, v3")
    a.e("v_lshl_add_u32 v3, v2, 4, v3")
    for i in range(5):
        a.e("global_load_dwordx4 v[%d:%d], v3, s[%d:%d] offset:%d" % (10 + 4 * i, 13 + 4 * i, P_U, P_U + 1, 256 * i))
    a.e("s_waitcnt vmcnt(0)")
    for j in range(20):
        a.e("v_lshlrev_b32 v%d, 16, v%d" % (40 + 2 * j, 10 + j))
        a.e("v_and_b32 v%d, 0xffff0000, v%d" % (41 + 2 * j, 10 + j))
    a.e("v_add_f32 v4, v40, v41")
    for j in range(2, 40):
        a.e("v_add_f32 v4, v4, v%d" % (40 + j))

    def red16(reg, tmp):
        for off in (0x041F, 0x081F, 0x101F, 0x201F):
            a.e("ds_swizzle_b32 v%d, v%d offset:0x%x" % (tmp, reg, off))
            a.e("s_waitcnt lgkmcnt(0)")
            a.e("v_add_f32 v%d, v%d, v%d" % (reg, reg, tmp))
    red16(4, 5)
    a.e("s_mov_b32 s7, 0x3acccccd")
    a.e("v_mul_f32 v4, s7, v4")
    a.e("v_sub_f32 v6, v40, v4")
    a.e("v_mul_f32 v5, v6, v6")
    for j in range(1, 40):
        a.e("v_sub_f32 v6, v%d, v4" % (40 + j))
        a.e("v_fma_f32 v5, v6, v6, v5")
    red16(5, 6)
    a.e("v_mul_f32 v5, s7, v5")
    bf16r(a, 4, 4)
    bf16r(a, 5, 5)
    a.e("v_add_f32 v5, 0x3727c5ac, v5")
    bf16r(a, 5, 5)
    a.e("v_sqrt_f32 v5, v5")
    a.e("s_nop 0")
    bf16r(a, 5, 5)
    a.e("v_rcp_f32 v6, v5")
    for j in range(0, 40, 2):
        x0, x1 = 40 + j, 41 + j
        a.e("v_sub_f32 v%d, v%d, v4" % (x0, x0))
        a.e("v_sub_f32 v%d, v%d, v4" % (x1, x1))
        a.e("v_cvt_pk_bf16_f32 v7, v%d, v%d" % (x0, x1))
        a.e("v_lshlrev_b32 v%d, 16, v7" % x0)
        a.e("v_and_b32 v%d, 0xffff0000, v7" % x1)
        a.e("v_mul_f32 v7, v%d, v6" % x0)
        a.e("v_mul_f32 v8, v%d, v6" % x1)
        a.e("v_fma_f32 v%d, -v7, v5, v%d" % (x0, x0))
        a.e("v_fma_f32 v%d, -v8, v5, v%d" % (x1, x1))
        a.e("v_fma_f32 v7, v%d, v6, v7" % x0)
        a.e("v_fma_f32 v8, v%d, v6, v8" % x1)
        a.e("v_cvt_pk_bf16_f32 v%d, v7, v8" % (10 + j // 2))
    a.e("s_mul_i32 s40, s4, 20480")
    a.e("s_add_u32 s40, s40, %d" % XNF)
    a.e("v_lshrrev_b32 v7, 2, v2")
    a.e("v_lshlrev_b32 v7, 10, v7")
    a.e("v_and_b32 v8, 3, v2")
    a.e("v_lshl_add_u32 v7, v8, 8, v7")
    a.e("v_add_u32 v8, s6, v1")
    a.e("v_lshl_add_u32 v7, v8, 4, v7")
    for i in range(5):
        a.e("s_add_u32 s41, s40, %d" % (4096 * i))
        a.e("buffer_store_dwordx4 v[%d:%d], v7, s[%d:%d], s41 offen" % (10 + 4 * i, 13 + 4 * i, SRD_WS, SRD_WS + 3))
    LSTR = 1296
    a.e("v_mul_u32_u24 v9, %d, v8" % LSTR)
    a.e("v_lshl_add_u32 v9, v2, 4, v9")
    for i in range(5):
        a.e("ds_write_b128 v9, v[%d:%d] offset:%d" % (10 + 4 * i, 13 + 4 * i, 256 * i))
    a.e("s_waitcnt lgkmcnt(0)")
    a.e("s_barrier")
    a.e("s_lshl_b32 s5, s3, 6")
    a.e("v_add_u32 v1, s5, v0")
    a.e("s_lshl_b32 s40, s4, 5")
    a.e("s_add_u32 s40, s40, %d" % (XNT + 240))
    for j in range(3):
        a.e("v_add_u32 v2, %d, v1" % (256 * j))
        if j == 2:
            a.e("v_cmp_gt_u32 vcc, 640, v2")
            a.e("s_and_saveexec_b64 s[42:43], vcc")
        a.e("v_lshlrev_b32 v3, 1, v2")
        for r in range(16):
            a.e("ds_read_u16 v%d, v3 offset:%d" % (64 + r, LSTR * r))
        a.e("v_mul_u32_u24 v4, %d, v2" % XNT_STR)
        a.e("s_waitcnt lgkmcnt(0)")
        for r in range(8):
            a.e("v_lshl_or_b32 v%d, v%d, 16, v%d" % (40 + 8 * j + r, 65 + 2 * r, 64 + 2 * r))
        a.e("buffer_store_dwordx4 v[%d:%d], v4, s[%d:%d], s40 offen" % (40 + 8 * j, 43 + 8 * j, SRD_WS, SRD_WS + 3))
        a.e("buffer_store_dwordx4 v[%d:%d], v4, s[%d:%d], s40 offen offset:16" % (44 + 8 * j, 47 + 8 * j, SRD_WS, SRD_WS + 3))
        if j == 2:
            a.e("s_mov_b64 exec, s[42:43]")
    a.stamp_out()
    a.e("s_branch L_end_%s" % a.kname)


def gen_wt(a, which):
    if which == 1:
        base_id = W1_BASE
        ncols = F
        ptr = P_W1
        dst = W1F
        nkb = 20
        nj = 5
    else:
        base_id = W2_BASE
        ncols = D
        ptr = P_W2
        dst = W2F
        nkb = 54
        nj = 5
    a.c("---- W%d transposition ----" % which)
    if "wt" in SKIP:
        a.e("s_branch L_end_%s" % a.kname)
    a.e("s_sub_u32 s4, s2, %d" % base_id)
    if which == 1:
        a.e("s_mov_b32 s5, s4")
        a.e("s_mov_b32 s6, s3")
        a.e("s_mov_b32 s7, 20")
    else:
        a.e("s_cmp_ge_u32 s4, 40")
        a.e("s_cselect_b32 s40, 1, 0")
        a.e("s_cmp_ge_u32 s4, 80")
        a.e("s_cselect_b32 s41, 1, 0")
        a.e("s_add_u32 s40, s40, s41")
        a.e("s_mul_i32 s41, s40, 40")
        a.e("s_sub_u32 s5, s4, s41")
        a.e("s_mul_i32 s6, s40, 18")
        a.e("s_add_u32 s7, s6, 18")
        a.e("s_add_u32 s6, s6, s3")
    make_srd(a, 44, ptr, D * F * 2)
    a.e("v_lshrrev_b32 v1, 4, v0")
    a.e("v_mul_u32_u24 v1, %d, v1" % (8 * ncols * 2))
    a.e("v_and_b32 v2, 15, v0")
    a.e("v_lshl_add_u32 v1, v2, 1, v1")
    a.e("s_lshl_b32 s40, s5, 5")
    a.e("v_add_u32 v1, s40, v1")
    a.e("v_lshlrev_b32 v2, 4, v0")
    a.e("s_mul_i32 s41, s5, %d" % (nkb * 1024))
    a.e("s_add_u32 s41, s41, %d" % dst)
    for j in range(nj):
        lab = a.newlabel("L_wt")
        a.e("s_add_u32 s42, s6, %d" % (4 * j))
        a.e("s_cmp_ge_u32 s42, s7")
        a.e("s_cbranch_scc1 %s" % lab)
        a.e("s_mul_i32 s43, s42, %d" % (32 * ncols * 2))
        for e in range(8):
            a.e("s_add_u32 s48, s43, %d" % (e * ncols * 2))
            a.e("buffer_load_ushort v%d, v1, s[44:47], s48 offen" % (40 + 8 * j + e))
        a.label(lab)
    for j in range(nj):
        lab = a.newlabel("L_wt")
        a.e("s_add_u32 s42, s6, %d" % (4 * j))
        a.e("s_cmp_ge_u32 s42, s7")
        a.e("s_cbranch_scc1 %s" % lab)
        a.e("s_lshl_b32 s43, s42, 10")
        a.e("s_add_u32 s43, s43, s41")
        a.e("s_waitcnt vmcnt(0)")
        for e in range(4):
            a.e("v_lshl_or_b32 v%d, v%d, 16, v%d" % (10 + 4 * j + e, 41 + 8 * j + 2 * e, 40 + 8 * j + 2 * e))
        a.e("buffer_store_dwordx4 v[%d:%d], v2, s[%d:%d], s43 offen" % (10 + 4 * j, 13 + 4 * j, SRD_WS, SRD_WS + 3))
        a.label(lab)
    a.stamp_out()
    a.e("s_branch L_end_%s" % a.kname)


def gen_phase1(a):
    a.kname = "p1"
    a.label("prep_kernel")
    prologue(a, P1_WGS)
    if KG_BASE == 0:
        a.e("s_cmp_lt_u32 s2, %d" % N_KG)
    else:
        a.e("s_cmp_ge_u32 s2, %d" % KG_BASE)
    a.e("s_cbranch_scc1 L_p1_kg")
    a.e("s_cmp_lt_u32 s2, %d" % W1_BASE)
    a.e("s_cbranch_scc1 L_p1_ln")
    a.e("s_cmp_lt_u32 s2, %d" % W2_BASE)
    a.e("s_cbranch_scc1 L_p1_w1")
    gen_wt(a, 2)
    a.label("L_p1_w1")
    gen_wt(a, 1)
    a.label("L_p1_ln")
    gen_ln(a)
    a.label("L_p1_kg")
    gen_kgen(a)
    a.label("L_end_p1")
    a.e("s_endpgm")


class VM:
    def __init__(self, a):
        self.a = a
        self.q = []

    def issue(self, tag):
        self.q.append(tag)

    def wait(self, tag):
        idx = [i for i, t in enumerate(self.q) if t == tag]
        if not idx:
            return
        n = len(self.q) - 1 - idx[-1]
        assert n <= 63
        self.a.e("s_waitcnt vmcnt(%d)" % n)
        self.q = self.q[idx[-1] + 1:]

    def wait2(self, t1, t2):
        idx = [i for i, t in enumerate(self.q) if t in (t1, t2)]
        if not idx:
            return
        n = len(self.q) - 1 - idx[-1]
        assert n <= 63
        self.a.e("s_waitcnt vmcnt(%d)" % n)
        self.q = self.q[idx[-1] + 1:]

    def waitall(self):
        if self.q:
            self.a.e("s_waitcnt vmcnt(0)")
            self.q = []


def gemm_loop(a, vm, nst, kbs, nA, nB, nslots, slot_bytes, a_src, b_src, a_kstride_chunks,
              wave_bcols, acc0, regs, vlane16, vrdA, vrdB, sbase, sldso):
    nch = kbs * (nA + nB)
    nld = (nch + 3) // 4

    def dma(st):
        slot = st % nslots
        out = []
        for j in range(nld):
            out.append(["s_add_u32 m0, s%d, %d" % (sldso + j, slot * slot_bytes),
                        "s_add_u32 s6, s%d, %d" % (sbase + j, st * kbs * 1024),
                        "buffer_load_dwordx4 v%d, s[%d:%d], s6 offen lds" % (vlane16, SRD_WS, SRD_WS + 3)])
        return out

    def reads(st, rs):
        slot = st % nslots
        r = regs[rs]
        out = []
        for kk in range(kbs):
            for i in range(nA):
                off = slot * slot_bytes + (kk * nA + i) * 1024
                va = vrdA
                if off >= 65536:
                    off -= 32768
                    va = vrdA + 2
                out.append(["ds_read_b128 v[%d:%d], v%d offset:%d" % (r, r + 3, va, off)])
                r += 4
            for jj in range(wave_bcols):
                off = slot * slot_bytes + (kbs * nA + kk * nB + jj) * 1024
                vb = vrdB
                if off + (nB - wave_bcols) * 1024 >= 65536:
                    off -= 32768
                    vb = vrdB + 2
                out.append(["ds_read_b128 v[%d:%d], v%d offset:%d" % (r, r + 3, vb, off)])
                r += 4
        return out

    def mfmas(rs):
        per = (nA + wave_bcols) * 4
        out = []
        for kk in range(kbs):
            r = regs[rs] + kk * per
            for i in range(nA):
                for jj in range(wave_bcols):
                    acc = acc0 + (i * wave_bcols + jj) * 4
                    out.append("v_mfma_f32_16x16x32_bf16 v[%d:%d], v[%d:%d], v[%d:%d], v[%d:%d]" % (
                        acc, acc + 3, r + 4 * i, r + 4 * i + 3, r + 4 * (nA + jj), r + 4 * (nA + jj) + 3, acc, acc + 3))
        return out

    def emit(groups, tag=None):
        for g in groups:
            for s in g:
                a.e(s)
            if tag and g[-1].startswith("buffer"):
                vm.issue(tag)

    for st in range(min(nslots, nst)):
        emit(dma(st), "st%d" % st)
    vm.wait("st0")
    a.stamp()
    a.e("s_barrier")
    emit(reads(0, 0))
    for i in range(nst):
        a.e("s_waitcnt lgkmcnt(0)")
        other = []
        if i + 1 < nst:
            vm.wait("st%d" % (i + 1))
            a.e("s_barrier")
            rd = reads(i + 1, (i + 1) % 2)
            dm = dma(i + nslots) if i + nslots < nst else []
            if ILV == 0:
                emit(dm, "st%d" % (i + nslots))
                emit(rd)
            else:
                k = 0
                while rd or dm:
                    if rd:
                        other.append(rd.pop(0))
                    if rd and k % 2 == 0:
                        other.append(rd.pop(0))
                    if dm:
                        other.append(dm.pop(0))
                    k += 1
        m = mfmas(i % 2)
        no = len(other)
        nm = len(m)
        done = 0
        for k in range(nm):
            a.e(m[k])
            tgt = ((k + 1) * no + nm - 1) // nm if ILV == 1 else min(no, (k + 1) * ILV)
            while done < tgt:
                emit([other[done]], "st%d" % (i + nslots))
                done += 1
        assert done == no


def gemm_loop2(a, vm, nst, nAc, nA, nBw, nslots, kstride, acc0, aregs, bregs, nb,
               vlane16, vrdA, sbase, sldso, sB, bstride, bcolstride, after_prologue=None, extra=None, extra_per=4):
    nfull = nAc // 4
    rem = nAc - 4 * nfull
    slot_bytes = nAc * 1024

    def dma(st):
        slot = st % nslots
        out = []
        for j in range(nfull):
            out.append(["s_add_u32 m0, s%d, %d" % (sldso + j, slot * slot_bytes),
                        "s_add_u32 s6, s%d, %d" % (sbase + j, st * kstride),
                        "buffer_load_dwordx4 v%d, s[%d:%d], s6 offen lds" % (vlane16, SRD_WS, SRD_WS + 3)])
        if rem:
            j = nfull
            out.append(["s_add_u32 m0, s%d, %d" % (sldso + j, slot * slot_bytes),
                        "s_add_u32 s6, s%d, %d" % (sbase + j, st * kstride),
                        "s_mov_b64 exec, 0x%x" % ((1 << (16 * rem)) - 1),
                        "buffer_load_dwordx4 v%d, s[%d:%d], s6 offen lds" % (vlane16, SRD_WS, SRD_WS + 3),
                        "s_mov_b64 exec, -1"])
        return out

    def bload(st):
        out = []
        r = bregs + (st % nb) * 4 * nBw
        for jj in range(nBw):
            out.append(["s_add_u32 s7, s%d, %d" % (sB, st * bstride + jj * bcolstride),
                        "buffer_load_dwordx4 v[%d:%d], v%d, s[%d:%d], s7 offen" % (r + 4 * jj, r + 4 * jj + 3, vlane16, SRD_WS, SRD_WS + 3)])
        return out

    def reads(st):
        slot = st % nslots
        r = aregs + (st % 2) * 4 * nA
        out = []
        for i in range(nA):
            off = slot * slot_bytes + i * 1024
            assert off + (nAc - nA) * 1024 < 65536
            out.append(["ds_read_b128 v[%d:%d], v%d offset:%d" % (r + 4 * i, r + 4 * i + 3, vrdA, off)])
        return out

    def mfmas(st):
        ra = aregs + (st % 2) * 4 * nA
        rb = bregs + (st % nb) * 4 * nBw
        out = []
        for i in range(nA):
            for jj in range(nBw):
                acc = acc0 + (i * nBw + jj) * 4
                out.append("v_mfma_f32_16x16x32_bf16 v[%d:%d], v[%d:%d], v[%d:%d], v[%d:%d]" % (
                    acc, acc + 3, ra + 4 * i, ra + 4 * i + 3, rb + 4 * jj, rb + 4 * jj + 3, acc, acc + 3))
        return out

    def emit(groups, tag=None):
        for g in groups:
            for s in g:
                a.e(s)
            if tag:
                vm.issue(tag)

    for st in range(max(nslots, nb - 1)):
        if st < nslots and st < nst:
            emit(dma(st), "a%d" % st)
        if st < nb - 1 and st < nst:
            emit(bload(st), "b%d" % st)
    a.stamp()
    if after_prologue:
        after_prologue()
    a.stamp()
    vm.wait("a0")
    a.stamp()
    a.e("s_barrier")
    emit(reads(0))
    for i in range(nst):
        a.e("s_waitcnt lgkmcnt(0)")
        other = []
        vm.wait2("a%d" % (i + 1), "b%d" % i)
        if i + 1 < nst:
            a.e("s_barrier")
            rd = [(g, None) for g in reads(i + 1)]
            dm = [(g, "a%d" % (i + nslots)) for g in dma(i + nslots)] if i + nslots < nst else []
            bl = [(g, "b%d" % (i + nb - 1)) for g in bload(i + nb - 1)] if i + nb - 1 < nst else []
            mem = dm + bl
            if extra and i >= 1:
                mem += [(g, "epi") for g in extra[:extra_per]]
                del extra[:extra_per]
            EXP = os.environ.get("EXP", "")
            if "nomem" in EXP:
                mem = []
            if "nords" in EXP:
                rd = []
            if "front" in EXP:
                other = rd + mem
                rd = []
                mem = []
            k = 0
            while rd or mem:
                if rd:
                    other.append(rd.pop(0))
                if rd and len(rd) >= 2 * len(mem):
                    other.append(rd.pop(0))
                if mem:
                    other.append(mem.pop(0))
        m = mfmas(i)
        no = len(other)
        nm = len(m)
        done = 0
        for k in range(nm):
            a.e(m[k])
            tgt = ((k + 1) * no + nm - 1) // nm
            if "front" in os.environ.get("EXP", ""):
                tgt = min(no, k + 1)
            while done < tgt:
                emit([other[done][0]], other[done][1])
                done += 1
        assert done == no


def dma_setup(a, nAc, SB, SL, gaddr):
    nfull = nAc // 4
    rem = nAc - 4 * nfull
    for j in range(nfull):
        a.e("s_add_u32 s6, s3, %d" % (4 * j))
        a.e("s_lshl_b32 s%d, s6, 10" % (SL + j))
        gaddr(a, 6, SB + j)
    if rem:
        j = nfull
        a.e("s_mul_i32 s7, s3, %d" % (rem * 256))
        a.e("s_lshr_b32 s6, s7, 10")
        a.e("s_add_u32 s6, s6, %d" % (4 * nfull))
        a.e("s_and_b32 s7, s7, 1023")
        a.e("s_lshl_b32 s%d, s6, 10" % (SL + j))
        a.e("s_add_u32 s%d, s%d, s7" % (SL + j, SL + j))
        gaddr(a, 6, SB + j)
        a.e("s_add_u32 s%d, s%d, s7" % (SB + j, SB + j))


N_G1 = 256
N_CV = 640
P2_WGS = N_G1 + N_CV
G1_SLOT = 8 * 1024
G1_NSLOT = int(os.environ.get("G1_NSLOT", "5"))
P2_LDS = max(G1_SLOT * G1_NSLOT, 40960)


def gen_gemm1(a):
    a.c("---- GEMM1: mt (f tile of 7 or 6 frags), nt (l tile of 128) ----")
    vm = VM(a)
    if "g1" in SKIP:
        a.e("s_branch L_end_%s" % a.kname)
    NA = 7
    a.e("s_lshr_b32 s4, s2, 4")
    a.e("s_and_b32 s5, s2, 7")
    a.e("s_lshl_b32 s5, s5, 1")
    a.e("s_bfe_u32 s6, s2, 0x10003")
    a.e("s_add_u32 s5, s5, s6")
    a.e("s_mul_i32 s6, s4, 7")
    a.e("s_mul_i32 s7, s4, 6")
    a.e("s_add_u32 s7, s7, 12")
    a.e("s_cmp_lt_u32 s4, 12")
    a.e("s_cselect_b32 s4, s6, s7")
    a.e("s_cselect_b32 s45, 6, 5")
    SB, SL, SBB = 48, 56, 54

    def gaddr(a, sc, sdst):
        a.e("s_min_u32 s40, s%d, s45" % sc)
        a.e("s_add_u32 s40, s40, s4")
        a.e("s_mul_i32 s40, s40, 20480")
        a.e("s_add_u32 s%d, s40, %d" % (sdst, W1F))
    dma_setup(a, 8, SB, SL, gaddr)
    a.e("s_lshl_b32 s40, s5, 3")
    a.e("s_lshl_b32 s41, s3, 1")
    a.e("s_add_u32 s40, s40, s41")
    a.e("s_mul_i32 s40, s40, 20480")
    a.e("s_add_u32 s%d, s40, %d" % (SBB, XNF))
    a.e("v_lshlrev_b32 v1, 4, v0")
    ACC = 8
    AREG = 64
    BREG = 120
    NB = 4
    BIAS = 152

    def after():
        a.e("s_lshl_b32 s6, s4, 5")
        a.e("v_lshrrev_b32 v6, 4, v0")
        a.e("v_lshlrev_b32 v6, 3, v6")
        a.e("v_add_u32 v6, s6, v6")
        a.e("s_lshl_b32 s6, s45, 5")
        a.e("v_add_u32 v7, s6, v6")
        for i in range(NA):
            if i < NA - 1:
                a.e("global_load_dwordx2 v[%d:%d], v6, s[%d:%d] offset:%d" % (BIAS + 2 * i, BIAS + 2 * i + 1, P_B1, P_B1 + 1, 32 * i))
            else:
                a.e("global_load_dwordx2 v[%d:%d], v7, s[%d:%d]" % (BIAS + 2 * i, BIAS + 2 * i + 1, P_B1, P_B1 + 1))
            vm.issue("bias")
        for i in range(8 * NA):
            a.e("v_mov_b32 v%d, 0" % (ACC + i))
    gemm_loop2(a, vm, 20, 8, NA, 2, G1_NSLOT, 1024, ACC, AREG, BREG, NB, 1, 1, SB, SL, SBB, 1024, 20480, after)
    vm.waitall()
    a.stamp()
    a.e("v_lshrrev_b32 v6, 5, v0")
    a.e("v_lshlrev_b32 v6, 8, v6")
    a.e("v_and_b32 v7, 15, v0")
    a.e("v_lshl_add_u32 v6, v7, 4, v6")
    a.e("v_bfe_u32 v7, v0, 4, 1")
    a.e("v_lshl_add_u32 v6, v7, 3, v6")
    a.e("s_lshl_b32 s6, s5, 3")
    a.e("s_lshl_b32 s7, s3, 1")
    a.e("s_add_u32 s6, s6, s7")
    a.e("s_mul_i32 s6, s6, 55296")
    a.e("s_lshl_b32 s7, s4, 9")
    a.e("s_add_u32 s6, s6, s7")
    a.e("s_add_u32 s6, s6, %d" % ACTF)
    a.e("s_add_u32 s7, s6, 55296")
    a.e("s_lshl_b32 s41, s45, 9")
    a.e("s_add_u32 s40, s6, s41")
    a.e("s_add_u32 s41, s7, s41")
    a.e("s_mov_b32 s42, 0x%x" % LOG2E)
    a.e("s_mov_b32 s43, 0x%x" % LOG2E)
    a.e("s_mov_b32 s44, 0x41a00000")
    a.e("s_mov_b32 s46, 2.0")
    a.e("s_mov_b32 s47, 2.0")
    a.e("s_nop 4")
    T = 64

    def pk(op, d, x, y):
        return "v_pk_%s_f32 v[%d:%d], %s, %s" % (op, d, d + 1, x, y)

    def V(r):
        return "v[%d:%d]" % (r, r + 1)
    for i in range(NA):
        b = BIAS + 2 * i
        a.e("v_lshlrev_b32 v%d, 16, v%d" % (T, b))
        a.e("v_and_b32 v%d, 0xffff0000, v%d" % (T + 1, b))
        a.e("v_lshlrev_b32 v%d, 16, v%d" % (T + 2, b + 1))
        a.e("v_and_b32 v%d, 0xffff0000, v%d" % (T + 3, b + 1))
        h = [T + 4 + 16 * jj for jj in range(2)]
        for jj in range(2):
            acc = ACC + (i * 2 + jj) * 4
            for r in (0, 2):
                a.e(pk("add", h[jj] + r, V(acc + r), V(T + r)))
        for jj in range(2):
            for r in range(4):
                a.e("v_min_f32 v%d, s44, v%d" % (h[jj] + 4 + r, h[jj] + r))
        for jj in range(2):
            for r in (0, 2):
                a.e(pk("mul", h[jj] + 4 + r, V(h[jj] + 4 + r), "s[42:43]"))
        for jj in range(2):
            for r in range(4):
                a.e("v_exp_f32 v%d, v%d" % (h[jj] + 4 + r, h[jj] + 4 + r))
        for jj in range(2):
            for r in (0, 2):
                a.e(pk("add", h[jj] + 8 + r, V(h[jj] + 4 + r), "s[46:47]"))
        for jj in range(2):
            for r in (0, 2):
                a.e(pk("mul", h[jj] + 8 + r, V(h[jj] + 8 + r), V(h[jj] + 4 + r)))
        for jj in range(2):
            for r in (0, 2):
                a.e(pk("add", h[jj] + 12 + r, V(h[jj] + 8 + r), "s[46:47]"))
        for jj in range(2):
            for r in range(4):
                a.e("v_rcp_f32 v%d, v%d" % (h[jj] + 12 + r, h[jj] + 12 + r))
        for jj in range(2):
            for r in (0, 2):
                a.e(pk("mul", h[jj] + 8 + r, V(h[jj] + 8 + r), V(h[jj] + r)))
        for jj in range(2):
            for r in (0, 2):
                a.e(pk("mul", h[jj] + 8 + r, V(h[jj] + 8 + r), V(h[jj] + 12 + r)))
        for jj in range(2):
            nu = h[jj] + 8
            o = 100 + 2 * ((i * 2 + jj) % 8)
            a.e("v_cvt_pk_bf16_f32 v%d, v%d, v%d" % (o, nu, nu + 1))
            a.e("v_cvt_pk_bf16_f32 v%d, v%d, v%d" % (o + 1, nu + 2, nu + 3))
            if i < NA - 1:
                so, off = (6 + jj), 512 * i
            else:
                so, off = (40 + jj), 0
            a.e("buffer_store_dwordx2 v[%d:%d], v6, s[%d:%d], s%d offen offset:%d" % (o, o + 1, SRD_WS, SRD_WS + 3, so, off))
    a.stamp_out()
    a.e("s_branch L_end_%s" % a.kname)


CV_KSTR = 4384
CV_UB = 4 * CV_KSTR


def gen_conv(a):
    a.c("---- conv: channel s2 - N_G1 ----")
    if "cv" in SKIP:
        a.e("s_branch L_end_%s" % a.kname)
    if os.environ.get("CVPRIO", "0") == "1":
        a.e("s_setprio 3")
    a.e("s_sub_u32 s4, s2, %d" % N_G1)
    a.e("v_lshlrev_b32 v1, 4, v0")
    a.e("s_mul_i32 s5, s4, %d" % KR_STR)
    a.e("s_mul_i32 s7, s4, %d" % XNT_STR)
    a.e("s_add_u32 s7, s7, %d" % XNT)
    a.e("s_lshr_b32 s40, s3, 1")
    a.e("s_lshl_b32 s40, s40, 2")
    a.e("s_sub_u32 s40, 8, s40")
    a.e("s_add_u32 s40, s40, s5")
    a.e("s_and_b32 s41, s3, 1")
    a.e("s_mul_i32 s41, s41, %d" % (KR1 - KR0))
    a.e("s_add_u32 s40, s40, s41")
    a.e("s_add_u32 s40, s40, %d" % KR0)
    a.e("s_mul_i32 s42, s3, %d" % CV_KSTR)
    for p in range(4):
        a.e("s_add_u32 m0, s42, %d" % (1024 * p))
        a.e("s_add_u32 s6, s40, %d" % (1024 * p))
        a.e("buffer_load_dwordx4 v1, s[%d:%d], s6 offen lds" % (SRD_WS, SRD_WS + 3))
    a.e("s_lshl_b32 s44, s3, 10")
    a.e("s_add_u32 m0, s44, %d" % CV_UB)
    a.e("s_add_u32 s6, s7, s44")
    a.e("buffer_load_dwordx4 v1, s[%d:%d], s6 offen lds" % (SRD_WS, SRD_WS + 3))
    a.e("s_mov_b64 exec, 0x1ffff")
    a.e("s_add_u32 m0, s42, 4096")
    a.e("s_add_u32 s6, s40, 4096")
    a.e("buffer_load_dwordx4 v1, s[%d:%d], s6 offen lds" % (SRD_WS, SRD_WS + 3))
    a.e("s_mov_b64 exec, 0xffff")
    a.e("s_mov_b32 m0, %d" % (CV_UB + 4096))
    a.e("s_add_u32 s6, s7, 4096")
    a.e("buffer_load_dwordx4 v1, s[%d:%d], s6 offen lds" % (SRD_WS, SRD_WS + 3))
    a.e("s_mov_b64 exec, -1")
    a.e("v_and_b32 v2, 3, v0")
    a.e("v_mul_u32_u24 v2, %d, v2" % CV_KSTR)
    a.e("v_bfe_u32 v3, v0, 3, 1")
    a.e("v_lshlrev_b32 v3, 8, v3")
    a.e("v_sub_u32 v2, v2, v3")
    a.e("v_bfe_u32 v3, v0, 2, 1")
    a.e("v_lshlrev_b32 v3, 3, v3")
    a.e("v_sub_u32 v2, v2, v3")
    a.e("v_lshrrev_b32 v3, 4, v0")
    a.e("v_lshl_add_u32 v2, v3, 4, v2")
    a.e("v_add_u32 v2, 648, v2")
    a.e("s_lshl_b32 s6, s3, 7")
    a.e("v_subrev_u32 v2, s6, v2")
    a.e("v_add_u32 v5, 2048, v2")
    a.e("v_and_b32 v4, 15, v0")
    a.e("v_add_u32 v4, v4, v3")
    a.e("v_lshlrev_b32 v4, 4, v4")
    a.e("v_add_u32 v4, %d, v4" % CV_UB)
    a.e("v_subrev_u32 v4, s6, v4")
    ACC = 8
    RA, RB = 40, 72
    for i in range(32):
        a.e("v_mov_b32 v%d, 0" % (ACC + i))
    a.stamp()
    a.e("s_waitcnt vmcnt(0)")
    a.stamp()
    a.e("s_barrier")
    a.stamp()
    for rr in range(2):
        for x in range(8):
            off = (63 - 8 * x - rr) * 64 - 384
            va = 2
            if off >= 2048:
                off -= 2048
                va = 5
            a.e("ds_read2_b64 v[%d:%d], v%d offset0:%d offset1:%d" % (RA + 4 * x, RA + 4 * x + 3, va, off // 8, off // 8 + 1))
            a.e("ds_read_b128 v[%d:%d], v4 offset:%d" % (RB + 4 * x, RB + 4 * x + 3, 64 * (8 * x - rr + 7)))
        a.e("s_waitcnt lgkmcnt(0)")
        for aa in range(8):
            for g in range(aa, 8):
                bb = g - aa
                a.e("v_mfma_f32_16x16x32_bf16 v[%d:%d], v[%d:%d], v[%d:%d], v[%d:%d]" % (
                    ACC + 4 * g, ACC + 4 * g + 3, RA + 4 * aa, RA + 4 * aa + 3, RB + 4 * bb, RB + 4 * bb + 3,
                    ACC + 4 * g, ACC + 4 * g + 3))
    a.e("s_nop 7")
    a.stamp()
    a.e("s_barrier")
    a.e("s_lshl_b32 s6, s3, 13")
    a.e("v_add_u32 v5, s6, v1")
    for g in range(8):
        a.e("ds_write_b128 v5, v[%d:%d] offset:%d" % (ACC + 4 * g, ACC + 4 * g + 3, 1024 * g))
    a.e("s_waitcnt lgkmcnt(0)")
    a.e("s_barrier")
    a.e("s_lshl_b32 s6, s3, 11")
    a.e("v_add_u32 v5, s6, v1")
    for gg in range(2):
        for w in range(4):
            a.e("ds_read_b128 v[%d:%d], v5 offset:%d" % (RA + 16 * gg + 4 * w, RA + 16 * gg + 4 * w + 3, 8192 * w + 1024 * gg))
    a.e("v_lshrrev_b32 v6, 5, v0")
    a.e("v_lshlrev_b32 v6, 8, v6")
    a.e("v_and_b32 v7, 15, v0")
    a.e("v_lshl_add_u32 v6, v7, 4, v6")
    a.e("v_bfe_u32 v7, v0, 4, 1")
    a.e("v_lshl_add_u32 v6, v7, 3, v6")
    a.e("s_lshl_b32 s6, s4, 12")
    a.e("s_lshl_b32 s7, s3, 10")
    a.e("s_add_u32 s6, s6, s7")
    a.e("s_add_u32 s6, s6, %d" % YT)
    a.e("s_waitcnt lgkmcnt(0)")
    for gg in range(2):
        b = RA + 16 * gg
        for r in range(4):
            a.e("v_add_f32 v%d, v%d, v%d" % (b + r, b + r, b + 4 + r))
            a.e("v_add_f32 v%d, v%d, v%d" % (b + 8 + r, b + 8 + r, b + 12 + r))
        for r in range(4):
            a.e("v_add_f32 v%d, v%d, v%d" % (b + r, b + r, b + 8 + r))
        a.e("v_cvt_pk_bf16_f32 v%d, v%d, v%d" % (b + 4, b, b + 1))
        a.e("v_cvt_pk_bf16_f32 v%d, v%d, v%d" % (b + 5, b + 2, b + 3))
        a.e("buffer_store_dwordx2 v[%d:%d], v6, s[%d:%d], s6 offen offset:%d" % (b + 4, b + 5, SRD_WS, SRD_WS + 3, 512 * gg))
    a.stamp_out()
    a.e("s_branch L_end_%s" % a.kname)


def gen_phase2(a):
    a.kname = "p2"
    a.label("mid_kernel")
    prologue(a, P2_WGS)
    a.e("s_cmp_lt_u32 s2, %d" % N_G1)
    a.e("s_cbranch_scc1 L_p2_g1")
    gen_conv(a)
    a.label("L_p2_g1")
    gen_gemm1(a)
    a.label("L_end_p2")
    a.e("s_endpgm")


P3_WGS = 256
G2_NSLOT = int(os.environ.get("G2_NSLOT", "5"))
G2_NB = int(os.environ.get("G2_NB", "5"))
P3_LDS = 10240 * G2_NSLOT


def gen_phase3(a):
    a.kname = "p3"
    a.label("fin_kernel")
    prologue(a, P3_WGS)
    vm = VM(a)
    a.e("s_lshr_b32 s4, s2, 5")
    a.e("s_and_b32 s5, s2, 7")
    a.e("s_lshl_b32 s5, s5, 2")
    a.e("s_bfe_u32 s6, s2, 0x20003")
    a.e("s_add_u32 s5, s5, s6")
    if os.environ.get("FAKE"):
        a.e("s_mov_b32 s4, 0")
        a.e("s_mov_b32 s5, 0")
    SB, SL, SBB, SKH, SWP = 48, 56, 54, 46, 47
    a.e("s_lshr_b32 s%d, s3, 1" % SKH)
    a.e("s_and_b32 s40, s3, 1")
    a.e("s_lshl_b32 s%d, s40, 1" % SWP)
    a.e("s_add_u32 s%d, s%d, s%d" % (SWP, SWP, SKH))
    a.e("s_lshl_b32 s41, s5, 2")
    a.e("s_lshl_b32 s40, s40, 1")
    a.e("s_add_u32 s41, s41, s40")
    a.e("s_mul_i32 s41, s41, 54")
    a.e("s_add_u32 s41, s41, s%d" % SKH)
    a.e("s_lshl_b32 s41, s41, 10")
    a.e("s_add_u32 s%d, s41, %d" % (SBB, ACTF))

    def gaddr(a, sc, sdst):
        a.e("s_cmp_ge_u32 s%d, 5" % sc)
        a.e("s_cselect_b32 s40, 1, 0")
        a.e("s_mul_i32 s41, s40, 5")
        a.e("s_sub_u32 s41, s%d, s41" % sc)
        a.e("s_mul_i32 s42, s4, 5")
        a.e("s_add_u32 s42, s42, s41")
        a.e("s_mul_i32 s42, s42, 54")
        a.e("s_add_u32 s42, s42, s40")
        a.e("s_lshl_b32 s42, s42, 10")
        a.e("s_add_u32 s%d, s42, %d" % (sdst, W2F))
    dma_setup(a, 10, SB, SL, gaddr)
    a.e("v_lshlrev_b32 v1, 4, v0")
    a.e("s_mul_i32 s6, s%d, 5120" % SKH)
    a.e("v_add_u32 v2, s6, v1")
    ACC = 12
    AREG = 52
    BREG = 92
    EX, EXN, EDS, EY = 132, 142, 152, 164
    assert BREG + 8 * G2_NB <= EX
    def epi_loads():
        a.e("s_lshl_b32 s6, s5, 6")
        a.e("s_lshl_b32 s7, s%d, 4" % SWP)
        a.e("s_add_u32 s6, s6, s7")
        a.e("v_and_b32 v6, 15, v0")
        a.e("v_add_u32 v6, s6, v6")
        a.e("v_lshrrev_b32 v7, 4, v0")
        a.e("s_mul_i32 s7, s4, 160")
        a.e("v_mul_u32_u24 v8, 1280, v6")
        a.e("v_lshl_add_u32 v8, v7, 3, v8")
        a.e("v_add_u32 v8, s7, v8")
        a.e("v_lshlrev_b32 v9, 3, v7")
        a.e("v_add_u32 v9, s7, v9")
        a.e("v_lshrrev_b32 v10, 5, v0")
        a.e("v_lshlrev_b32 v10, 8, v10")
        a.e("v_and_b32 v11, 15, v0")
        a.e("v_lshl_add_u32 v10, v11, 4, v10")
        a.e("v_bfe_u32 v11, v0, 4, 1")
        a.e("v_lshl_add_u32 v10, v11, 3, v10")
        a.e("s_lshr_b32 s40, s6, 4")
        a.e("s_mul_i32 s40, s40, 20480")
        a.e("s_mul_i32 s41, s4, 2560")
        a.e("s_add_u32 s40, s40, s41")
        a.e("s_add_u32 s40, s40, %d" % XNF)
        a.e("v_lshlrev_b32 v11, 14, v7")
        a.e("v_lshl_add_u32 v11, v6, 1, v11")
        a.e("s_mul_i32 s41, s4, %d" % (80 * 4096))
        a.e("s_add_u32 s41, s41, %d" % YT)
        for i in range(40):
            a.e("v_mov_b32 v%d, 0" % (ACC + i))

    extra = []
    for i in range(5):
        extra.append(["global_load_dwordx2 v[%d:%d], v8, s[%d:%d] offset:%d" % (EX + 2 * i, EX + 2 * i + 1, P_U, P_U + 1, 32 * i)])
        extra.append(["global_load_dwordx2 v[%d:%d], v9, s[%d:%d] offset:%d" % (EDS + 2 * i, EDS + 2 * i + 1, P_DSK, P_DSK + 1, 32 * i)])
        extra.append(["buffer_load_dwordx2 v[%d:%d], v10, s[%d:%d], s40 offen offset:%d" % (EXN + 2 * i, EXN + 2 * i + 1, SRD_WS, SRD_WS + 3, 512 * i)])
        for r in range(4):
            extra.append(["s_add_u32 s42, s41, %d" % ((16 * i + r) * 4096),
                          "buffer_load_ushort v%d, v11, s[%d:%d], s42 offen" % (EY + 4 * i + r, SRD_WS, SRD_WS + 3)])
    gemm_loop2(a, vm, 27, 10, 5, 2, G2_NSLOT, 2048, ACC, AREG, BREG, G2_NB, 1, 2, SB, SL, SBB, 2048, 54 * 1024, epi_loads, extra, int(os.environ.get("XPER", "2")))
    assert not extra
    vm.waitall()
    a.stamp()
    a.e("s_nop 7")
    a.e("s_barrier")
    a.e("s_mul_i32 s6, s3, 5120")
    a.e("v_add_u32 v3, s6, v1")
    a.e("s_xor_b32 s7, s3, 2")
    a.e("s_mul_i32 s7, s7, 5120")
    a.e("v_add_u32 v4, s7, v1")
    lab1 = a.newlabel("L_x")
    lab2 = a.newlabel("L_x")
    a.e("s_cmp_eq_u32 s%d, 0" % SKH)
    a.e("s_cbranch_scc1 %s" % lab1)
    for i in range(5):
        a.e("ds_write_b128 v3, v[%d:%d] offset:%d" % (ACC + 8 * i, ACC + 8 * i + 3, 1024 * i))
    a.e("s_nop 3")
    for i in range(5):
        for r in range(4):
            a.e("v_mov_b32 v%d, v%d" % (ACC + 8 * i + r, ACC + 8 * i + 4 + r))
    a.e("s_branch %s" % lab2)
    a.label(lab1)
    for i in range(5):
        a.e("ds_write_b128 v3, v[%d:%d] offset:%d" % (ACC + 8 * i + 4, ACC + 8 * i + 7, 1024 * i))
    a.label(lab2)
    a.e("s_waitcnt lgkmcnt(0)")
    a.e("s_barrier")
    for i in range(5):
        a.e("ds_read_b128 v[%d:%d], v4 offset:%d" % (ACC + 8 * i + 4, ACC + 8 * i + 7, 1024 * i))
    T = 52
    for i in range(5):
        acc = ACC + 8 * i
        x, xn, ds, y = T, T + 4, T + 8, EY + 4 * i
        for (dst, src) in ((x, EX + 2 * i), (xn, EXN + 2 * i), (ds, EDS + 2 * i)):
            a.e("v_lshlrev_b32 v%d, 16, v%d" % (dst, src))
            a.e("v_and_b32 v%d, 0xffff0000, v%d" % (dst + 1, src))
            a.e("v_lshlrev_b32 v%d, 16, v%d" % (dst + 2, src + 1))
            a.e("v_and_b32 v%d, 0xffff0000, v%d" % (dst + 3, src + 1))
        for r in range(4):
            a.e("v_lshlrev_b32 v%d, 16, v%d" % (y + r, y + r))
            a.e("v_mul_f32 v%d, v%d, v%d" % (xn + r, xn + r, ds + r))

        def rnd4(b):
            a.e("v_cvt_pk_bf16_f32 v%d, v%d, v%d" % (T + 12, b, b + 1))
            a.e("v_cvt_pk_bf16_f32 v%d, v%d, v%d" % (T + 13, b + 2, b + 3))
            a.e("v_lshlrev_b32 v%d, 16, v%d" % (b, T + 12))
            a.e("v_and_b32 v%d, 0xffff0000, v%d" % (b + 1, T + 12))
            a.e("v_lshlrev_b32 v%d, 16, v%d" % (b + 2, T + 13))
            a.e("v_and_b32 v%d, 0xffff0000, v%d" % (b + 3, T + 13))
        rnd4(xn)
        for r in range(4):
            a.e("v_add_f32 v%d, v%d, v%d" % (xn + r, xn + r, y + r))
        rnd4(xn)
        for r in range(4):
            a.e("v_add_f32 v%d, v%d, v%d" % (xn + r, xn + r, x + r))
        rnd4(xn)
        a.e("s_waitcnt lgkmcnt(%d)" % (4 - i))
        for r in range(4):
            a.e("v_add_f32 v%d, v%d, v%d" % (acc + r, acc + r, acc + 4 + r))
        rnd4(acc)
        for r in range(4):
            a.e("v_add_f32 v%d, v%d, v%d" % (xn + r, xn + r, acc + r))
        o = 80 + 2 * i
        a.e("v_cvt_pk_bf16_f32 v%d, v%d, v%d" % (o, xn, xn + 1))
        a.e("v_cvt_pk_bf16_f32 v%d, v%d, v%d" % (o + 1, xn + 2, xn + 3))
        a.e("global_store_dwordx2 v8, v[%d:%d], s[%d:%d] offset:%d" % (o, o + 1, P_OUT, P_OUT + 1, 32 * i))
    a.stamp_out()
    a.label("L_end_p3")
    a.e("s_endpgm")


def kd(name, vgpr):
    nv = (vgpr + 7) // 8 * 8
    return """.amdhsa_kernel %s
  .amdhsa_next_free_vgpr %d
  .amdhsa_next_free_sgpr 96
  .amdhsa_accum_offset %d
  .amdhsa_group_segment_fixed_size 0
  .amdhsa_kernarg_size 112
  .amdhsa_user_sgpr_count 2
  .amdhsa_user_sgpr_kernarg_segment_ptr 1
  .amdhsa_system_sgpr_workgroup_id_x 1
.end_amdhsa_kernel
""" % (name, nv, nv)


def main():
    hdr = open("cdna_kernels/%s.s.ref" % NAME).read().splitlines()
    hdr = [l for l in hdr if l.startswith(";") and "@launch" not in l]
    out = hdr[:]
    out.append("; @launch kernel=prep_kernel grid=(%d,1,1) block=(256,1,1) lds=%d" % (P1_WGS, KG_LDS))
    out.append("; @launch kernel=mid_kernel grid=(%d,1,1) block=(256,1,1) lds=%d" % (P2_WGS, P2_LDS))
    out.append("; @launch kernel=fin_kernel grid=(%d,1,1) block=(256,1,1) lds=%d" % (P3_WGS, P3_LDS))
    out.append('.amdgcn_target "amdgcn-amd-amdhsa--gfx950"')
    out.append(".text")
    a = Asm()
    for (g, n) in ((gen_phase1, "prep_kernel"), (gen_phase2, "mid_kernel"), (gen_phase3, "fin_kernel")):
        a.lines.append(".globl %s" % n)
        a.lines.append(".p2align 8")
        a.lines.append(".type %s,@function" % n)
        g(a)
    out += a.lines
    out.append('.section .rodata,"a"')
    out.append(".p2align 6")
    out.append(kd("prep_kernel", 128))
    out.append(".p2align 6")
    out.append(kd("mid_kernel", 168))
    out.append(".p2align 6")
    out.append(kd("fin_kernel", 184))
    dst = os.environ.get("OUT", "cdna_kernels/%s.s" % NAME)
    open(dst, "w").write("\n".join(out) + "\n")


if __name__ == "__main__":
    main()
```

```python
import sys, os
SKIP = os.environ.get("SKIP", "").split(",")

NAME = "parallel_sum__ssm_conv_s4d__dense_activation_mish__prompt"

L, D, NS, F = 2048, 640, 128, 1728

XNF = 0
XNT = XNF + 128 * 20 * 1024
XNT_STR = 4352
W1F = XNT + 640 * XNT_STR
W2F = W1F + 108 * 20 * 1024
KR0 = W2F + 40 * 54 * 1024
KR_STR = 4384
KR1 = KR0 + 640 * KR_STR
ACTF = KR1 + 640 * KR_STR
YT = ACTF + 128 * 54 * 1024
WS_END = YT + 640 * 4096

LOG2E = 0x3fb8aa3b
INV2PI = 0x3e22f983


STAMP = os.environ.get("STAMP", "")
ILV = int(os.environ.get("ILV", "1"))
STOREFLAG = os.environ.get("STOREFLAG", "sc0 sc1")
STOREK = os.environ.get("STOREK", "p1,p2,p3").split(",")
TRACE = os.environ.get("TRACE", "")


class Asm:
    def __init__(self):
        self.lines = []
        self.lab = 0
        self.nst = 0

    def stamp(self):
        if not STAMP or STAMP.split(":")[0] != self.kname:
            return
        i = self.nst
        self.nst += 1
        assert i < 12
        self.e("s_memtime s[%d:%d]" % (64 + 2 * i, 65 + 2 * i))

    def stamp_out(self):
        if TRACE:
            lab = self.newlabel("L_tr")
            self.e("s_waitcnt vmcnt(0) lgkmcnt(0)")
            self.e("s_memrealtime s[90:91]")
            self.e("s_cmp_lg_u32 s3, 0")
            self.e("s_cbranch_scc1 %s" % lab)
            self.e("s_lshl_b32 s92, s2, 3")
            self.e("s_add_u32 s92, s92, %d" % (64 * 1024 * 1024 + 65536 * int(self.kname[1])))
            self.e("v_mov_b32 v1, s92")
            self.e("s_waitcnt lgkmcnt(0)")
            self.e("v_mov_b32 v2, s88")
            self.e("v_mov_b32 v3, s90")
            self.e("global_store_dwordx2 v1, v[2:3], s[%d:%d]" % (P_WS, P_WS + 1))
            self.label(lab)
            return
        if not STAMP or STAMP.split(":")[0] != self.kname:
            return
        wg = int(STAMP.split(":")[1])
        self.e("s_memrealtime s[90:91]")
        self.stamp()
        self.e("s_waitcnt lgkmcnt(0)")
        lab = self.newlabel("L_st")
        self.e("s_cmp_lg_u32 s2, %d" % wg)
        self.e("s_cbranch_scc1 %s" % lab)
        self.e("s_cmp_lg_u32 s3, 0")
        self.e("s_cbranch_scc1 %s" % lab)
        self.e("v_mov_b32 v1, 0")
        for i in range(self.nst):
            self.e("s_sub_u32 s92, s%d, s64" % (64 + 2 * i))
            self.e("v_mov_b32 v2, s92")
            self.e("global_store_dword v1, v2, s[%d:%d] offset:%d" % (P_DBG, P_DBG + 1, 4 * i))
        self.e("s_sub_u32 s92, s90, s88")
        self.e("v_mov_b32 v2, s92")
        self.e("global_store_dword v1, v2, s[%d:%d] offset:%d" % (P_DBG, P_DBG + 1, 60))
        self.label(lab)
        self.nst = 1

    def e(self, s):
        if (s.startswith("buffer_store") or s.startswith("global_store")) and self.kname in STOREK:
            s = s + " " + STOREFLAG
        self.lines.append("    " + s)

    def c(self, s):
        self.lines.append("    ; " + s)

    def label(self, name):
        self.lines.append(name + ":")

    def newlabel(self, p="L"):
        self.lab += 1
        return "%s_%d" % (p, self.lab)


def vr(a, n=1):
    return "v%d" % a if n == 1 else "v[%d:%d]" % (a, a + n - 1)


def sr(a, n=1):
    return "s%d" % a if n == 1 else "s[%d:%d]" % (a, a + n - 1)


P_U, P_LOGA, P_AIM, P_CRE, P_CIM, P_LDT, P_DSK, P_BX, P_W1, P_B1, P_W2, P_OUT, P_DBG, P_WS = [8 + 2 * i for i in range(14)]
SRD_WS = 36


def prologue(a, nwg):
    if TRACE:
        a.e("s_memrealtime s[88:89]")
    if STAMP and STAMP.split(":")[0] == a.kname:
        a.e("s_memrealtime s[88:89]")
        a.e("s_memtime s[64:65]")
        a.nst = 1
    a.e("s_cmp_ge_u32 s2, %d" % nwg)
    a.e("s_cbranch_scc1 L_end_%s" % a.kname)
    a.e("s_load_dwordx16 s[8:23], s[0:1], 0")
    a.e("s_load_dwordx8 s[24:31], s[0:1], 64")
    a.e("s_load_dwordx4 s[32:35], s[0:1], 96")
    a.e("v_lshrrev_b32 v1, 6, v0")
    a.e("v_and_b32 v0, 63, v0")
    a.e("s_nop 0")
    a.e("v_readfirstlane_b32 s3, v1")
    a.e("s_waitcnt lgkmcnt(0)")
    a.stamp()
    a.e("s_mov_b32 s%d, s%d" % (SRD_WS, P_WS))
    a.e("s_and_b32 s%d, s%d, 0xffff" % (SRD_WS + 1, P_WS + 1))
    a.e("s_mov_b32 s%d, %d" % (SRD_WS + 2, WS_END))
    a.e("s_mov_b32 s%d, 0x00020000" % (SRD_WS + 3))


def make_srd(a, dst, ptr, nbytes):
    a.e("s_mov_b32 s%d, s%d" % (dst, ptr))
    a.e("s_and_b32 s%d, s%d, 0xffff" % (dst + 1, ptr + 1))
    a.e("s_mov_b32 s%d, %d" % (dst + 2, nbytes))
    a.e("s_mov_b32 s%d, 0x00020000" % (dst + 3))


def bf16r(a, dst, src):
    a.e("v_cvt_pk_bf16_f32 %s, %s, %s" % (vr(dst), vr(src), vr(src)))
    a.e("v_lshlrev_b32 %s, 16, %s" % (vr(dst), vr(dst)))


N_KG = 640
N_LN = 128
N_W1 = 108
N_W2 = 120
P1_WGS = N_KG + N_LN + N_W1 + N_W2
if os.environ.get("KGFIRST", "0") == "1":
    KG_BASE = 0
    LN_BASE = N_KG
    W1_BASE = N_KG + N_LN
    W2_BASE = N_KG + N_LN + N_W1
else:
    LN_BASE = 0
    W1_BASE = N_LN
    W2_BASE = N_LN + N_W1
    KG_BASE = N_LN + N_W1 + N_W2


KG_BLK = 16 * 272
KG_WAVE = 2 * KG_BLK
KG_KD = 4 * KG_WAVE
KG_LDS = KG_KD + 2624


def f32bits(x):
    import struct
    return "0x%x" % struct.unpack("<I", struct.pack("<f", float(x)))[0]


def gen_kgen(a):
    a.c("---- K generation ----")
    if "kg" in SKIP:
        a.e("s_branch L_end_%s" % a.kname)
    a.e("s_sub_u32 s4, s2, %d" % KG_BASE)
    a.e("s_lshl_b32 s5, s4, 8")
    a.e("s_lshl_b32 s6, s3, 6")
    a.e("s_add_u32 s5, s5, s6")
    a.e("v_and_b32 v1, 31, v0")
    a.e("v_lshlrev_b32 v2, 1, v1")
    a.e("v_add_u32 v2, s5, v2")
    a.e("s_lshl_b32 s5, s4, 1")
    a.e("v_mov_b32 v3, s5")
    LA, AIM, CRE, CIM, DT = 10, 11, 12, 13, 14
    a.e("global_load_ushort v%d, v2, s[%d:%d]" % (LA, P_LOGA, P_LOGA + 1))
    a.e("global_load_ushort v%d, v2, s[%d:%d]" % (AIM, P_AIM, P_AIM + 1))
    a.e("global_load_ushort v%d, v2, s[%d:%d]" % (CRE, P_CRE, P_CRE + 1))
    a.e("global_load_ushort v%d, v2, s[%d:%d]" % (CIM, P_CIM, P_CIM + 1))
    a.e("global_load_ushort v%d, v3, s[%d:%d]" % (DT, P_LDT, P_LDT + 1))
    lab = a.newlabel("L_kgz")
    a.e("s_cmp_lg_u32 s3, 0")
    a.e("s_cbranch_scc1 %s" % lab)
    a.e("s_mul_i32 s6, s4, %d" % XNT_STR)
    a.e("s_add_u32 s6, s6, %d" % XNT)
    a.e("v_mov_b32 v3, 0")
    a.e("v_lshlrev_b32 v4, 2, v0")
    a.e("v_cmp_gt_u32 vcc, 60, v0")
    a.e("s_and_saveexec_b64 s[40:41], vcc")
    a.e("buffer_store_dword v3, v4, s[%d:%d], s6 offen" % (SRD_WS, SRD_WS + 3))
    a.e("s_mov_b64 exec, s[40:41]")
    a.label(lab)
    a.e("s_mul_i32 s42, s3, %d" % KG_WAVE)
    a.e("v_lshrrev_b32 v4, 5, v0")
    a.e("v_cvt_f32_u32 v9, v4")
    a.e("v_mul_u32_u24 v4, %d, v4" % KG_BLK)
    a.e("v_lshl_add_u32 v4, v1, 3, v4")
    a.e("v_add_u32 v4, s42, v4")
    a.e("v_and_b32 v5, 15, v0")
    a.e("v_mul_u32_u24 v5, 272, v5")
    a.e("v_lshrrev_b32 v6, 4, v0")
    a.e("v_lshl_add_u32 v5, v6, 6, v5")
    a.e("v_add_u32 v5, s42, v5")
    a.e("v_lshlrev_b32 v6, 4, v0")
    a.e("v_add_u32 v6, s42, v6")
    a.e("s_mov_b32 s43, 0x%x" % LOG2E)
    a.e("s_mov_b32 s44, 0x%x" % INV2PI)
    a.e("s_mov_b32 vcc_lo, 0")
    a.e("s_mov_b32 vcc_hi, -1")
    ACC = 100
    for i in range(16):
        a.e("v_mov_b32 v%d, 0" % (ACC + i))
    a.e("s_waitcnt vmcnt(0)")
    a.stamp()
    a.e("v_lshlrev_b32 v%d, 16, v%d" % (DT, DT))
    a.e("v_lshlrev_b32 v%d, 16, v%d" % (LA, LA))
    a.e("v_mul_f32 v%d, s43, v%d" % (DT, DT))
    a.e("v_mul_f32 v%d, s43, v%d" % (LA, LA))
    a.e("v_exp_f32 v%d, v%d" % (DT, DT))
    a.e("v_exp_f32 v%d, v%d" % (LA, LA))
    a.e("v_lshlrev_b32 v%d, 16, v%d" % (AIM, AIM))
    a.e("v_lshlrev_b32 v%d, 16, v%d" % (CRE, CRE))
    a.e("v_lshlrev_b32 v%d, 16, v%d" % (CIM, CIM))
    bf16r(a, DT, DT)
    bf16r(a, LA, LA)
    a.e("v_mul_f32 v%d, v%d, v%d" % (LA, LA, DT))
    a.e("v_mul_f32 v%d, v%d, v%d" % (AIM, AIM, DT))
    a.e("v_mul_f32 v%d, v%d, v%d" % (CRE, CRE, DT))
    a.e("v_mul_f32 v%d, v%d, v%d" % (CIM, CIM, DT))
    a.e("v_mul_f32 v%d, s43, v%d" % (LA, LA))
    a.e("v_mul_f32 v%d, s44, v%d" % (AIM, AIM))
    a.e("v_add_f32 v%d, v%d, v%d" % (CRE, CRE, CRE))
    a.e("v_add_f32 v%d, v%d, v%d" % (CIM, CIM, CIM))
    NAIM = 15
    a.e("v_sub_f32 v%d, 0, v%d" % (NAIM, AIM))
    a.e("v_cndmask_b32 v%d, v%d, v%d, vcc" % (NAIM, NAIM, AIM))
    CM = 16
    a.e("v_cndmask_b32 v%d, 1.0, v%d, vcc" % (CM, CRE))
    a.e("v_cndmask_b32 v%d, 0, v%d, vcc" % (CM + 1, CIM))

    def cexps(lst, tbase):
        for i, (dst, p0, p1, ar) in enumerate(lst):
            t = tbase + 3 * i
            if p0 == p1:
                a.e("v_mov_b32 v%d, %s" % (t, f32bits(p0)))
            else:
                a.e("v_mul_f32 v%d, %s, v9" % (t, f32bits(p1 - p0)))
                a.e("v_add_f32 v%d, %s, v%d" % (t, f32bits(p0), t))
        for i, (dst, p0, p1, ar) in enumerate(lst):
            t = tbase + 3 * i
            a.e("v_mul_f32 v%d, -v%d, v%d" % (t + 1, LA, t))
            a.e("v_mul_f32 v%d, v%d, v%d" % (t + 2, ar, t))
        for i, (dst, p0, p1, ar) in enumerate(lst):
            t = tbase + 3 * i
            a.e("v_exp_f32 v%d, v%d" % (t + 1, t + 1))
            a.e("v_fract_f32 v%d, v%d" % (t + 2, t + 2))
        for i, (dst, p0, p1, ar) in enumerate(lst):
            t = tbase + 3 * i
            a.e("v_cos_f32 v%d, v%d" % (dst, t + 2))
            a.e("v_sin_f32 v%d, v%d" % (dst + 1, t + 2))
        a.e("s_nop 0")
        for i, (dst, p0, p1, ar) in enumerate(lst):
            t = tbase + 3 * i
            a.e("v_mul_f32 v%d, v%d, v%d" % (dst, dst, t + 1))
            a.e("v_mul_f32 v%d, v%d, v%d" % (dst + 1, dst + 1, t + 1))

    def cmul(d, x, y):
        return ["v_pk_mul_f32 v[%d:%d], v[%d:%d], v[%d:%d] op_sel:[0,0] op_sel_hi:[0,1]" % (d, d + 1, x, x + 1, y, y + 1),
                "v_pk_fma_f32 v[%d:%d], v[%d:%d], v[%d:%d], v[%d:%d] op_sel:[1,1,0] op_sel_hi:[1,0,1] neg_lo:[1,0,0]" % (
                    d, d + 1, x, x + 1, y, y + 1, d, d + 1)]

    def emit(lst):
        for s in lst:
            a.e(s)

    F1, S2, FA, FB, T0, T1, T2 = 18, 20, 22, 24, 26, 28, 30
    cexps([(F1, 8, 1, NAIM), (S2, 64, 128, NAIM), (FA, 2, 128, AIM), (FB, 128, 128, AIM),
           (T0, 256, 1024, AIM), (T1, 384, 1536, AIM), (T2, 512, 2048, AIM)], 60)
    a.stamp()
    Q, S1, S3 = 32, 34, 36
    CH = [40, 44, 48, 52]
    emit(cmul(Q, F1, F1))
    emit(cmul(CH[2], S2, CM))
    emit(cmul(S1, Q, Q))
    a.e("v_mov_b32 v%d, v%d" % (CH[0], CM))
    a.e("v_mov_b32 v%d, v%d" % (CH[0] + 1, CM + 1))
    emit(cmul(CH[1], S1, CM))
    emit(cmul(CH[3], S1, CH[2]))
    rows1 = [[0, 1, 2, 3], [4, 5, 6, 7], [8, 9, 10, 11], [12, 13, 14, 15]]
    rows2 = [[0, 1, 2, 3], [4, 5, 6, 7], [8, 10, 12, 14], [9, 11, 13, 15]]

    def chains(rows, facs):
        out = []
        for i in range(4):
            for q in range(4):
                cur = CH[q] + 2 * (i & 1)
                out.append("ds_write_b64 v4, v[%d:%d] offset:%d" % (cur, cur + 1, 272 * rows[q][i]))
            if i < 3:
                m = [cmul(CH[q] + 2 * ((i + 1) & 1), CH[q] + 2 * (i & 1), facs[q]) for q in range(4)]
                for s in range(2):
                    for q in range(4):
                        out.append(m[q][s])
        return out
    emit(chains(rows1, [F1] * 4))
    RY, RX = 64, 80
    for j in range(4):
        a.e("ds_read_b128 v[%d:%d], v5 offset:%d" % (RY + 4 * j, RY + 4 * j + 3, 16 * j))
        a.e("ds_read_b128 v[%d:%d], v5 offset:%d" % (RX + 4 * j, RX + 4 * j + 3, KG_BLK + 16 * j))
    a.stamp()
    pre = []
    pre += cmul(Q, FA, FA)
    pre += cmul(CH[0], T0, CRE)
    pre += cmul(CH[1], T1, CRE)
    pre += cmul(CH[2], T2, CRE)
    pre += cmul(CH[3], Q, CH[2])
    emit(pre)
    a.e("s_waitcnt lgkmcnt(0)")
    ch2 = chains(rows2, [FA, FA, FB, FB])
    mf = ["v_mfma_f32_16x16x4_f32 v[%d:%d], v%d, v%d, v[%d:%d]" % (
        ACC + 4 * (k & 1), ACC + 4 * (k & 1) + 3, RX + k, RY + k, ACC + 4 * (k & 1), ACC + 4 * (k & 1) + 3) for k in range(16)]
    per = (len(ch2) + 15) // 16
    idx = 0
    for k in range(16):
        a.e(mf[k])
        for s in ch2[idx:idx + per]:
            a.e(s)
        idx += per
    assert idx >= len(ch2)
    RX1, RX2 = 16, 32
    for j in range(4):
        a.e("ds_read_b128 v[%d:%d], v5 offset:%d" % (RX1 + 4 * j, RX1 + 4 * j + 3, 16 * j))
        a.e("ds_read_b128 v[%d:%d], v5 offset:%d" % (RX2 + 4 * j, RX2 + 4 * j + 3, KG_BLK + 16 * j))
    a.e("s_waitcnt lgkmcnt(0)")
    a.stamp()
    mf2 = []
    for k in range(16):
        mf2.append("v_mfma_f32_16x16x4_f32 v[%d:%d], v%d, v%d, v[%d:%d]" % (ACC + 8, ACC + 11, RX1 + k, RY + k, ACC + 8, ACC + 11))
        mf2.append("v_mfma_f32_16x16x4_f32 v[%d:%d], v%d, v%d, v[%d:%d]" % (ACC + 12, ACC + 15, RX2 + k, RY + k, ACC + 12, ACC + 15))
    im = []
    im.append("s_lshl_b32 s5, s3, 6")
    im.append("v_add_u32 v1, s5, v0")

    def srcaddr(dst, j, sh, segbase, t0, t1):
        im.append("v_lshrrev_b32 v%d, %d, v%d" % (t0, sh + 4, j))
        im.append("v_lshlrev_b32 v%d, %d, v%d" % (t0, sh, t0))
        if sh:
            im.append("v_and_b32 v%d, %d, v%d" % (t1, (1 << sh) - 1, j))
            im.append("v_add3_u32 v%d, v%d, v%d, %d" % (t0, t0, t1, segbase))
        else:
            im.append("v_add_u32 v%d, %d, v%d" % (t0, segbase, t0))
        im.append("v_bfe_u32 v%d, v%d, %d, 4" % (dst, j, sh))
        im.append("v_lshlrev_b32 v%d, 4, v%d" % (dst, dst))
        im.append("v_lshrrev_b32 v%d, 2, v%d" % (t1, t0))
        im.append("v_lshl_add_u32 v%d, v%d, 8, v%d" % (dst, t1, dst))
        im.append("v_and_b32 v%d, 3, v%d" % (t1, t0))
        im.append("v_lshl_add_u32 v%d, v%d, 2, v%d" % (dst, t1, dst))
    srcaddr(48, 1, 3, 0, 52, 53)
    im.append("v_and_b32 v54, 127, v1")
    srcaddr(49, 54, 2, 16, 52, 53)
    srcaddr(50, 54, 1, 24, 52, 53)
    im.append("v_cmp_gt_u32 vcc, 128, v1")
    im.append("v_cndmask_b32 v49, v50, v49, vcc")
    im.append("v_min_u32 v54, 128, v1")
    srcaddr(50, 54, 0, 32, 52, 53)
    im.append("v_lshlrev_b32 v51, 2, v1")
    im.append("v_add_u32 v51, %d, v51" % KG_KD)
    XA = 84
    im.append("v_lshlrev_b32 v52, 3, v1")
    im.append("v_sub_u32 v52, 2049, v52")
    im.append("v_cvt_f32_u32 v53, v52")
    im.append("v_lshlrev_b32 v52, 2, v52")
    im.append("v_add_u32 v52, %d, v52" % KG_KD)
    im.append("s_mov_b32 s45, 0x%x" % ((KG_KD - 4 * 17024) & 0xffffffff))
    TF = 116
    for e in range(9):
        im.append("v_subrev_f32 v%d, %s, v53" % (TF + e, "%d.0" % e if e in (0, 1, 2, 4) else f32bits(e)))
        im.append("v_max_f32 v%d, 0x43000000, v%d" % (TF + e, TF + e))
    for e in range(0, 9, 2):
        im.append("v_cvt_pk_bf16_f32 v%d, v%d, v%d" % (TF + e, TF + e, TF + e + 1 if e < 8 else TF + e))
    for e in range(9):
        if e & 1:
            im.append("v_lshrrev_b32 v%d, 16, v%d" % (XA + e, TF + e - 1))
        else:
            im.append("v_and_b32 v%d, 0xffff, v%d" % (XA + e, TF + e))
        im.append("v_lshl_add_u32 v%d, v%d, 2, s45" % (XA + e, XA + e))
        im.append("v_subrev_u32 v%d, %d, v52" % (TF + 9, 4 * e))
        im.append("v_min_u32 v%d, v%d, v%d" % (XA + e, XA + e, TF + 9))
    im.append("v_lshlrev_b32 v5, 4, v1")
    per = (len(im) + 31) // 32
    idx = 0
    for k in range(32):
        a.e(mf2[k])
        for s in im[idx:idx + per]:
            a.e(s)
        idx += per
    assert idx >= len(im)
    a.e("s_nop 7")
    a.e("s_nop 7")
    for i in range(4):
        a.e("v_add_f32 v%d, v%d, v%d" % (ACC + 4 + i, ACC + 4 + i, ACC + i))
    for b in range(3):
        a.e("ds_write_b128 v6, v[%d:%d] offset:%d" % (ACC + 4 + 4 * b, ACC + 7 + 4 * b, 1024 * b))
    a.e("s_waitcnt lgkmcnt(0)")
    a.e("s_barrier")
    a.stamp()
    RR = 16
    for r in range(3):
        for w in range(4):
            a.e("ds_read_b32 v%d, v%d offset:%d" % (RR + 4 * r + w, 48 + r, KG_WAVE * w))
    for r in range(3):
        a.e("s_waitcnt lgkmcnt(%d)" % (8 - 4 * r))
        a.e("v_add_f32 v%d, v%d, v%d" % (RR + 4 * r, RR + 4 * r, RR + 1 + 4 * r))
        a.e("v_add_f32 v%d, v%d, v%d" % (RR + 2 + 4 * r, RR + 2 + 4 * r, RR + 3 + 4 * r))
        a.e("v_add_f32 v%d, v%d, v%d" % (RR + 4 * r, RR + 4 * r, RR + 2 + 4 * r))
    a.e("ds_write_b32 v51, v%d" % RR)
    a.e("ds_write_b32 v51, v%d offset:1024" % (RR + 4))
    a.e("v_cmp_gt_u32 vcc, 129, v1")
    a.e("s_and_saveexec_b64 s[40:41], vcc")
    a.e("ds_write_b32 v51, v%d offset:2048" % (RR + 8))
    a.e("s_mov_b64 exec, s[40:41]")
    a.e("s_mul_i32 s6, s4, %d" % KR_STR)
    a.e("s_add_u32 s6, s6, %d" % KR0)
    a.e("s_add_u32 s7, s6, %d" % (KR1 - KR0))
    a.e("s_waitcnt lgkmcnt(0)")
    a.e("s_barrier")
    a.stamp()
    for e in range(9):
        a.e("ds_read_b32 v%d, v%d" % (50 + e, XA + e))
    lab = a.newlabel("L_kgx")
    a.e("s_cmp_lg_u32 s3, 3")
    a.e("s_cbranch_scc1 %s" % lab)
    a.e("v_mov_b32 v30, %d" % KG_KD)
    a.e("ds_read_b64 v[32:33], v30")
    for i in range(8):
        a.e("v_mov_b32 v%d, 0" % (36 + i))
    a.e("v_lshlrev_b32 v31, 4, v0")
    a.e("v_add_u32 v31, 4096, v31")
    a.e("v_cmp_eq_u32 vcc, 0, v0")
    a.e("s_waitcnt lgkmcnt(0)")
    a.e("v_cvt_pk_bf16_f32 v34, v32, v36")
    a.e("v_cvt_pk_bf16_f32 v35, v33, v32")
    a.e("v_cndmask_b32 v36, v36, v34, vcc")
    a.e("v_cndmask_b32 v40, v40, v35, vcc")
    a.e("v_cmp_gt_u32 vcc, 18, v0")
    a.e("s_and_saveexec_b64 s[40:41], vcc")
    a.e("buffer_store_dwordx4 v[36:39], v31, s[%d:%d], s6 offen" % (SRD_WS, SRD_WS + 3))
    a.e("buffer_store_dwordx4 v[40:43], v31, s[%d:%d], s7 offen" % (SRD_WS, SRD_WS + 3))
    a.e("s_mov_b64 exec, s[40:41]")
    a.label(lab)
    a.e("v_cmp_ne_u32 vcc, 0, v1")
    a.e("s_waitcnt lgkmcnt(0)")
    a.e("v_cndmask_b32 v50, 0, v50, vcc")
    a.e("v_cndmask_b32 v51, 0, v51, vcc")
    for e in range(4):
        a.e("v_cvt_pk_bf16_f32 v%d, v%d, v%d" % (60 + e, 51 + 2 * e, 52 + 2 * e))
        a.e("v_cvt_pk_bf16_f32 v%d, v%d, v%d" % (64 + e, 50 + 2 * e, 51 + 2 * e))
    a.e("buffer_store_dwordx4 v[60:63], v5, s[%d:%d], s6 offen" % (SRD_WS, SRD_WS + 3))
    a.e("buffer_store_dwordx4 v[64:67], v5, s[%d:%d], s7 offen" % (SRD_WS, SRD_WS + 3))
    a.stamp_out()
    a.e("s_branch L_end_%s" % a.kname)


def gen_ln(a):
    a.c("---- LayerNorm: row block s2-640 ----")
    if "ln" in SKIP:
        a.e("s_branch L_end_%s" % a.kname)
    a.e("s_sub_u32 s4, s2, %d" % LN_BASE)
    a.e("s_lshl_b32 s5, s4, 4")
    a.e("s_lshl_b32 s6, s3, 2")
    a.e("s_add_u32 s5, s5, s6")
    a.e("v_lshrrev_b32 v1, 4, v0")
    a.e("v_and_b32 v2, 15, v0")
    a.e("v_add_u32 v3, s5, v1")
    a.e("v_mul_u32_u24 v3, 1280, v3")
    a.e("v_lshl_add_u32 v3, v2, 4, v3")
    for i in range(5):
        a.e("global_load_dwordx4 v[%d:%d], v3, s[%d:%d] offset:%d" % (10 + 4 * i, 13 + 4 * i, P_U, P_U + 1, 256 * i))
    a.e("s_waitcnt vmcnt(0)")
    for j in range(20):
        a.e("v_lshlrev_b32 v%d, 16, v%d" % (40 + 2 * j, 10 + j))
        a.e("v_and_b32 v%d, 0xffff0000, v%d" % (41 + 2 * j, 10 + j))
    a.e("v_add_f32 v4, v40, v41")
    for j in range(2, 40):
        a.e("v_add_f32 v4, v4, v%d" % (40 + j))

    def red16(reg, tmp):
        for off in (0x041F, 0x081F, 0x101F, 0x201F):
            a.e("ds_swizzle_b32 v%d, v%d offset:0x%x" % (tmp, reg, off))
            a.e("s_waitcnt lgkmcnt(0)")
            a.e("v_add_f32 v%d, v%d, v%d" % (reg, reg, tmp))
    red16(4, 5)
    a.e("s_mov_b32 s7, 0x3acccccd")
    a.e("v_mul_f32 v4, s7, v4")
    a.e("v_sub_f32 v6, v40, v4")
    a.e("v_mul_f32 v5, v6, v6")
    for j in range(1, 40):
        a.e("v_sub_f32 v6, v%d, v4" % (40 + j))
        a.e("v_fma_f32 v5, v6, v6, v5")
    red16(5, 6)
    a.e("v_mul_f32 v5, s7, v5")
    bf16r(a, 4, 4)
    bf16r(a, 5, 5)
    a.e("v_add_f32 v5, 0x3727c5ac, v5")
    bf16r(a, 5, 5)
    a.e("v_sqrt_f32 v5, v5")
    a.e("s_nop 0")
    bf16r(a, 5, 5)
    a.e("v_rcp_f32 v6, v5")
    for j in range(0, 40, 2):
        x0, x1 = 40 + j, 41 + j
        a.e("v_sub_f32 v%d, v%d, v4" % (x0, x0))
        a.e("v_sub_f32 v%d, v%d, v4" % (x1, x1))
        a.e("v_cvt_pk_bf16_f32 v7, v%d, v%d" % (x0, x1))
        a.e("v_lshlrev_b32 v%d, 16, v7" % x0)
        a.e("v_and_b32 v%d, 0xffff0000, v7" % x1)
        a.e("v_mul_f32 v7, v%d, v6" % x0)
        a.e("v_mul_f32 v8, v%d, v6" % x1)
        a.e("v_fma_f32 v%d, -v7, v5, v%d" % (x0, x0))
        a.e("v_fma_f32 v%d, -v8, v5, v%d" % (x1, x1))
        a.e("v_fma_f32 v7, v%d, v6, v7" % x0)
        a.e("v_fma_f32 v8, v%d, v6, v8" % x1)
        a.e("v_cvt_pk_bf16_f32 v%d, v7, v8" % (10 + j // 2))
    a.e("s_mul_i32 s40, s4, 20480")
    a.e("s_add_u32 s40, s40, %d" % XNF)
    a.e("v_lshrrev_b32 v7, 2, v2")
    a.e("v_lshlrev_b32 v7, 10, v7")
    a.e("v_and_b32 v8, 3, v2")
    a.e("v_lshl_add_u32 v7, v8, 8, v7")
    a.e("v_add_u32 v8, s6, v1")
    a.e("v_lshl_add_u32 v7, v8, 4, v7")
    for i in range(5):
        a.e("s_add_u32 s41, s40, %d" % (4096 * i))
        a.e("buffer_store_dwordx4 v[%d:%d], v7, s[%d:%d], s41 offen" % (10 + 4 * i, 13 + 4 * i, SRD_WS, SRD_WS + 3))
    LSTR = 1296
    a.e("v_mul_u32_u24 v9, %d, v8" % LSTR)
    a.e("v_lshl_add_u32 v9, v2, 4, v9")
    for i in range(5):
        a.e("ds_write_b128 v9, v[%d:%d] offset:%d" % (10 + 4 * i, 13 + 4 * i, 256 * i))
    a.e("s_waitcnt lgkmcnt(0)")
    a.e("s_barrier")
    a.e("s_lshl_b32 s5, s3, 6")
    a.e("v_add_u32 v1, s5, v0")
    a.e("s_lshl_b32 s40, s4, 5")
    a.e("s_add_u32 s40, s40, %d" % (XNT + 240))
    for j in range(3):
        a.e("v_add_u32 v2, %d, v1" % (256 * j))
        if j == 2:
            a.e("v_cmp_gt_u32 vcc, 640, v2")
            a.e("s_and_saveexec_b64 s[42:43], vcc")
        a.e("v_lshlrev_b32 v3, 1, v2")
        for r in range(16):
            a.e("ds_read_u16 v%d, v3 offset:%d" % (64 + r, LSTR * r))
        a.e("v_mul_u32_u24 v4, %d, v2" % XNT_STR)
        a.e("s_waitcnt lgkmcnt(0)")
        for r in range(8):
            a.e("v_lshl_or_b32 v%d, v%d, 16, v%d" % (40 + 8 * j + r, 65 + 2 * r, 64 + 2 * r))
        a.e("buffer_store_dwordx4 v[%d:%d], v4, s[%d:%d], s40 offen" % (40 + 8 * j, 43 + 8 * j, SRD_WS, SRD_WS + 3))
        a.e("buffer_store_dwordx4 v[%d:%d], v4, s[%d:%d], s40 offen offset:16" % (44 + 8 * j, 47 + 8 * j, SRD_WS, SRD_WS + 3))
        if j == 2:
            a.e("s_mov_b64 exec, s[42:43]")
    a.stamp_out()
    a.e("s_branch L_end_%s" % a.kname)


def gen_wt(a, which):
    if which == 1:
        base_id = W1_BASE
        ncols = F
        ptr = P_W1
        dst = W1F
        nkb = 20
        nj = 5
    else:
        base_id = W2_BASE
        ncols = D
        ptr = P_W2
        dst = W2F
        nkb = 54
        nj = 5
    a.c("---- W%d transposition ----" % which)
    if "wt" in SKIP:
        a.e("s_branch L_end_%s" % a.kname)
    a.e("s_sub_u32 s4, s2, %d" % base_id)
    if which == 1:
        a.e("s_mov_b32 s5, s4")
        a.e("s_mov_b32 s6, s3")
        a.e("s_mov_b32 s7, 20")
    else:
        a.e("s_cmp_ge_u32 s4, 40")
        a.e("s_cselect_b32 s40, 1, 0")
        a.e("s_cmp_ge_u32 s4, 80")
        a.e("s_cselect_b32 s41, 1, 0")
        a.e("s_add_u32 s40, s40, s41")
        a.e("s_mul_i32 s41, s40, 40")
        a.e("s_sub_u32 s5, s4, s41")
        a.e("s_mul_i32 s6, s40, 18")
        a.e("s_add_u32 s7, s6, 18")
        a.e("s_add_u32 s6, s6, s3")
    make_srd(a, 44, ptr, D * F * 2)
    a.e("v_lshrrev_b32 v1, 4, v0")
    a.e("v_mul_u32_u24 v1, %d, v1" % (8 * ncols * 2))
    a.e("v_and_b32 v2, 15, v0")
    a.e("v_lshl_add_u32 v1, v2, 1, v1")
    a.e("s_lshl_b32 s40, s5, 5")
    a.e("v_add_u32 v1, s40, v1")
    a.e("v_lshlrev_b32 v2, 4, v0")
    a.e("s_mul_i32 s41, s5, %d" % (nkb * 1024))
    a.e("s_add_u32 s41, s41, %d" % dst)
    for j in range(nj):
        lab = a.newlabel("L_wt")
        a.e("s_add_u32 s42, s6, %d" % (4 * j))
        a.e("s_cmp_ge_u32 s42, s7")
        a.e("s_cbranch_scc1 %s" % lab)
        a.e("s_mul_i32 s43, s42, %d" % (32 * ncols * 2))
        for e in range(8):
            a.e("s_add_u32 s48, s43, %d" % (e * ncols * 2))
            a.e("buffer_load_ushort v%d, v1, s[44:47], s48 offen" % (40 + 8 * j + e))
        a.label(lab)
    for j in range(nj):
        lab = a.newlabel("L_wt")
        a.e("s_add_u32 s42, s6, %d" % (4 * j))
        a.e("s_cmp_ge_u32 s42, s7")
        a.e("s_cbranch_scc1 %s" % lab)
        a.e("s_lshl_b32 s43, s42, 10")
        a.e("s_add_u32 s43, s43, s41")
        a.e("s_waitcnt vmcnt(0)")
        for e in range(4):
            a.e("v_lshl_or_b32 v%d, v%d, 16, v%d" % (10 + 4 * j + e, 41 + 8 * j + 2 * e, 40 + 8 * j + 2 * e))
        a.e("buffer_store_dwordx4 v[%d:%d], v2, s[%d:%d], s43 offen" % (10 + 4 * j, 13 + 4 * j, SRD_WS, SRD_WS + 3))
        a.label(lab)
    a.stamp_out()
    a.e("s_branch L_end_%s" % a.kname)


def gen_phase1(a):
    a.kname = "p1"
    a.label("prep_kernel")
    prologue(a, P1_WGS)
    if KG_BASE == 0:
        a.e("s_cmp_lt_u32 s2, %d" % N_KG)
    else:
        a.e("s_cmp_ge_u32 s2, %d" % KG_BASE)
    a.e("s_cbranch_scc1 L_p1_kg")
    a.e("s_cmp_lt_u32 s2, %d" % W1_BASE)
    a.e("s_cbranch_scc1 L_p1_ln")
    a.e("s_cmp_lt_u32 s2, %d" % W2_BASE)
    a.e("s_cbranch_scc1 L_p1_w1")
    gen_wt(a, 2)
    a.label("L_p1_w1")
    gen_wt(a, 1)
    a.label("L_p1_ln")
    gen_ln(a)
    a.label("L_p1_kg")
    gen_kgen(a)
    a.label("L_end_p1")
    a.e("s_endpgm")


class VM:
    def __init__(self, a):
        self.a = a
        self.q = []

    def issue(self, tag):
        self.q.append(tag)

    def wait(self, tag):
        idx = [i for i, t in enumerate(self.q) if t == tag]
        if not idx:
            return
        n = len(self.q) - 1 - idx[-1]
        assert n <= 63
        self.a.e("s_waitcnt vmcnt(%d)" % n)
        self.q = self.q[idx[-1] + 1:]

    def wait2(self, t1, t2):
        idx = [i for i, t in enumerate(self.q) if t in (t1, t2)]
        if not idx:
            return
        n = len(self.q) - 1 - idx[-1]
        assert n <= 63
        self.a.e("s_waitcnt vmcnt(%d)" % n)
        self.q = self.q[idx[-1] + 1:]

    def waitall(self):
        if self.q:
            self.a.e("s_waitcnt vmcnt(0)")
            self.q = []


def gemm_loop(a, vm, nst, kbs, nA, nB, nslots, slot_bytes, a_src, b_src, a_kstride_chunks,
              wave_bcols, acc0, regs, vlane16, vrdA, vrdB, sbase, sldso):
    nch = kbs * (nA + nB)
    nld = (nch + 3) // 4

    def dma(st):
        slot = st % nslots
        out = []
        for j in range(nld):
            out.append(["s_add_u32 m0, s%d, %d" % (sldso + j, slot * slot_bytes),
                        "s_add_u32 s6, s%d, %d" % (sbase + j, st * kbs * 1024),
                        "buffer_load_dwordx4 v%d, s[%d:%d], s6 offen lds" % (vlane16, SRD_WS, SRD_WS + 3)])
        return out

    def reads(st, rs):
        slot = st % nslots
        r = regs[rs]
        out = []
        for kk in range(kbs):
            for i in range(nA):
                off = slot * slot_bytes + (kk * nA + i) * 1024
                va = vrdA
                if off >= 65536:
                    off -= 32768
                    va = vrdA + 2
                out.append(["ds_read_b128 v[%d:%d], v%d offset:%d" % (r, r + 3, va, off)])
                r += 4
            for jj in range(wave_bcols):
                off = slot * slot_bytes + (kbs * nA + kk * nB + jj) * 1024
                vb = vrdB
                if off + (nB - wave_bcols) * 1024 >= 65536:
                    off -= 32768
                    vb = vrdB + 2
                out.append(["ds_read_b128 v[%d:%d], v%d offset:%d" % (r, r + 3, vb, off)])
                r += 4
        return out

    def mfmas(rs):
        per = (nA + wave_bcols) * 4
        out = []
        for kk in range(kbs):
            r = regs[rs] + kk * per
            for i in range(nA):
                for jj in range(wave_bcols):
                    acc = acc0 + (i * wave_bcols + jj) * 4
                    out.append("v_mfma_f32_16x16x32_bf16 v[%d:%d], v[%d:%d], v[%d:%d], v[%d:%d]" % (
                        acc, acc + 3, r + 4 * i, r + 4 * i + 3, r + 4 * (nA + jj), r + 4 * (nA + jj) + 3, acc, acc + 3))
        return out

    def emit(groups, tag=None):
        for g in groups:
            for s in g:
                a.e(s)
            if tag and g[-1].startswith("buffer"):
                vm.issue(tag)

    for st in range(min(nslots, nst)):
        emit(dma(st), "st%d" % st)
    vm.wait("st0")
    a.stamp()
    a.e("s_barrier")
    emit(reads(0, 0))
    for i in range(nst):
        a.e("s_waitcnt lgkmcnt(0)")
        other = []
        if i + 1 < nst:
            vm.wait("st%d" % (i + 1))
            a.e("s_barrier")
            rd = reads(i + 1, (i + 1) % 2)
            dm = dma(i + nslots) if i + nslots < nst else []
            if ILV == 0:
                emit(dm, "st%d" % (i + nslots))
                emit(rd)
            else:
                k = 0
                while rd or dm:
                    if rd:
                        other.append(rd.pop(0))
                    if rd and k % 2 == 0:
                        other.append(rd.pop(0))
                    if dm:
                        other.append(dm.pop(0))
                    k += 1
        m = mfmas(i % 2)
        no = len(other)
        nm = len(m)
        done = 0
        for k in range(nm):
            a.e(m[k])
            tgt = ((k + 1) * no + nm - 1) // nm if ILV == 1 else min(no, (k + 1) * ILV)
            while done < tgt:
                emit([other[done]], "st%d" % (i + nslots))
                done += 1
        assert done == no


def gemm_loop2(a, vm, nst, nAc, nA, nBw, nslots, kstride, acc0, aregs, bregs, nb,
               vlane16, vrdA, sbase, sldso, sB, bstride, bcolstride, after_prologue=None, extra=None, extra_per=4):
    nfull = nAc // 4
    rem = nAc - 4 * nfull
    slot_bytes = nAc * 1024

    def dma(st):
        slot = st % nslots
        out = []
        for j in range(nfull):
            out.append(["s_add_u32 m0, s%d, %d" % (sldso + j, slot * slot_bytes),
                        "s_add_u32 s6, s%d, %d" % (sbase + j, st * kstride),
                        "buffer_load_dwordx4 v%d, s[%d:%d], s6 offen lds" % (vlane16, SRD_WS, SRD_WS + 3)])
        if rem:
            j = nfull
            out.append(["s_add_u32 m0, s%d, %d" % (sldso + j, slot * slot_bytes),
                        "s_add_u32 s6, s%d, %d" % (sbase + j, st * kstride),
                        "s_mov_b64 exec, 0x%x" % ((1 << (16 * rem)) - 1),
                        "buffer_load_dwordx4 v%d, s[%d:%d], s6 offen lds" % (vlane16, SRD_WS, SRD_WS + 3),
                        "s_mov_b64 exec, -1"])
        return out

    def bload(st):
        out = []
        r = bregs + (st % nb) * 4 * nBw
        for jj in range(nBw):
            out.append(["s_add_u32 s7, s%d, %d" % (sB, st * bstride + jj * bcolstride),
                        "buffer_load_dwordx4 v[%d:%d], v%d, s[%d:%d], s7 offen" % (r + 4 * jj, r + 4 * jj + 3, vlane16, SRD_WS, SRD_WS + 3)])
        return out

    def reads(st):
        slot = st % nslots
        r = aregs + (st % 2) * 4 * nA
        out = []
        for i in range(nA):
            off = slot * slot_bytes + i * 1024
            assert off + (nAc - nA) * 1024 < 65536
            out.append(["ds_read_b128 v[%d:%d], v%d offset:%d" % (r + 4 * i, r + 4 * i + 3, vrdA, off)])
        return out

    def mfmas(st):
        ra = aregs + (st % 2) * 4 * nA
        rb = bregs + (st % nb) * 4 * nBw
        out = []
        for i in range(nA):
            for jj in range(nBw):
                acc = acc0 + (i * nBw + jj) * 4
                out.append("v_mfma_f32_16x16x32_bf16 v[%d:%d], v[%d:%d], v[%d:%d], v[%d:%d]" % (
                    acc, acc + 3, ra + 4 * i, ra + 4 * i + 3, rb + 4 * jj, rb + 4 * jj + 3, acc, acc + 3))
        return out

    def emit(groups, tag=None):
        for g in groups:
            for s in g:
                a.e(s)
            if tag:
                vm.issue(tag)

    PRO = int(os.environ.get("PRO", "9"))
    na = nbn = 0
    for st in range(max(nslots, nb - 1)):
        if st < nslots and st < nst and st < PRO:
            emit(dma(st), "a%d" % st)
            na = st + 1
        if st < nb - 1 and st < nst and st < PRO:
            emit(bload(st), "b%d" % st)
            nbn = st + 1
    a.stamp()
    if after_prologue:
        after_prologue()
    a.stamp()
    vm.wait("a0")
    a.stamp()
    a.e("s_barrier")
    emit(reads(0))
    for i in range(nst):
        a.e("s_waitcnt lgkmcnt(0)")
        other = []
        vm.wait2("a%d" % (i + 1), "b%d" % i)
        if i + 1 < nst:
            a.e("s_barrier")
            rd = [(g, None) for g in reads(i + 1)]
            mem = []
            for rep in range(2):
                if na <= i + nslots and na < nst:
                    mem += [(g, "a%d" % na) for g in dma(na)]
                    na += 1
                if nbn <= i + nb - 1 and nbn < nst:
                    mem += [(g, "b%d" % nbn) for g in bload(nbn)]
                    nbn += 1
            if extra and i >= 1:
                mem += [(g, "epi") for g in extra[:extra_per]]
                del extra[:extra_per]
            EXP = os.environ.get("EXP", "")
            if "nomem" in EXP:
                mem = []
            if "nords" in EXP:
                rd = []
            if "front" in EXP:
                other = rd + mem
                rd = []
                mem = []
            k = 0
            while rd or mem:
                if rd:
                    other.append(rd.pop(0))
                if rd and len(rd) >= 2 * len(mem):
                    other.append(rd.pop(0))
                if mem:
                    other.append(mem.pop(0))
        m = mfmas(i)
        no = len(other)
        nm = len(m)
        done = 0
        for k in range(nm):
            a.e(m[k])
            tgt = ((k + 1) * no + nm - 1) // nm
            if "front" in os.environ.get("EXP", ""):
                tgt = min(no, k + 1)
            while done < tgt:
                emit([other[done][0]], other[done][1])
                done += 1
        assert done == no


def dma_setup(a, nAc, SB, SL, gaddr):
    nfull = nAc // 4
    rem = nAc - 4 * nfull
    for j in range(nfull):
        a.e("s_add_u32 s6, s3, %d" % (4 * j))
        a.e("s_lshl_b32 s%d, s6, 10" % (SL + j))
        gaddr(a, 6, SB + j)
    if rem:
        j = nfull
        a.e("s_mul_i32 s7, s3, %d" % (rem * 256))
        a.e("s_lshr_b32 s6, s7, 10")
        a.e("s_add_u32 s6, s6, %d" % (4 * nfull))
        a.e("s_and_b32 s7, s7, 1023")
        a.e("s_lshl_b32 s%d, s6, 10" % (SL + j))
        a.e("s_add_u32 s%d, s%d, s7" % (SL + j, SL + j))
        gaddr(a, 6, SB + j)
        a.e("s_add_u32 s%d, s%d, s7" % (SB + j, SB + j))


N_G1 = 256
N_CV = 640
P2_WGS = N_G1 + N_CV
G1_SLOT = 8 * 1024
G1_NSLOT = int(os.environ.get("G1_NSLOT", "5"))
P2_LDS = max(G1_SLOT * G1_NSLOT, 40960)


def gen_gemm1(a):
    a.c("---- GEMM1: mt (f tile of 7 or 6 frags), nt (l tile of 128) ----")
    vm = VM(a)
    if "g1" in SKIP:
        a.e("s_branch L_end_%s" % a.kname)
    NA = 7
    a.e("s_lshr_b32 s4, s2, 4")
    a.e("s_and_b32 s5, s2, 7")
    a.e("s_lshl_b32 s5, s5, 1")
    a.e("s_bfe_u32 s6, s2, 0x10003")
    a.e("s_add_u32 s5, s5, s6")
    a.e("s_mul_i32 s6, s4, 7")
    a.e("s_mul_i32 s7, s4, 6")
    a.e("s_add_u32 s7, s7, 12")
    a.e("s_cmp_lt_u32 s4, 12")
    a.e("s_cselect_b32 s4, s6, s7")
    a.e("s_cselect_b32 s45, 6, 5")
    SB, SL, SBB = 48, 56, 54

    def gaddr(a, sc, sdst):
        a.e("s_min_u32 s40, s%d, s45" % sc)
        a.e("s_add_u32 s40, s40, s4")
        a.e("s_mul_i32 s40, s40, 20480")
        a.e("s_add_u32 s%d, s40, %d" % (sdst, W1F))
    dma_setup(a, 8, SB, SL, gaddr)
    a.e("s_lshl_b32 s40, s5, 3")
    a.e("s_lshl_b32 s41, s3, 1")
    a.e("s_add_u32 s40, s40, s41")
    a.e("s_mul_i32 s40, s40, 20480")
    a.e("s_add_u32 s%d, s40, %d" % (SBB, XNF))
    a.e("v_lshlrev_b32 v1, 4, v0")
    ACC = 8
    AREG = 64
    BREG = 120
    NB = 4
    BIAS = 152

    def after():
        a.e("s_lshl_b32 s6, s4, 5")
        a.e("v_lshrrev_b32 v6, 4, v0")
        a.e("v_lshlrev_b32 v6, 3, v6")
        a.e("v_add_u32 v6, s6, v6")
        a.e("s_lshl_b32 s6, s45, 5")
        a.e("v_add_u32 v7, s6, v6")
        for i in range(NA):
            if i < NA - 1:
                a.e("global_load_dwordx2 v[%d:%d], v6, s[%d:%d] offset:%d" % (BIAS + 2 * i, BIAS + 2 * i + 1, P_B1, P_B1 + 1, 32 * i))
            else:
                a.e("global_load_dwordx2 v[%d:%d], v7, s[%d:%d]" % (BIAS + 2 * i, BIAS + 2 * i + 1, P_B1, P_B1 + 1))
            vm.issue("bias")
        for i in range(8 * NA):
            a.e("v_mov_b32 v%d, 0" % (ACC + i))
    gemm_loop2(a, vm, 20, 8, NA, 2, G1_NSLOT, 1024, ACC, AREG, BREG, NB, 1, 1, SB, SL, SBB, 1024, 20480, after)
    vm.waitall()
    a.stamp()
    a.e("v_lshrrev_b32 v6, 5, v0")
    a.e("v_lshlrev_b32 v6, 8, v6")
    a.e("v_and_b32 v7, 15, v0")
    a.e("v_lshl_add_u32 v6, v7, 4, v6")
    a.e("v_bfe_u32 v7, v0, 4, 1")
    a.e("v_lshl_add_u32 v6, v7, 3, v6")
    a.e("s_lshl_b32 s6, s5, 3")
    a.e("s_lshl_b32 s7, s3, 1")
    a.e("s_add_u32 s6, s6, s7")
    a.e("s_mul_i32 s6, s6, 55296")
    a.e("s_lshl_b32 s7, s4, 9")
    a.e("s_add_u32 s6, s6, s7")
    a.e("s_add_u32 s6, s6, %d" % ACTF)
    a.e("s_add_u32 s7, s6, 55296")
    a.e("s_lshl_b32 s41, s45, 9")
    a.e("s_add_u32 s40, s6, s41")
    a.e("s_add_u32 s41, s7, s41")
    a.e("s_mov_b32 s42, 0x%x" % LOG2E)
    a.e("s_mov_b32 s43, 0x%x" % LOG2E)
    a.e("s_mov_b32 s44, 0x41a00000")
    a.e("s_mov_b32 s46, 2.0")
    a.e("s_mov_b32 s47, 2.0")
    a.e("s_nop 4")
    T = 64

    def pk(op, d, x, y):
        return "v_pk_%s_f32 v[%d:%d], %s, %s" % (op, d, d + 1, x, y)

    def V(r):
        return "v[%d:%d]" % (r, r + 1)
    for i in range(NA):
        b = BIAS + 2 * i
        a.e("v_lshlrev_b32 v%d, 16, v%d" % (T, b))
        a.e("v_and_b32 v%d, 0xffff0000, v%d" % (T + 1, b))
        a.e("v_lshlrev_b32 v%d, 16, v%d" % (T + 2, b + 1))
        a.e("v_and_b32 v%d, 0xffff0000, v%d" % (T + 3, b + 1))
        h = [T + 4 + 16 * jj for jj in range(2)]
        for jj in range(2):
            acc = ACC + (i * 2 + jj) * 4
            for r in (0, 2):
                a.e(pk("add", h[jj] + r, V(acc + r), V(T + r)))
        for jj in range(2):
            for r in range(4):
                a.e("v_min_f32 v%d, s44, v%d" % (h[jj] + 4 + r, h[jj] + r))
        for jj in range(2):
            for r in (0, 2):
                a.e(pk("mul", h[jj] + 4 + r, V(h[jj] + 4 + r), "s[42:43]"))
        for jj in range(2):
            for r in range(4):
                a.e("v_exp_f32 v%d, v%d" % (h[jj] + 4 + r, h[jj] + 4 + r))
        for jj in range(2):
            for r in (0, 2):
                a.e(pk("add", h[jj] + 8 + r, V(h[jj] + 4 + r), "s[46:47]"))
        for jj in range(2):
            for r in (0, 2):
                a.e(pk("mul", h[jj] + 8 + r, V(h[jj] + 8 + r), V(h[jj] + 4 + r)))
        for jj in range(2):
            for r in (0, 2):
                a.e(pk("add", h[jj] + 12 + r, V(h[jj] + 8 + r), "s[46:47]"))
        for jj in range(2):
            for r in range(4):
                a.e("v_rcp_f32 v%d, v%d" % (h[jj] + 12 + r, h[jj] + 12 + r))
        for jj in range(2):
            for r in (0, 2):
                a.e(pk("mul", h[jj] + 8 + r, V(h[jj] + 8 + r), V(h[jj] + r)))
        for jj in range(2):
            for r in (0, 2):
                a.e(pk("mul", h[jj] + 8 + r, V(h[jj] + 8 + r), V(h[jj] + 12 + r)))
        for jj in range(2):
            nu = h[jj] + 8
            o = 100 + 2 * ((i * 2 + jj) % 8)
            a.e("v_cvt_pk_bf16_f32 v%d, v%d, v%d" % (o, nu, nu + 1))
            a.e("v_cvt_pk_bf16_f32 v%d, v%d, v%d" % (o + 1, nu + 2, nu + 3))
            if i < NA - 1:
                so, off = (6 + jj), 512 * i
            else:
                so, off = (40 + jj), 0
            a.e("buffer_store_dwordx2 v[%d:%d], v6, s[%d:%d], s%d offen offset:%d" % (o, o + 1, SRD_WS, SRD_WS + 3, so, off))
    a.stamp_out()
    a.e("s_branch L_end_%s" % a.kname)


CV_KSTR = 4384
CV_UB = 4 * CV_KSTR


def gen_conv(a):
    a.c("---- conv: channel s2 - N_G1 ----")
    if "cv" in SKIP:
        a.e("s_branch L_end_%s" % a.kname)
    if os.environ.get("CVPRIO", "0") == "1":
        a.e("s_setprio 3")
    a.e("s_sub_u32 s4, s2, %d" % N_G1)
    a.e("v_lshlrev_b32 v1, 4, v0")
    a.e("s_mul_i32 s5, s4, %d" % KR_STR)
    a.e("s_mul_i32 s7, s4, %d" % XNT_STR)
    a.e("s_add_u32 s7, s7, %d" % XNT)
    a.e("s_lshr_b32 s40, s3, 1")
    a.e("s_lshl_b32 s40, s40, 2")
    a.e("s_sub_u32 s40, 8, s40")
    a.e("s_add_u32 s40, s40, s5")
    a.e("s_and_b32 s41, s3, 1")
    a.e("s_mul_i32 s41, s41, %d" % (KR1 - KR0))
    a.e("s_add_u32 s40, s40, s41")
    a.e("s_add_u32 s40, s40, %d" % KR0)
    a.e("s_mul_i32 s42, s3, %d" % CV_KSTR)
    for p in range(4):
        a.e("s_add_u32 m0, s42, %d" % (1024 * p))
        a.e("s_add_u32 s6, s40, %d" % (1024 * p))
        a.e("buffer_load_dwordx4 v1, s[%d:%d], s6 offen lds" % (SRD_WS, SRD_WS + 3))
    a.e("s_lshl_b32 s44, s3, 10")
    a.e("s_add_u32 m0, s44, %d" % CV_UB)
    a.e("s_add_u32 s6, s7, s44")
    a.e("buffer_load_dwordx4 v1, s[%d:%d], s6 offen lds" % (SRD_WS, SRD_WS + 3))
    a.e("s_mov_b64 exec, 0x1ffff")
    a.e("s_add_u32 m0, s42, 4096")
    a.e("s_add_u32 s6, s40, 4096")
    a.e("buffer_load_dwordx4 v1, s[%d:%d], s6 offen lds" % (SRD_WS, SRD_WS + 3))
    a.e("s_mov_b64 exec, 0xffff")
    a.e("s_mov_b32 m0, %d" % (CV_UB + 4096))
    a.e("s_add_u32 s6, s7, 4096")
    a.e("buffer_load_dwordx4 v1, s[%d:%d], s6 offen lds" % (SRD_WS, SRD_WS + 3))
    a.e("s_mov_b64 exec, -1")
    a.e("v_and_b32 v2, 3, v0")
    a.e("v_mul_u32_u24 v2, %d, v2" % CV_KSTR)
    a.e("v_bfe_u32 v3, v0, 3, 1")
    a.e("v_lshlrev_b32 v3, 8, v3")
    a.e("v_sub_u32 v2, v2, v3")
    a.e("v_bfe_u32 v3, v0, 2, 1")
    a.e("v_lshlrev_b32 v3, 3, v3")
    a.e("v_sub_u32 v2, v2, v3")
    a.e("v_lshrrev_b32 v3, 4, v0")
    a.e("v_lshl_add_u32 v2, v3, 4, v2")
    a.e("v_add_u32 v2, 648, v2")
    a.e("s_lshl_b32 s6, s3, 7")
    a.e("v_subrev_u32 v2, s6, v2")
    a.e("v_add_u32 v5, 2048, v2")
    a.e("v_and_b32 v4, 15, v0")
    a.e("v_add_u32 v4, v4, v3")
    a.e("v_lshlrev_b32 v4, 4, v4")
    a.e("v_add_u32 v4, %d, v4" % CV_UB)
    a.e("v_subrev_u32 v4, s6, v4")
    ACC = 8
    RA, RB = 40, 72
    for i in range(32):
        a.e("v_mov_b32 v%d, 0" % (ACC + i))
    a.stamp()
    a.e("s_waitcnt vmcnt(0)")
    a.stamp()
    a.e("s_barrier")
    a.stamp()
    for rr in range(2):
        for x in range(8):
            off = (63 - 8 * x - rr) * 64 - 384
            va = 2
            if off >= 2048:
                off -= 2048
                va = 5
            a.e("ds_read2_b64 v[%d:%d], v%d offset0:%d offset1:%d" % (RA + 4 * x, RA + 4 * x + 3, va, off // 8, off // 8 + 1))
            a.e("ds_read_b128 v[%d:%d], v4 offset:%d" % (RB + 4 * x, RB + 4 * x + 3, 64 * (8 * x - rr + 7)))
        a.e("s_waitcnt lgkmcnt(0)")
        for aa in range(8):
            for g in range(aa, 8):
                bb = g - aa
                a.e("v_mfma_f32_16x16x32_bf16 v[%d:%d], v[%d:%d], v[%d:%d], v[%d:%d]" % (
                    ACC + 4 * g, ACC + 4 * g + 3, RA + 4 * aa, RA + 4 * aa + 3, RB + 4 * bb, RB + 4 * bb + 3,
                    ACC + 4 * g, ACC + 4 * g + 3))
    a.e("s_nop 7")
    a.stamp()
    a.e("s_barrier")
    a.e("s_lshl_b32 s6, s3, 13")
    a.e("v_add_u32 v5, s6, v1")
    for g in range(8):
        a.e("ds_write_b128 v5, v[%d:%d] offset:%d" % (ACC + 4 * g, ACC + 4 * g + 3, 1024 * g))
    a.e("s_waitcnt lgkmcnt(0)")
    a.e("s_barrier")
    a.e("s_lshl_b32 s6, s3, 11")
    a.e("v_add_u32 v5, s6, v1")
    for gg in range(2):
        for w in range(4):
            a.e("ds_read_b128 v[%d:%d], v5 offset:%d" % (RA + 16 * gg + 4 * w, RA + 16 * gg + 4 * w + 3, 8192 * w + 1024 * gg))
    a.e("v_lshrrev_b32 v6, 5, v0")
    a.e("v_lshlrev_b32 v6, 8, v6")
    a.e("v_and_b32 v7, 15, v0")
    a.e("v_lshl_add_u32 v6, v7, 4, v6")
    a.e("v_bfe_u32 v7, v0, 4, 1")
    a.e("v_lshl_add_u32 v6, v7, 3, v6")
    a.e("s_lshl_b32 s6, s4, 12")
    a.e("s_lshl_b32 s7, s3, 10")
    a.e("s_add_u32 s6, s6, s7")
    a.e("s_add_u32 s6, s6, %d" % YT)
    a.e("s_waitcnt lgkmcnt(0)")
    for gg in range(2):
        b = RA + 16 * gg
        for r in range(4):
            a.e("v_add_f32 v%d, v%d, v%d" % (b + r, b + r, b + 4 + r))
            a.e("v_add_f32 v%d, v%d, v%d" % (b + 8 + r, b + 8 + r, b + 12 + r))
        for r in range(4):
            a.e("v_add_f32 v%d, v%d, v%d" % (b + r, b + r, b + 8 + r))
        a.e("v_cvt_pk_bf16_f32 v%d, v%d, v%d" % (b + 4, b, b + 1))
        a.e("v_cvt_pk_bf16_f32 v%d, v%d, v%d" % (b + 5, b + 2, b + 3))
        a.e("buffer_store_dwordx2 v[%d:%d], v6, s[%d:%d], s6 offen offset:%d" % (b + 4, b + 5, SRD_WS, SRD_WS + 3, 512 * gg))
    a.stamp_out()
    a.e("s_branch L_end_%s" % a.kname)


def gen_phase2(a):
    a.kname = "p2"
    a.label("mid_kernel")
    prologue(a, P2_WGS)
    a.e("s_cmp_lt_u32 s2, %d" % N_G1)
    a.e("s_cbranch_scc1 L_p2_g1")
    gen_conv(a)
    a.label("L_p2_g1")
    gen_gemm1(a)
    a.label("L_end_p2")
    a.e("s_endpgm")


P3_WGS = 256
G2_NSLOT = int(os.environ.get("G2_NSLOT", "5"))
G2_NB = int(os.environ.get("G2_NB", "5"))
P3_LDS = 10240 * G2_NSLOT


def gen_phase3(a):
    a.kname = "p3"
    a.label("fin_kernel")
    prologue(a, P3_WGS)
    vm = VM(a)
    a.e("s_lshr_b32 s4, s2, 5")
    a.e("s_and_b32 s5, s2, 7")
    a.e("s_lshl_b32 s5, s5, 2")
    a.e("s_bfe_u32 s6, s2, 0x20003")
    a.e("s_add_u32 s5, s5, s6")
    if os.environ.get("FAKE"):
        a.e("s_mov_b32 s4, 0")
        a.e("s_mov_b32 s5, 0")
    SB, SL, SBB, SKH, SWP = 48, 56, 54, 46, 47
    a.e("s_lshr_b32 s%d, s3, 1" % SKH)
    a.e("s_and_b32 s40, s3, 1")
    a.e("s_lshl_b32 s%d, s40, 1" % SWP)
    a.e("s_add_u32 s%d, s%d, s%d" % (SWP, SWP, SKH))
    a.e("s_lshl_b32 s41, s5, 2")
    a.e("s_lshl_b32 s40, s40, 1")
    a.e("s_add_u32 s41, s41, s40")
    a.e("s_mul_i32 s41, s41, 54")
    a.e("s_add_u32 s41, s41, s%d" % SKH)
    a.e("s_lshl_b32 s41, s41, 10")
    a.e("s_add_u32 s%d, s41, %d" % (SBB, ACTF))

    def gaddr(a, sc, sdst):
        a.e("s_cmp_ge_u32 s%d, 5" % sc)
        a.e("s_cselect_b32 s40, 1, 0")
        a.e("s_mul_i32 s41, s40, 5")
        a.e("s_sub_u32 s41, s%d, s41" % sc)
        a.e("s_mul_i32 s42, s4, 5")
        a.e("s_add_u32 s42, s42, s41")
        a.e("s_mul_i32 s42, s42, 54")
        a.e("s_add_u32 s42, s42, s40")
        a.e("s_lshl_b32 s42, s42, 10")
        a.e("s_add_u32 s%d, s42, %d" % (sdst, W2F))
    dma_setup(a, 10, SB, SL, gaddr)
    a.e("v_lshlrev_b32 v1, 4, v0")
    a.e("s_mul_i32 s6, s%d, 5120" % SKH)
    a.e("v_add_u32 v2, s6, v1")
    ACC = 12
    AREG = 52
    BREG = 92
    EX, EXN, EDS, EY = 132, 142, 152, 164
    assert BREG + 8 * G2_NB <= EX
    def epi_loads():
        a.e("s_lshl_b32 s6, s5, 6")
        a.e("s_lshl_b32 s7, s%d, 4" % SWP)
        a.e("s_add_u32 s6, s6, s7")
        a.e("v_and_b32 v6, 15, v0")
        a.e("v_add_u32 v6, s6, v6")
        a.e("v_lshrrev_b32 v7, 4, v0")
        a.e("s_mul_i32 s7, s4, 160")
        a.e("v_mul_u32_u24 v8, 1280, v6")
        a.e("v_lshl_add_u32 v8, v7, 3, v8")
        a.e("v_add_u32 v8, s7, v8")
        a.e("v_lshlrev_b32 v9, 3, v7")
        a.e("v_add_u32 v9, s7, v9")
        a.e("v_lshrrev_b32 v10, 5, v0")
        a.e("v_lshlrev_b32 v10, 8, v10")
        a.e("v_and_b32 v11, 15, v0")
        a.e("v_lshl_add_u32 v10, v11, 4, v10")
        a.e("v_bfe_u32 v11, v0, 4, 1")
        a.e("v_lshl_add_u32 v10, v11, 3, v10")
        a.e("s_lshr_b32 s40, s6, 4")
        a.e("s_mul_i32 s40, s40, 20480")
        a.e("s_mul_i32 s41, s4, 2560")
        a.e("s_add_u32 s40, s40, s41")
        a.e("s_add_u32 s40, s40, %d" % XNF)
        a.e("v_lshlrev_b32 v11, 14, v7")
        a.e("v_lshl_add_u32 v11, v6, 1, v11")
        a.e("s_mul_i32 s41, s4, %d" % (80 * 4096))
        a.e("s_add_u32 s41, s41, %d" % YT)
        for i in range(40):
            a.e("v_mov_b32 v%d, 0" % (ACC + i))

    extra = []
    for i in range(5):
        extra.append(["global_load_dwordx2 v[%d:%d], v8, s[%d:%d] offset:%d" % (EX + 2 * i, EX + 2 * i + 1, P_U, P_U + 1, 32 * i)])
        extra.append(["global_load_dwordx2 v[%d:%d], v9, s[%d:%d] offset:%d" % (EDS + 2 * i, EDS + 2 * i + 1, P_DSK, P_DSK + 1, 32 * i)])
        extra.append(["buffer_load_dwordx2 v[%d:%d], v10, s[%d:%d], s40 offen offset:%d" % (EXN + 2 * i, EXN + 2 * i + 1, SRD_WS, SRD_WS + 3, 512 * i)])
        for r in range(4):
            extra.append(["s_add_u32 s42, s41, %d" % ((16 * i + r) * 4096),
                          "buffer_load_ushort v%d, v11, s[%d:%d], s42 offen" % (EY + 4 * i + r, SRD_WS, SRD_WS + 3)])
    gemm_loop2(a, vm, 27, 10, 5, 2, G2_NSLOT, 2048, ACC, AREG, BREG, G2_NB, 1, 2, SB, SL, SBB, 2048, 54 * 1024, epi_loads, extra, int(os.environ.get("XPER", "2")))
    assert not extra
    vm.waitall()
    a.stamp()
    a.e("s_nop 7")
    a.e("s_barrier")
    a.e("s_mul_i32 s6, s3, 5120")
    a.e("v_add_u32 v3, s6, v1")
    a.e("s_xor_b32 s7, s3, 2")
    a.e("s_mul_i32 s7, s7, 5120")
    a.e("v_add_u32 v4, s7, v1")
    lab1 = a.newlabel("L_x")
    lab2 = a.newlabel("L_x")
    a.e("s_cmp_eq_u32 s%d, 0" % SKH)
    a.e("s_cbranch_scc1 %s" % lab1)
    for i in range(5):
        a.e("ds_write_b128 v3, v[%d:%d] offset:%d" % (ACC + 8 * i, ACC + 8 * i + 3, 1024 * i))
    a.e("s_nop 3")
    for i in range(5):
        for r in range(4):
            a.e("v_mov_b32 v%d, v%d" % (ACC + 8 * i + r, ACC + 8 * i + 4 + r))
    a.e("s_branch %s" % lab2)
    a.label(lab1)
    for i in range(5):
        a.e("ds_write_b128 v3, v[%d:%d] offset:%d" % (ACC + 8 * i + 4, ACC + 8 * i + 7, 1024 * i))
    a.label(lab2)
    a.e("s_waitcnt lgkmcnt(0)")
    a.e("s_barrier")
    for i in range(5):
        a.e("ds_read_b128 v[%d:%d], v4 offset:%d" % (ACC + 8 * i + 4, ACC + 8 * i + 7, 1024 * i))
    T = 52
    for i in range(5):
        acc = ACC + 8 * i
        x, xn, ds, y = T, T + 4, T + 8, EY + 4 * i
        for (dst, src) in ((x, EX + 2 * i), (xn, EXN + 2 * i), (ds, EDS + 2 * i)):
            a.e("v_lshlrev_b32 v%d, 16, v%d" % (dst, src))
            a.e("v_and_b32 v%d, 0xffff0000, v%d" % (dst + 1, src))
            a.e("v_lshlrev_b32 v%d, 16, v%d" % (dst + 2, src + 1))
            a.e("v_and_b32 v%d, 0xffff0000, v%d" % (dst + 3, src + 1))
        for r in range(4):
            a.e("v_lshlrev_b32 v%d, 16, v%d" % (y + r, y + r))
            a.e("v_mul_f32 v%d, v%d, v%d" % (xn + r, xn + r, ds + r))

        def rnd4(b):
            a.e("v_cvt_pk_bf16_f32 v%d, v%d, v%d" % (T + 12, b, b + 1))
            a.e("v_cvt_pk_bf16_f32 v%d, v%d, v%d" % (T + 13, b + 2, b + 3))
            a.e("v_lshlrev_b32 v%d, 16, v%d" % (b, T + 12))
            a.e("v_and_b32 v%d, 0xffff0000, v%d" % (b + 1, T + 12))
            a.e("v_lshlrev_b32 v%d, 16, v%d" % (b + 2, T + 13))
            a.e("v_and_b32 v%d, 0xffff0000, v%d" % (b + 3, T + 13))
        rnd4(xn)
        for r in range(4):
            a.e("v_add_f32 v%d, v%d, v%d" % (xn + r, xn + r, y + r))
        rnd4(xn)
        for r in range(4):
            a.e("v_add_f32 v%d, v%d, v%d" % (xn + r, xn + r, x + r))
        rnd4(xn)
        a.e("s_waitcnt lgkmcnt(%d)" % (4 - i))
        for r in range(4):
            a.e("v_add_f32 v%d, v%d, v%d" % (acc + r, acc + r, acc + 4 + r))
        rnd4(acc)
        for r in range(4):
            a.e("v_add_f32 v%d, v%d, v%d" % (xn + r, xn + r, acc + r))
        o = 80 + 2 * i
        a.e("v_cvt_pk_bf16_f32 v%d, v%d, v%d" % (o, xn, xn + 1))
        a.e("v_cvt_pk_bf16_f32 v%d, v%d, v%d" % (o + 1, xn + 2, xn + 3))
        a.e("global_store_dwordx2 v8, v[%d:%d], s[%d:%d] offset:%d" % (o, o + 1, P_OUT, P_OUT + 1, 32 * i))
    a.stamp_out()
    a.label("L_end_p3")
    a.e("s_endpgm")


def kd(name, vgpr):
    nv = (vgpr + 7) // 8 * 8
    return """.amdhsa_kernel %s
  .amdhsa_next_free_vgpr %d
  .amdhsa_next_free_sgpr 96
  .amdhsa_accum_offset %d
  .amdhsa_group_segment_fixed_size 0
  .amdhsa_kernarg_size 112
  .amdhsa_user_sgpr_count 2
  .amdhsa_user_sgpr_kernarg_segment_ptr 1
  .amdhsa_system_sgpr_workgroup_id_x 1
.end_amdhsa_kernel
""" % (name, nv, nv)


def main():
    hdr = open("cdna_kernels/%s.s.ref" % NAME).read().splitlines()
    hdr = [l for l in hdr if l.startswith(";") and "@launch" not in l]
    out = hdr[:]
    out.append("; @launch kernel=prep_kernel grid=(%d,1,1) block=(256,1,1) lds=%d" % (P1_WGS, KG_LDS))
    out.append("; @launch kernel=mid_kernel grid=(%d,1,1) block=(256,1,1) lds=%d" % (P2_WGS, P2_LDS))
    out.append("; @launch kernel=fin_kernel grid=(%d,1,1) block=(256,1,1) lds=%d" % (P3_WGS, P3_LDS))
    out.append('.amdgcn_target "amdgcn-amd-amdhsa--gfx950"')
    out.append(".text")
    a = Asm()
    for (g, n) in ((gen_phase1, "prep_kernel"), (gen_phase2, "mid_kernel"), (gen_phase3, "fin_kernel")):
        a.lines.append(".globl %s" % n)
        a.lines.append(".p2align 8")
        a.lines.append(".type %s,@function" % n)
        g(a)
    out += a.lines
    out.append('.section .rodata,"a"')
    out.append(".p2align 6")
    out.append(kd("prep_kernel", 128))
    out.append(".p2align 6")
    out.append(kd("mid_kernel", 168))
    out.append(".p2align 6")
    out.append(kd("fin_kernel", 184))
    dst = os.environ.get("OUT", "cdna_kernels/%s.s" % NAME)
    open(dst, "w").write("\n".join(out) + "\n")


if __name__ == "__main__":
    main()
```

```python
import sys, os
SKIP = os.environ.get("SKIP", "").split(",")

NAME = "parallel_sum__ssm_conv_s4d__dense_activation_mish__prompt"

L, D, NS, F = 2048, 640, 128, 1728

XNF = 0
XNT = XNF + 128 * 20 * 1024
XNT_STR = 4352
W1F = XNT + 640 * XNT_STR
W2F = W1F + 108 * 20 * 1024
KR0 = W2F + 40 * 54 * 1024
KR_STR = 4384
KR1 = KR0 + 640 * KR_STR
ACTF = KR1 + 640 * KR_STR
YT = ACTF + 128 * 54 * 1024
WS_END = YT + 640 * 4096

LOG2E = 0x3fb8aa3b
INV2PI = 0x3e22f983


STAMP = os.environ.get("STAMP", "")
ILV = int(os.environ.get("ILV", "1"))
STOREFLAG = os.environ.get("STOREFLAG", "sc0 sc1")
STOREK = os.environ.get("STOREK", "p1,p2,p3").split(",")
XB = os.environ.get("XB", "1") == "1"
TRACE = os.environ.get("TRACE", "")


class Asm:
    def __init__(self):
        self.lines = []
        self.lab = 0
        self.nst = 0

    def stamp(self):
        if not STAMP or STAMP.split(":")[0] != self.kname:
            return
        i = self.nst
        self.nst += 1
        assert i < 12
        self.e("s_memtime s[%d:%d]" % (64 + 2 * i, 65 + 2 * i))

    def stamp_out(self):
        if TRACE:
            lab = self.newlabel("L_tr")
            self.e("s_waitcnt vmcnt(0) lgkmcnt(0)")
            self.e("s_memrealtime s[90:91]")
            self.e("s_cmp_lg_u32 s3, 0")
            self.e("s_cbranch_scc1 %s" % lab)
            self.e("s_lshl_b32 s92, s2, 3")
            self.e("s_add_u32 s92, s92, %d" % (64 * 1024 * 1024 + 65536 * int(self.kname[1])))
            self.e("v_mov_b32 v1, s92")
            self.e("s_waitcnt lgkmcnt(0)")
            self.e("v_mov_b32 v2, s88")
            self.e("v_mov_b32 v3, s90")
            self.e("global_store_dwordx2 v1, v[2:3], s[%d:%d]" % (P_WS, P_WS + 1))
            self.e("s_cmp_lg_u32 s2, 0")
            self.e("s_cbranch_scc1 %s" % lab)
            self.e("s_getpc_b64 s[90:91]")
            self.e("v_mov_b32 v1, 0")
            self.e("v_mov_b32 v2, s90")
            self.e("v_mov_b32 v3, s91")
            self.e("global_store_dwordx2 v1, v[2:3], s[%d:%d]" % (P_DBG, P_DBG + 1))
            self.label(lab)
            return
        if not STAMP or STAMP.split(":")[0] != self.kname:
            return
        wg = int(STAMP.split(":")[1])
        self.e("s_memrealtime s[90:91]")
        self.stamp()
        self.e("s_waitcnt lgkmcnt(0)")
        lab = self.newlabel("L_st")
        self.e("s_cmp_lg_u32 s2, %d" % wg)
        self.e("s_cbranch_scc1 %s" % lab)
        self.e("s_cmp_lg_u32 s3, 0")
        self.e("s_cbranch_scc1 %s" % lab)
        self.e("v_mov_b32 v1, 0")
        for i in range(self.nst):
            self.e("s_sub_u32 s92, s%d, s64" % (64 + 2 * i))
            self.e("v_mov_b32 v2, s92")
            self.e("global_store_dword v1, v2, s[%d:%d] offset:%d" % (P_DBG, P_DBG + 1, 4 * i))
        self.e("s_sub_u32 s92, s90, s88")
        self.e("v_mov_b32 v2, s92")
        self.e("global_store_dword v1, v2, s[%d:%d] offset:%d" % (P_DBG, P_DBG + 1, 60))
        self.label(lab)
        self.nst = 1

    def e(self, s):
        if (s.startswith("buffer_store") or s.startswith("global_store")) and self.kname in STOREK:
            s = s + " " + STOREFLAG
        self.lines.append("    " + s)

    def c(self, s):
        self.lines.append("    ; " + s)

    def label(self, name):
        self.lines.append(name + ":")

    def newlabel(self, p="L"):
        self.lab += 1
        return "%s_%d" % (p, self.lab)


def vr(a, n=1):
    return "v%d" % a if n == 1 else "v[%d:%d]" % (a, a + n - 1)


def sr(a, n=1):
    return "s%d" % a if n == 1 else "s[%d:%d]" % (a, a + n - 1)


P_U, P_LOGA, P_AIM, P_CRE, P_CIM, P_LDT, P_DSK, P_BX, P_W1, P_B1, P_W2, P_OUT, P_DBG, P_WS = [8 + 2 * i for i in range(14)]
SRD_WS = 36


def prologue(a, nwg):
    if TRACE:
        a.e("s_memrealtime s[88:89]")
    if STAMP and STAMP.split(":")[0] == a.kname:
        a.e("s_memrealtime s[88:89]")
        a.e("s_memtime s[64:65]")
        a.nst = 1
    a.e("s_cmp_ge_u32 s2, %d" % nwg)
    a.e("s_cbranch_scc1 L_end_%s" % a.kname)
    a.e("s_load_dwordx16 s[8:23], s[0:1], 0")
    a.e("s_load_dwordx8 s[24:31], s[0:1], 64")
    a.e("s_load_dwordx4 s[32:35], s[0:1], 96")
    a.e("v_lshrrev_b32 v1, 6, v0")
    a.e("v_and_b32 v0, 63, v0")
    a.e("s_nop 0")
    a.e("v_readfirstlane_b32 s3, v1")
    a.e("s_waitcnt lgkmcnt(0)")
    a.stamp()
    a.e("s_mov_b32 s%d, s%d" % (SRD_WS, P_WS))
    a.e("s_and_b32 s%d, s%d, 0xffff" % (SRD_WS + 1, P_WS + 1))
    a.e("s_mov_b32 s%d, %d" % (SRD_WS + 2, WS_END))
    a.e("s_mov_b32 s%d, 0x00020000" % (SRD_WS + 3))


def make_srd(a, dst, ptr, nbytes):
    a.e("s_mov_b32 s%d, s%d" % (dst, ptr))
    a.e("s_and_b32 s%d, s%d, 0xffff" % (dst + 1, ptr + 1))
    a.e("s_mov_b32 s%d, %d" % (dst + 2, nbytes))
    a.e("s_mov_b32 s%d, 0x00020000" % (dst + 3))


def bf16r(a, dst, src):
    a.e("v_cvt_pk_bf16_f32 %s, %s, %s" % (vr(dst), vr(src), vr(src)))
    a.e("v_lshlrev_b32 %s, 16, %s" % (vr(dst), vr(dst)))


N_KG = 640
N_LN = 128
N_W1 = 108
N_W2 = 120
P1_WGS = N_KG + N_LN + N_W1 + N_W2
if os.environ.get("KGFIRST", "0") == "1":
    KG_BASE = 0
    LN_BASE = N_KG
    W1_BASE = N_KG + N_LN
    W2_BASE = N_KG + N_LN + N_W1
else:
    LN_BASE = 0
    W1_BASE = N_LN
    W2_BASE = N_LN + N_W1
    KG_BASE = N_LN + N_W1 + N_W2


WT2 = os.environ.get("WT2", "bal")
if WT2:
    N_WT = 135
    P1_WGS = N_KG + N_LN + N_WT
    KG_BASE = N_LN + N_WT
    if WT2 == "wl":
        WT_BASE, LN_BASE = 0, N_WT
    elif WT2 == "bal":
        LN_BASE, WT_BASE, KG_BASE = 0, 256, 0
    else:
        LN_BASE, WT_BASE = 0, N_LN

KG_BLK = 16 * 272
KG_WAVE = 2 * KG_BLK
KG_KD = 4 * KG_WAVE
KG_LDS = KG_KD + 2624


def f32bits(x):
    import struct
    return "0x%x" % struct.unpack("<I", struct.pack("<f", float(x)))[0]


def gen_kgen(a):
    a.c("---- K generation ----")
    if "kg" in SKIP:
        a.e("s_branch L_end_%s" % a.kname)
    HOIST = os.environ.get("HOIST", "1") == "1"
    if HOIST:
        IR, IT, XA, TF, SV = 96, 60, 116, 64, 125
    else:
        IR, IT, XA, TF, SV = 48, 52, 84, 116, 5

    def index_math():
        im = []
        im.append("s_lshl_b32 s5, s3, 6")
        im.append("v_add_u32 v1, s5, v0")

        def srcaddr(dst, j, sh, segbase, t0, t1):
            im.append("v_lshrrev_b32 v%d, %d, v%d" % (t0, sh + 4, j))
            im.append("v_lshlrev_b32 v%d, %d, v%d" % (t0, sh, t0))
            if sh:
                im.append("v_and_b32 v%d, %d, v%d" % (t1, (1 << sh) - 1, j))
                im.append("v_add3_u32 v%d, v%d, v%d, %d" % (t0, t0, t1, segbase))
            else:
                im.append("v_add_u32 v%d, %d, v%d" % (t0, segbase, t0))
            im.append("v_bfe_u32 v%d, v%d, %d, 4" % (dst, j, sh))
            im.append("v_lshlrev_b32 v%d, 4, v%d" % (dst, dst))
            im.append("v_lshrrev_b32 v%d, 2, v%d" % (t1, t0))
            im.append("v_lshl_add_u32 v%d, v%d, 8, v%d" % (dst, t1, dst))
            im.append("v_and_b32 v%d, 3, v%d" % (t1, t0))
            im.append("v_lshl_add_u32 v%d, v%d, 2, v%d" % (dst, t1, dst))
        srcaddr(IR, 1, 3, 0, IT, IT + 1)
        im.append("v_and_b32 v%d, 127, v1" % (IT + 2))
        srcaddr(IR + 1, IT + 2, 2, 16, IT, IT + 1)
        srcaddr(IR + 2, IT + 2, 1, 24, IT, IT + 1)
        im.append("v_cmp_gt_u32 vcc, 128, v1")
        im.append("v_cndmask_b32 v%d, v%d, v%d, vcc" % (IR + 1, IR + 2, IR + 1))
        im.append("v_min_u32 v%d, 128, v1" % (IT + 2))
        srcaddr(IR + 2, IT + 2, 0, 32, IT, IT + 1)
        im.append("v_lshlrev_b32 v%d, 2, v1" % (IR + 3))
        im.append("v_add_u32 v%d, %d, v%d" % (IR + 3, KG_KD, IR + 3))
        im.append("v_lshlrev_b32 v%d, 3, v1" % IT)
        im.append("v_sub_u32 v%d, 2049, v%d" % (IT, IT))
        im.append("v_cvt_f32_u32 v%d, v%d" % (IT + 1, IT))
        im.append("v_lshlrev_b32 v%d, 2, v%d" % (IT, IT))
        im.append("v_add_u32 v%d, %d, v%d" % (IT, KG_KD, IT))
        im.append("s_mov_b32 s45, 0x%x" % ((KG_KD - 4 * 17024) & 0xffffffff))
        for e in range(9):
            im.append("v_subrev_f32 v%d, %s, v%d" % (TF + e, "%d.0" % e if e in (0, 1, 2, 4) else f32bits(e), IT + 1))
            im.append("v_max_f32 v%d, 0x43000000, v%d" % (TF + e, TF + e))
        for e in range(0, 9, 2):
            im.append("v_cvt_pk_bf16_f32 v%d, v%d, v%d" % (TF + e, TF + e, TF + e + 1 if e < 8 else TF + e))
        for e in range(9):
            if e & 1:
                im.append("v_lshrrev_b32 v%d, 16, v%d" % (XA + e, TF + e - 1))
            else:
                im.append("v_and_b32 v%d, 0xffff, v%d" % (XA + e, TF + e))
            im.append("v_lshl_add_u32 v%d, v%d, 2, s45" % (XA + e, XA + e))
            im.append("v_subrev_u32 v%d, %d, v%d" % (TF + 9, 4 * e, IT))
            im.append("v_min_u32 v%d, v%d, v%d" % (XA + e, XA + e, TF + 9))
        im.append("v_lshlrev_b32 v%d, 4, v1" % SV)
        return im

    if WT2 != "bal":
        a.e("s_sub_u32 s4, s2, %d" % KG_BASE)
    a.e("s_lshl_b32 s5, s4, 8")
    a.e("s_lshl_b32 s6, s3, 6")
    a.e("s_add_u32 s5, s5, s6")
    a.e("v_and_b32 v1, 31, v0")
    a.e("v_lshlrev_b32 v2, 1, v1")
    a.e("v_add_u32 v2, s5, v2")
    a.e("s_lshl_b32 s5, s4, 1")
    a.e("v_mov_b32 v3, s5")
    LA, AIM, CRE, CIM, DT = 10, 11, 12, 13, 14
    a.e("global_load_ushort v%d, v2, s[%d:%d]" % (LA, P_LOGA, P_LOGA + 1))
    a.e("global_load_ushort v%d, v2, s[%d:%d]" % (AIM, P_AIM, P_AIM + 1))
    a.e("global_load_ushort v%d, v2, s[%d:%d]" % (CRE, P_CRE, P_CRE + 1))
    a.e("global_load_ushort v%d, v2, s[%d:%d]" % (CIM, P_CIM, P_CIM + 1))
    a.e("global_load_ushort v%d, v3, s[%d:%d]" % (DT, P_LDT, P_LDT + 1))
    lab = a.newlabel("L_kgz")
    if XB:
        a.e("s_branch %s" % lab)
    a.e("s_cmp_lg_u32 s3, 0")
    a.e("s_cbranch_scc1 %s" % lab)
    a.e("s_mul_i32 s6, s4, %d" % XNT_STR)
    a.e("s_add_u32 s6, s6, %d" % XNT)
    a.e("v_mov_b32 v3, 0")
    a.e("v_lshlrev_b32 v4, 2, v0")
    a.e("v_cmp_gt_u32 vcc, 60, v0")
    a.e("s_and_saveexec_b64 s[40:41], vcc")
    a.e("buffer_store_dword v3, v4, s[%d:%d], s6 offen" % (SRD_WS, SRD_WS + 3))
    a.e("s_mov_b64 exec, s[40:41]")
    a.label(lab)
    a.e("s_mul_i32 s42, s3, %d" % KG_WAVE)
    a.e("v_lshrrev_b32 v4, 5, v0")
    a.e("v_cvt_f32_u32 v9, v4")
    a.e("v_mul_u32_u24 v4, %d, v4" % KG_BLK)
    a.e("v_lshl_add_u32 v4, v1, 3, v4")
    a.e("v_add_u32 v4, s42, v4")
    a.e("v_and_b32 v5, 15, v0")
    a.e("v_mul_u32_u24 v5, 272, v5")
    a.e("v_lshrrev_b32 v6, 4, v0")
    a.e("v_lshl_add_u32 v5, v6, 6, v5")
    a.e("v_add_u32 v5, s42, v5")
    a.e("v_lshlrev_b32 v6, 4, v0")
    a.e("v_add_u32 v6, s42, v6")
    if HOIST:
        for x in index_math():
            a.e(x)
    a.e("s_mov_b32 s43, 0x%x" % LOG2E)
    a.e("s_mov_b32 s44, 0x%x" % INV2PI)
    a.e("s_mov_b32 vcc_lo, 0")
    a.e("s_mov_b32 vcc_hi, -1")
    ACC = 100
    for i in range(16):
        a.e("v_mov_b32 v%d, 0" % (ACC + i))
    a.e("s_waitcnt vmcnt(0)")
    a.stamp()
    a.e("v_lshlrev_b32 v%d, 16, v%d" % (DT, DT))
    a.e("v_lshlrev_b32 v%d, 16, v%d" % (LA, LA))
    a.e("v_mul_f32 v%d, s43, v%d" % (DT, DT))
    a.e("v_mul_f32 v%d, s43, v%d" % (LA, LA))
    a.e("v_exp_f32 v%d, v%d" % (DT, DT))
    a.e("v_exp_f32 v%d, v%d" % (LA, LA))
    a.e("v_lshlrev_b32 v%d, 16, v%d" % (AIM, AIM))
    a.e("v_lshlrev_b32 v%d, 16, v%d" % (CRE, CRE))
    a.e("v_lshlrev_b32 v%d, 16, v%d" % (CIM, CIM))
    bf16r(a, DT, DT)
    bf16r(a, LA, LA)
    a.e("v_mul_f32 v%d, v%d, v%d" % (LA, LA, DT))
    a.e("v_mul_f32 v%d, v%d, v%d" % (AIM, AIM, DT))
    a.e("v_mul_f32 v%d, v%d, v%d" % (CRE, CRE, DT))
    a.e("v_mul_f32 v%d, v%d, v%d" % (CIM, CIM, DT))
    a.e("v_mul_f32 v%d, s43, v%d" % (LA, LA))
    a.e("v_mul_f32 v%d, s44, v%d" % (AIM, AIM))
    a.e("v_add_f32 v%d, v%d, v%d" % (CRE, CRE, CRE))
    a.e("v_add_f32 v%d, v%d, v%d" % (CIM, CIM, CIM))
    NAIM = 15
    a.e("v_sub_f32 v%d, 0, v%d" % (NAIM, AIM))
    a.e("v_cndmask_b32 v%d, v%d, v%d, vcc" % (NAIM, NAIM, AIM))
    CM = 16
    a.e("v_cndmask_b32 v%d, 1.0, v%d, vcc" % (CM, CRE))
    a.e("v_cndmask_b32 v%d, 0, v%d, vcc" % (CM + 1, CIM))

    def cexps(lst, tbase):
        for i, (dst, p0, p1, ar) in enumerate(lst):
            t = tbase + 3 * i
            if p0 == p1:
                a.e("v_mov_b32 v%d, %s" % (t, f32bits(p0)))
            else:
                a.e("v_mul_f32 v%d, %s, v9" % (t, f32bits(p1 - p0)))
                a.e("v_add_f32 v%d, %s, v%d" % (t, f32bits(p0), t))
        for i, (dst, p0, p1, ar) in enumerate(lst):
            t = tbase + 3 * i
            a.e("v_mul_f32 v%d, -v%d, v%d" % (t + 1, LA, t))
            a.e("v_mul_f32 v%d, v%d, v%d" % (t + 2, ar, t))
        for i, (dst, p0, p1, ar) in enumerate(lst):
            t = tbase + 3 * i
            a.e("v_exp_f32 v%d, v%d" % (t + 1, t + 1))
            a.e("v_fract_f32 v%d, v%d" % (t + 2, t + 2))
        for i, (dst, p0, p1, ar) in enumerate(lst):
            t = tbase + 3 * i
            a.e("v_cos_f32 v%d, v%d" % (dst, t + 2))
            a.e("v_sin_f32 v%d, v%d" % (dst + 1, t + 2))
        a.e("s_nop 0")
        for i, (dst, p0, p1, ar) in enumerate(lst):
            t = tbase + 3 * i
            a.e("v_mul_f32 v%d, v%d, v%d" % (dst, dst, t + 1))
            a.e("v_mul_f32 v%d, v%d, v%d" % (dst + 1, dst + 1, t + 1))

    def cmul(d, x, y):
        return ["v_pk_mul_f32 v[%d:%d], v[%d:%d], v[%d:%d] op_sel:[0,0] op_sel_hi:[0,1]" % (d, d + 1, x, x + 1, y, y + 1),
                "v_pk_fma_f32 v[%d:%d], v[%d:%d], v[%d:%d], v[%d:%d] op_sel:[1,1,0] op_sel_hi:[1,0,1] neg_lo:[1,0,0]" % (
                    d, d + 1, x, x + 1, y, y + 1, d, d + 1)]

    def emit(lst):
        for s in lst:
            a.e(s)

    F1, S2, FA, FB, T0, T1, T2 = 18, 20, 22, 24, 26, 28, 30
    cexps([(F1, 8, 1, NAIM), (S2, 64, 128, NAIM), (FA, 2, 128, AIM), (FB, 128, 128, AIM),
           (T0, 256, 1024, AIM), (T1, 384, 1536, AIM), (T2, 512, 2048, AIM)], 60)
    a.stamp()
    Q, S1, S3 = 32, 34, 36
    CH = [40, 44, 48, 52]
    emit(cmul(Q, F1, F1))
    emit(cmul(CH[2], S2, CM))
    emit(cmul(S1, Q, Q))
    a.e("v_mov_b32 v%d, v%d" % (CH[0], CM))
    a.e("v_mov_b32 v%d, v%d" % (CH[0] + 1, CM + 1))
    emit(cmul(CH[1], S1, CM))
    emit(cmul(CH[3], S1, CH[2]))
    rows1 = [[0, 1, 2, 3], [4, 5, 6, 7], [8, 9, 10, 11], [12, 13, 14, 15]]
    rows2 = [[0, 1, 2, 3], [4, 5, 6, 7], [8, 10, 12, 14], [9, 11, 13, 15]]

    def chains(rows, facs):
        out = []
        for i in range(4):
            for q in range(4):
                cur = CH[q] + 2 * (i & 1)
                out.append("ds_write_b64 v4, v[%d:%d] offset:%d" % (cur, cur + 1, 272 * rows[q][i]))
            if i < 3:
                m = [cmul(CH[q] + 2 * ((i + 1) & 1), CH[q] + 2 * (i & 1), facs[q]) for q in range(4)]
                for s in range(2):
                    for q in range(4):
                        out.append(m[q][s])
        return out
    emit(chains(rows1, [F1] * 4))
    RY, RX = 64, 80
    for j in range(4):
        a.e("ds_read_b128 v[%d:%d], v5 offset:%d" % (RY + 4 * j, RY + 4 * j + 3, 16 * j))
        a.e("ds_read_b128 v[%d:%d], v5 offset:%d" % (RX + 4 * j, RX + 4 * j + 3, KG_BLK + 16 * j))
    a.stamp()
    pre = []
    pre += cmul(Q, FA, FA)
    pre += cmul(CH[0], T0, CRE)
    pre += cmul(CH[1], T1, CRE)
    pre += cmul(CH[2], T2, CRE)
    pre += cmul(CH[3], Q, CH[2])
    emit(pre)
    a.e("s_waitcnt lgkmcnt(0)")
    ch2 = chains(rows2, [FA, FA, FB, FB])
    mf = ["v_mfma_f32_16x16x4_f32 v[%d:%d], v%d, v%d, v[%d:%d]" % (
        ACC + 4 * (k & 1), ACC + 4 * (k & 1) + 3, RX + k, RY + k, ACC + 4 * (k & 1), ACC + 4 * (k & 1) + 3) for k in range(16)]
    per = (len(ch2) + 15) // 16
    idx = 0
    for k in range(16):
        a.e(mf[k])
        for s in ch2[idx:idx + per]:
            a.e(s)
        idx += per
    assert idx >= len(ch2)
    RX1, RX2 = 16, 32
    for j in range(4):
        a.e("ds_read_b128 v[%d:%d], v5 offset:%d" % (RX1 + 4 * j, RX1 + 4 * j + 3, 16 * j))
        a.e("ds_read_b128 v[%d:%d], v5 offset:%d" % (RX2 + 4 * j, RX2 + 4 * j + 3, KG_BLK + 16 * j))
    a.e("s_waitcnt lgkmcnt(0)")
    a.stamp()
    mf2 = []
    for k in range(16):
        mf2.append("v_mfma_f32_16x16x4_f32 v[%d:%d], v%d, v%d, v[%d:%d]" % (ACC + 8, ACC + 11, RX1 + k, RY + k, ACC + 8, ACC + 11))
        mf2.append("v_mfma_f32_16x16x4_f32 v[%d:%d], v%d, v%d, v[%d:%d]" % (ACC + 12, ACC + 15, RX2 + k, RY + k, ACC + 12, ACC + 15))
    im = [] if HOIST else index_math()
    per = max(1, (len(im) + 31) // 32)
    idx = 0
    for k in range(32):
        a.e(mf2[k])
        for s in im[idx:idx + per]:
            a.e(s)
        idx += per
    assert idx >= len(im)
    a.e("s_nop 7")
    a.e("s_nop 7")
    for i in range(4):
        a.e("v_add_f32 v%d, v%d, v%d" % (ACC + 4 + i, ACC + 4 + i, ACC + i))
    for b in range(3):
        a.e("ds_write_b128 v6, v[%d:%d] offset:%d" % (ACC + 4 + 4 * b, ACC + 7 + 4 * b, 1024 * b))
    a.e("s_waitcnt lgkmcnt(0)")
    a.e("s_barrier")
    a.stamp()
    RR = 16
    for r in range(3):
        for w in range(4):
            a.e("ds_read_b32 v%d, v%d offset:%d" % (RR + 4 * r + w, IR + r, KG_WAVE * w))
    for r in range(3):
        a.e("s_waitcnt lgkmcnt(%d)" % (8 - 4 * r))
        a.e("v_add_f32 v%d, v%d, v%d" % (RR + 4 * r, RR + 4 * r, RR + 1 + 4 * r))
        a.e("v_add_f32 v%d, v%d, v%d" % (RR + 2 + 4 * r, RR + 2 + 4 * r, RR + 3 + 4 * r))
        a.e("v_add_f32 v%d, v%d, v%d" % (RR + 4 * r, RR + 4 * r, RR + 2 + 4 * r))
    a.e("ds_write_b32 v%d, v%d" % (IR + 3, RR))
    a.e("ds_write_b32 v%d, v%d offset:1024" % (IR + 3, RR + 4))
    a.e("v_cmp_gt_u32 vcc, 129, v1")
    a.e("s_and_saveexec_b64 s[40:41], vcc")
    a.e("ds_write_b32 v%d, v%d offset:2048" % (IR + 3, RR + 8))
    a.e("s_mov_b64 exec, s[40:41]")
    a.e("s_mul_i32 s6, s4, %d" % KR_STR)
    a.e("s_add_u32 s6, s6, %d" % KR0)
    a.e("s_add_u32 s7, s6, %d" % (KR1 - KR0))
    a.e("s_waitcnt lgkmcnt(0)")
    a.e("s_barrier")
    a.stamp()
    for e in range(9):
        a.e("ds_read_b32 v%d, v%d" % (50 + e, XA + e))
    lab = a.newlabel("L_kgx")
    a.e("s_cmp_lg_u32 s3, 3")
    a.e("s_cbranch_scc1 %s" % lab)
    a.e("v_mov_b32 v30, %d" % KG_KD)
    a.e("ds_read_b64 v[32:33], v30")
    for i in range(8):
        a.e("v_mov_b32 v%d, 0" % (36 + i))
    a.e("v_lshlrev_b32 v31, 4, v0")
    a.e("v_add_u32 v31, 4096, v31")
    a.e("v_cmp_eq_u32 vcc, 0, v0")
    a.e("s_waitcnt lgkmcnt(0)")
    a.e("v_cvt_pk_bf16_f32 v34, v32, v36")
    a.e("v_cvt_pk_bf16_f32 v35, v33, v32")
    a.e("v_cndmask_b32 v36, v36, v34, vcc")
    a.e("v_cndmask_b32 v40, v40, v35, vcc")
    a.e("v_cmp_gt_u32 vcc, 18, v0")
    a.e("s_and_saveexec_b64 s[40:41], vcc")
    a.e("buffer_store_dwordx4 v[36:39], v31, s[%d:%d], s6 offen" % (SRD_WS, SRD_WS + 3))
    a.e("buffer_store_dwordx4 v[40:43], v31, s[%d:%d], s7 offen" % (SRD_WS, SRD_WS + 3))
    a.e("s_mov_b64 exec, s[40:41]")
    a.label(lab)
    a.e("v_cmp_ne_u32 vcc, 0, v1")
    a.e("s_waitcnt lgkmcnt(0)")
    a.e("v_cndmask_b32 v50, 0, v50, vcc")
    a.e("v_cndmask_b32 v51, 0, v51, vcc")
    for e in range(4):
        a.e("v_cvt_pk_bf16_f32 v%d, v%d, v%d" % (60 + e, 51 + 2 * e, 52 + 2 * e))
        a.e("v_cvt_pk_bf16_f32 v%d, v%d, v%d" % (64 + e, 50 + 2 * e, 51 + 2 * e))
    a.e("buffer_store_dwordx4 v[60:63], v%d, s[%d:%d], s6 offen" % (SV, SRD_WS, SRD_WS + 3))
    a.e("buffer_store_dwordx4 v[64:67], v%d, s[%d:%d], s7 offen" % (SV, SRD_WS, SRD_WS + 3))
    a.stamp_out()
    a.e("s_branch L_end_%s" % a.kname)


def gen_ln(a):
    a.c("---- LayerNorm: row block s2-640 ----")
    if "ln" in SKIP:
        a.e("s_branch L_end_%s" % a.kname)
    a.e("s_sub_u32 s4, s2, %d" % LN_BASE)
    a.e("s_lshl_b32 s5, s4, 4")
    a.e("s_lshl_b32 s6, s3, 2")
    a.e("s_add_u32 s5, s5, s6")
    a.e("v_lshrrev_b32 v1, 4, v0")
    a.e("v_and_b32 v2, 15, v0")
    a.e("v_add_u32 v3, s5, v1")
    a.e("v_mul_u32_u24 v3, 1280, v3")
    a.e("v_lshl_add_u32 v3, v2, 4, v3")
    for i in range(5):
        a.e("global_load_dwordx4 v[%d:%d], v3, s[%d:%d] offset:%d" % (10 + 4 * i, 13 + 4 * i, P_U, P_U + 1, 256 * i))
    if XB:
        a.e("v_add_u32 v116, s6, v1")
        a.e("v_mul_u32_u24 v116, 1296, v116")
        a.e("v_lshl_add_u32 v116, v2, 4, v116")
        a.e("s_mul_i32 s5, s3, 320")
        a.e("v_mul_u32_u24 v117, 1296, v2")
        a.e("v_lshl_add_u32 v117, v1, 4, v117")
        a.e("v_add_u32 v117, s5, v117")
        a.e("v_lshlrev_b32 v118, 4, v0")
        a.e("s_lshl_b32 s5, s3, 8")
        a.e("v_lshl_add_u32 v119, v0, 2, s5")
        a.e("s_lshl_b32 s5, s3, 12")
        a.e("s_add_u32 s7, s5, 20736")
        a.e("v_lshl_add_u32 v120, v0, 6, s7")
        a.e("v_add_u32 v121, s7, v118")
        a.e("s_mul_i32 s44, s4, 20480")
        a.e("s_mul_i32 s40, s3, 5120")
        a.e("s_add_u32 s40, s40, s44")
        a.e("s_add_u32 s40, s40, %d" % XNF)
        a.e("s_add_u32 s41, s40, 4096")
        a.e("s_add_u32 s45, s44, %d" % (XNT + 16384))
        a.e("s_add_u32 s44, s44, s5")
        a.e("s_add_u32 s44, s44, %d" % XNT)
        a.e("s_mov_b32 s46, 0x05040100")
        a.e("s_mov_b32 s47, 0x07060302")
    elif os.environ.get("LN2", "1") == "1":
        a.e("s_mul_i32 s40, s4, 20480")
        a.e("s_add_u32 s40, s40, %d" % XNF)
        a.e("v_lshrrev_b32 v90, 2, v2")
        a.e("v_lshlrev_b32 v90, 10, v90")
        a.e("v_and_b32 v91, 3, v2")
        a.e("v_lshl_add_u32 v90, v91, 8, v90")
        a.e("v_add_u32 v91, s6, v1")
        a.e("v_lshl_add_u32 v90, v91, 4, v90")
        a.e("v_mul_u32_u24 v92, 1296, v91")
        a.e("v_lshl_add_u32 v92, v2, 4, v92")
        a.e("s_lshl_b32 s5, s3, 6")
        a.e("v_add_u32 v94, s5, v0")
        a.e("v_lshlrev_b32 v93, 2, v94")
        a.e("v_mul_u32_u24 v94, %d, v94" % (2 * XNT_STR))
        a.e("s_lshl_b32 s44, s4, 5")
        a.e("s_add_u32 s44, s44, %d" % (XNT + 240))
        a.e("s_add_u32 s45, s44, %d" % XNT_STR)
        a.e("s_mov_b32 s46, 0x05040100")
        a.e("s_mov_b32 s47, 0x07060302")
    a.stamp()
    a.e("s_waitcnt vmcnt(0)")
    a.stamp()
    for j in range(20):
        a.e("v_lshlrev_b32 v%d, 16, v%d" % (40 + 2 * j, 10 + j))
        a.e("v_and_b32 v%d, 0xffff0000, v%d" % (41 + 2 * j, 10 + j))
    LN2 = os.environ.get("LN2", "1") == "1"
    if LN2:
        def V(r):
            return "v[%d:%d]" % (r, r + 1)

        def dred(reg):
            for sh in (8, 4, 2, 1):
                a.e("s_nop 1")
                a.e("v_add_f32_dpp v%d, v%d, v%d row_ror:%d row_mask:0xf bank_mask:0xf" % (reg, reg, reg, sh))
        a.e("v_pk_add_f32 v[80:81], %s, %s" % (V(40), V(44)))
        a.e("v_pk_add_f32 v[82:83], %s, %s" % (V(42), V(46)))
        for j in range(8, 40, 4):
            a.e("v_pk_add_f32 v[80:81], v[80:81], %s" % V(40 + j))
            a.e("v_pk_add_f32 v[82:83], v[82:83], %s" % V(42 + j))
        a.e("v_pk_add_f32 v[80:81], v[80:81], v[82:83]")
        a.e("v_add_f32 v4, v80, v81")
        dred(4)
        a.e("s_mov_b32 s7, 0x3acccccd")
        a.e("v_mul_f32 v4, s7, v4")
        for j in range(0, 40, 4):
            a.e("v_pk_add_f32 v[84:85], %s, v[4:5] op_sel_hi:[1,0] neg_lo:[0,1] neg_hi:[0,1]" % V(40 + j))
            a.e("v_pk_add_f32 v[86:87], %s, v[4:5] op_sel_hi:[1,0] neg_lo:[0,1] neg_hi:[0,1]" % V(42 + j))
            if j == 0:
                a.e("v_pk_mul_f32 v[80:81], v[84:85], v[84:85]")
                a.e("v_pk_mul_f32 v[82:83], v[86:87], v[86:87]")
            else:
                a.e("v_pk_fma_f32 v[80:81], v[84:85], v[84:85], v[80:81]")
                a.e("v_pk_fma_f32 v[82:83], v[86:87], v[86:87], v[82:83]")
        a.e("v_pk_add_f32 v[80:81], v[80:81], v[82:83]")
        a.e("v_add_f32 v6, v80, v81")
        dred(6)
        a.e("v_mul_f32 v6, s7, v6")
        bf16r(a, 4, 4)
        bf16r(a, 6, 6)
        a.e("v_add_f32 v6, 0x3727c5ac, v6")
        bf16r(a, 6, 6)
        a.e("v_sqrt_f32 v6, v6")
        a.e("s_nop 0")
        bf16r(a, 6, 6)
        a.e("v_rcp_f32 v8, v6")
        a.e("s_nop 0")
        for j in range(0, 40, 4):
            xs = (40 + j, 42 + j)
            ts = (80, 84)
            for x in xs:
                a.e("v_pk_add_f32 %s, %s, v[4:5] op_sel_hi:[1,0] neg_lo:[0,1] neg_hi:[0,1]" % (V(x), V(x)))
            for x, t in zip(xs, ts):
                a.e("v_cvt_pk_bf16_f32 v%d, v%d, v%d" % (t, x, x + 1))
            for x, t in zip(xs, ts):
                a.e("v_lshlrev_b32 v%d, 16, v%d" % (x, t))
                a.e("v_and_b32 v%d, 0xffff0000, v%d" % (x + 1, t))
            for x, t in zip(xs, ts):
                a.e("v_pk_mul_f32 %s, %s, v[8:9] op_sel_hi:[1,0]" % (V(t), V(x)))
            for x, t in zip(xs, ts):
                a.e("v_pk_fma_f32 %s, %s, v[6:7], %s op_sel_hi:[1,0,1] neg_lo:[1,0,0] neg_hi:[1,0,0]" % (V(x), V(t), V(x)))
            for x, t in zip(xs, ts):
                a.e("v_pk_fma_f32 %s, %s, v[8:9], %s op_sel_hi:[1,0,1]" % (V(t), V(x), V(t)))
            for x, t in zip(xs, ts):
                a.e("v_cvt_pk_bf16_f32 v%d, v%d, v%d" % (10 + (x - 40) // 2, t, t + 1))
    else:
        a.e("v_add_f32 v4, v40, v41")
        for j in range(2, 40):
            a.e("v_add_f32 v4, v4, v%d" % (40 + j))

        def red16(reg, tmp):
            for off in (0x041F, 0x081F, 0x101F, 0x201F):
                a.e("ds_swizzle_b32 v%d, v%d offset:0x%x" % (tmp, reg, off))
                a.e("s_waitcnt lgkmcnt(0)")
                a.e("v_add_f32 v%d, v%d, v%d" % (reg, reg, tmp))
        red16(4, 5)
        a.e("s_mov_b32 s7, 0x3acccccd")
        a.e("v_mul_f32 v4, s7, v4")
        a.e("v_sub_f32 v6, v40, v4")
        a.e("v_mul_f32 v5, v6, v6")
        for j in range(1, 40):
            a.e("v_sub_f32 v6, v%d, v4" % (40 + j))
            a.e("v_fma_f32 v5, v6, v6, v5")
        red16(5, 6)
        a.e("v_mul_f32 v5, s7, v5")
        bf16r(a, 4, 4)
        bf16r(a, 5, 5)
        a.e("v_add_f32 v5, 0x3727c5ac, v5")
        bf16r(a, 5, 5)
        a.e("v_sqrt_f32 v5, v5")
        a.e("s_nop 0")
        bf16r(a, 5, 5)
        a.e("v_rcp_f32 v6, v5")
        for j in range(0, 40, 2):
            x0, x1 = 40 + j, 41 + j
            a.e("v_sub_f32 v%d, v%d, v4" % (x0, x0))
            a.e("v_sub_f32 v%d, v%d, v4" % (x1, x1))
            a.e("v_cvt_pk_bf16_f32 v7, v%d, v%d" % (x0, x1))
            a.e("v_lshlrev_b32 v%d, 16, v7" % x0)
            a.e("v_and_b32 v%d, 0xffff0000, v7" % x1)
            a.e("v_mul_f32 v7, v%d, v6" % x0)
            a.e("v_mul_f32 v8, v%d, v6" % x1)
            a.e("v_fma_f32 v%d, -v7, v5, v%d" % (x0, x0))
            a.e("v_fma_f32 v%d, -v8, v5, v%d" % (x1, x1))
            a.e("v_fma_f32 v7, v%d, v6, v7" % x0)
            a.e("v_fma_f32 v8, v%d, v6, v8" % x1)
            a.e("v_cvt_pk_bf16_f32 v%d, v7, v8" % (10 + j // 2))
    LSTR = 1296
    a.stamp()
    if XB:
        assert LN2
        for i in range(5):
            a.e("ds_write_b128 v116, v[%d:%d] offset:%d" % (10 + 4 * i, 13 + 4 * i, 256 * i))
        a.e("s_waitcnt lgkmcnt(0)")
        a.stamp()
        a.e("s_barrier")
        a.stamp()
        for i in range(5):
            a.e("ds_read_b128 v[%d:%d], v117 offset:%d" % (40 + 4 * i, 43 + 4 * i, 64 * i))
        for r in range(16):
            a.e("ds_read_b32 v%d, v119 offset:%d" % (60 + r, LSTR * r))
        for i in range(5):
            a.e("s_waitcnt lgkmcnt(%d)" % min(15, 20 - i))
            a.e("buffer_store_dwordx4 v[%d:%d], v118, s[%d:%d], s%d offen offset:%d" % (40 + 4 * i, 43 + 4 * i, SRD_WS, SRD_WS + 3, 40 if i < 4 else 41, 1024 * i if i < 4 else 0))
        lab = a.newlabel("L_lnx")
        a.e("s_cmp_lg_u32 s3, 0")
        a.e("s_cbranch_scc1 %s" % lab)
        for r in range(16):
            a.e("ds_read_b32 v%d, v119 offset:%d" % (76 + r, LSTR * r + 1024))
        a.label(lab)
        RBK = [26, 30, 34, 108]

        def xround(raw, po, rbk, so):
            for r in range(8):
                a.e("v_perm_b32 v%d, v%d, v%d, s46" % (po + r, raw + 1 + 2 * r, raw + 2 * r))
                a.e("v_perm_b32 v%d, v%d, v%d, s47" % (po + 8 + r, raw + 1 + 2 * r, raw + 2 * r))
            for j in range(4):
                a.e("ds_write_b128 v120, v[%d:%d] offset:%d" % (po + 4 * j, po + 4 * j + 3, 16 * j))
            a.e("s_waitcnt lgkmcnt(0)")
            for j in range(4):
                a.e("ds_read_b128 v[%d:%d], v121 offset:%d" % (rbk[j], rbk[j] + 3, 1024 * j))
            for j in range(4):
                a.e("s_waitcnt lgkmcnt(%d)" % (3 - j))
                a.e("buffer_store_dwordx4 v[%d:%d], v118, s[%d:%d], s%d offen offset:%d" % (rbk[j], rbk[j] + 3, SRD_WS, SRD_WS + 3, so, 1024 * j))
        a.e("s_waitcnt lgkmcnt(0)")
        xround(60, 10, RBK, 44)
        lab = a.newlabel("L_lnx")
        a.e("s_cmp_lg_u32 s3, 0")
        a.e("s_cbranch_scc1 %s" % lab)
        xround(76, 92, [10, 14, 18, 22], 45)
        a.label(lab)
        a.stamp()
        if STAMP:
            a.e("s_waitcnt vmcnt(0)")
    elif LN2:
        for i in range(5):
            a.e("s_add_u32 s41, s40, %d" % (4096 * i))
            a.e("buffer_store_dwordx4 v[%d:%d], v90, s[%d:%d], s41 offen" % (10 + 4 * i, 13 + 4 * i, SRD_WS, SRD_WS + 3))
            a.e("ds_write_b128 v92, v[%d:%d] offset:%d" % (10 + 4 * i, 13 + 4 * i, 256 * i))
        a.e("s_waitcnt lgkmcnt(0)")
        a.stamp()
        a.e("s_barrier")
        a.stamp()
        for r in range(16):
            a.e("ds_read_b32 v%d, v93 offset:%d" % (40 + r, LSTR * r))
        lab = a.newlabel("L_lnx")
        lab2 = a.newlabel("L_lnx")
        a.e("s_cmp_lg_u32 s3, 0")
        a.e("s_cbranch_scc1 %s" % lab)
        for r in range(16):
            a.e("ds_read_b32 v%d, v93 offset:%d" % (56 + r, LSTR * r + 1024))
        a.e("s_waitcnt lgkmcnt(0)")
        for r in range(8):
            a.e("v_perm_b32 v%d, v%d, v%d, s46" % (10 + r, 57 + 2 * r, 56 + 2 * r))
            a.e("v_perm_b32 v%d, v%d, v%d, s47" % (18 + r, 57 + 2 * r, 56 + 2 * r))
        a.e("v_add_u32 v95, %d, v94" % (512 * XNT_STR))
        a.e("buffer_store_dwordx4 v[10:13], v95, s[%d:%d], s44 offen" % (SRD_WS, SRD_WS + 3))
        a.e("buffer_store_dwordx4 v[14:17], v95, s[%d:%d], s44 offen offset:16" % (SRD_WS, SRD_WS + 3))
        a.e("buffer_store_dwordx4 v[18:21], v95, s[%d:%d], s45 offen" % (SRD_WS, SRD_WS + 3))
        a.e("buffer_store_dwordx4 v[22:25], v95, s[%d:%d], s45 offen offset:16" % (SRD_WS, SRD_WS + 3))
        a.label(lab)
        a.e("s_waitcnt lgkmcnt(0)")
        for r in range(8):
            a.e("v_perm_b32 v%d, v%d, v%d, s46" % (72 + r, 41 + 2 * r, 40 + 2 * r))
            a.e("v_perm_b32 v%d, v%d, v%d, s47" % (80 + r, 41 + 2 * r, 40 + 2 * r))
        a.e("buffer_store_dwordx4 v[72:75], v94, s[%d:%d], s44 offen" % (SRD_WS, SRD_WS + 3))
        a.e("buffer_store_dwordx4 v[76:79], v94, s[%d:%d], s44 offen offset:16" % (SRD_WS, SRD_WS + 3))
        a.e("buffer_store_dwordx4 v[80:83], v94, s[%d:%d], s45 offen" % (SRD_WS, SRD_WS + 3))
        a.e("buffer_store_dwordx4 v[84:87], v94, s[%d:%d], s45 offen offset:16" % (SRD_WS, SRD_WS + 3))
        a.stamp()
        if STAMP:
            a.e("s_waitcnt vmcnt(0)")
    else:
        a.e("s_mul_i32 s40, s4, 20480")
        a.e("s_add_u32 s40, s40, %d" % XNF)
        a.e("v_lshrrev_b32 v7, 2, v2")
        a.e("v_lshlrev_b32 v7, 10, v7")
        a.e("v_and_b32 v8, 3, v2")
        a.e("v_lshl_add_u32 v7, v8, 8, v7")
        a.e("v_add_u32 v8, s6, v1")
        a.e("v_lshl_add_u32 v7, v8, 4, v7")
        for i in range(5):
            a.e("s_add_u32 s41, s40, %d" % (4096 * i))
            a.e("buffer_store_dwordx4 v[%d:%d], v7, s[%d:%d], s41 offen" % (10 + 4 * i, 13 + 4 * i, SRD_WS, SRD_WS + 3))
        LSTR = 1296
        a.e("v_mul_u32_u24 v9, %d, v8" % LSTR)
        a.e("v_lshl_add_u32 v9, v2, 4, v9")
        for i in range(5):
            a.e("ds_write_b128 v9, v[%d:%d] offset:%d" % (10 + 4 * i, 13 + 4 * i, 256 * i))
        a.e("s_waitcnt lgkmcnt(0)")
        a.e("s_barrier")
        a.e("s_lshl_b32 s5, s3, 6")
        a.e("v_add_u32 v1, s5, v0")
        a.e("s_lshl_b32 s40, s4, 5")
        a.e("s_add_u32 s40, s40, %d" % (XNT + 240))
        for j in range(3):
            a.e("v_add_u32 v2, %d, v1" % (256 * j))
            if j == 2:
                a.e("v_cmp_gt_u32 vcc, 640, v2")
                a.e("s_and_saveexec_b64 s[42:43], vcc")
            a.e("v_lshlrev_b32 v3, 1, v2")
            if False:
                for r in range(8):
                    a.e("ds_read_u16_d16 v%d, v3 offset:%d" % (40 + 8 * j + r, LSTR * 2 * r))
                    a.e("ds_read_u16_d16_hi v%d, v3 offset:%d" % (40 + 8 * j + r, LSTR * (2 * r + 1)))
                a.e("v_mul_u32_u24 v4, %d, v2" % XNT_STR)
                a.e("s_waitcnt lgkmcnt(0)")
            else:
                for r in range(16):
                    a.e("ds_read_u16 v%d, v3 offset:%d" % (64 + r, LSTR * r))
                a.e("v_mul_u32_u24 v4, %d, v2" % XNT_STR)
                a.e("s_waitcnt lgkmcnt(0)")
                for r in range(8):
                    a.e("v_lshl_or_b32 v%d, v%d, 16, v%d" % (40 + 8 * j + r, 65 + 2 * r, 64 + 2 * r))
            a.e("buffer_store_dwordx4 v[%d:%d], v4, s[%d:%d], s40 offen" % (40 + 8 * j, 43 + 8 * j, SRD_WS, SRD_WS + 3))
            a.e("buffer_store_dwordx4 v[%d:%d], v4, s[%d:%d], s40 offen offset:16" % (44 + 8 * j, 47 + 8 * j, SRD_WS, SRD_WS + 3))
            if j == 2:
                a.e("s_mov_b64 exec, s[42:43]")
    a.stamp_out()
    a.e("s_branch L_end_%s" % a.kname)


def gen_wt(a, which):
    if which == 1:
        base_id = W1_BASE
        ncols = F
        ptr = P_W1
        dst = W1F
        nkb = 20
        nj = 5
    else:
        base_id = W2_BASE
        ncols = D
        ptr = P_W2
        dst = W2F
        nkb = 54
        nj = 5
    a.c("---- W%d transposition ----" % which)
    if "wt" in SKIP:
        a.e("s_branch L_end_%s" % a.kname)
    a.e("s_sub_u32 s4, s2, %d" % base_id)
    if os.environ.get("CPF", "2") == "1":
        lpc = a.newlabel("L_pc")
        a.e("s_getpc_b64 s[50:51]")
        a.label(lpc)
        a.e("s_add_u32 s50, s50, mid_kernel-%s" % lpc)
        a.e("s_addc_u32 s51, s51, 0")
        a.e("s_lshl_b32 s52, s3, 13")
        a.e("v_lshl_add_u32 v100, v0, 7, s52")
        a.e("v_min_u32 v100, L_end_p3-mid_kernel-64, v100")
        a.e("global_load_dword v101, v100, s[50:51]")
        a.e("global_load_dword v102, v100, s[50:51] offset:64")
    if which == 1:
        a.e("s_mov_b32 s5, s4")
        a.e("s_mov_b32 s6, s3")
        a.e("s_mov_b32 s7, 20")
    else:
        a.e("s_cmp_ge_u32 s4, 40")
        a.e("s_cselect_b32 s40, 1, 0")
        a.e("s_cmp_ge_u32 s4, 80")
        a.e("s_cselect_b32 s41, 1, 0")
        a.e("s_add_u32 s40, s40, s41")
        a.e("s_mul_i32 s41, s40, 40")
        a.e("s_sub_u32 s5, s4, s41")
        a.e("s_mul_i32 s6, s40, 18")
        a.e("s_add_u32 s7, s6, 18")
        a.e("s_add_u32 s6, s6, s3")
    make_srd(a, 44, ptr, D * F * 2)
    a.e("v_lshrrev_b32 v1, 4, v0")
    a.e("v_mul_u32_u24 v1, %d, v1" % (8 * ncols * 2))
    a.e("v_and_b32 v2, 15, v0")
    a.e("v_lshl_add_u32 v1, v2, 1, v1")
    a.e("s_lshl_b32 s40, s5, 5")
    a.e("v_add_u32 v1, s40, v1")
    a.e("v_lshlrev_b32 v2, 4, v0")
    a.e("s_mul_i32 s41, s5, %d" % (nkb * 1024))
    a.e("s_add_u32 s41, s41, %d" % dst)
    for j in range(nj):
        lab = a.newlabel("L_wt")
        a.e("s_add_u32 s42, s6, %d" % (4 * j))
        a.e("s_cmp_ge_u32 s42, s7")
        a.e("s_cbranch_scc1 %s" % lab)
        a.e("s_mul_i32 s43, s42, %d" % (32 * ncols * 2))
        for e in range(8):
            a.e("s_add_u32 s48, s43, %d" % (e * ncols * 2))
            a.e("buffer_load_ushort v%d, v1, s[44:47], s48 offen" % (40 + 8 * j + e))
        a.label(lab)
    for j in range(nj):
        lab = a.newlabel("L_wt")
        a.e("s_add_u32 s42, s6, %d" % (4 * j))
        a.e("s_cmp_ge_u32 s42, s7")
        a.e("s_cbranch_scc1 %s" % lab)
        a.e("s_lshl_b32 s43, s42, 10")
        a.e("s_add_u32 s43, s43, s41")
        a.e("s_waitcnt vmcnt(0)")
        for e in range(4):
            a.e("v_lshl_or_b32 v%d, v%d, 16, v%d" % (10 + 4 * j + e, 41 + 8 * j + 2 * e, 40 + 8 * j + 2 * e))
        a.e("buffer_store_dwordx4 v[%d:%d], v2, s[%d:%d], s43 offen" % (10 + 4 * j, 13 + 4 * j, SRD_WS, SRD_WS + 3))
        a.label(lab)
    a.stamp_out()
    a.e("s_branch L_end_%s" % a.kname)


def code_prefetch(a):
    lpc = a.newlabel("L_pc")
    a.e("s_getpc_b64 s[60:61]")
    a.label(lpc)
    a.e("s_add_u32 s60, s60, mid_kernel-%s" % lpc)
    a.e("s_addc_u32 s61, s61, 0")
    a.e("s_lshl_b32 s62, s3, 13")
    a.e("v_lshl_add_u32 v120, v0, 7, s62")
    a.e("v_min_u32 v120, L_end_p3-mid_kernel-64, v120")
    a.e("global_load_dword v121, v120, s[60:61]")
    a.e("global_load_dword v122, v120, s[60:61] offset:64")


def gen_wt2(a):
    a.c("---- W1/W2 transposition ----")
    if "wt" in SKIP:
        a.e("s_branch L_end_%s" % a.kname)
    if WT2 != "bal":
        a.e("s_sub_u32 s4, s2, %d" % WT_BASE)
    a.e("s_lshl_b32 s4, s4, 2")
    a.e("s_add_u32 s4, s4, s3")
    a.e("s_mov_b32 s5, %d" % (2 * F))
    a.e("s_mov_b32 s42, 2428")
    a.e("s_mov_b32 s43, %d" % (20 * 1024))
    a.e("s_mov_b32 s48, %d" % W1F)
    a.e("s_cmp_ge_u32 s4, 270")
    a.e("s_cselect_b32 s44, s%d, s%d" % (P_W2, P_W1))
    a.e("s_cselect_b32 s45, s%d, s%d" % (P_W2 + 1, P_W1 + 1))
    a.e("s_cselect_b32 s5, %d, s5" % (2 * D))
    a.e("s_cselect_b32 s6, 270, 0")
    a.e("s_cselect_b32 s7, 10, 27")
    a.e("s_cselect_b32 s42, 6554, s42")
    a.e("s_cselect_b32 s43, %d, s43" % (54 * 1024))
    a.e("s_cselect_b32 s48, %d, s48" % W2F)
    a.e("s_and_b32 s45, s45, 0xffff")
    a.e("s_mov_b32 s46, %d" % (D * F * 2))
    a.e("s_mov_b32 s47, 0x00020000")
    a.e("s_sub_u32 s4, s4, s6")
    a.e("s_mul_i32 s49, s4, s42")
    a.e("s_lshr_b32 s49, s49, 16")
    a.e("s_mul_i32 s50, s49, s7")
    a.e("s_sub_u32 s50, s4, s50")
    a.e("s_lshl_b32 s6, s5, 3")
    a.e("v_lshrrev_b32 v1, 3, v0")
    a.e("v_mul_u32_u24 v1, s6, v1")
    a.e("v_and_b32 v2, 7, v0")
    a.e("v_lshl_add_u32 v1, v2, 4, v1")
    a.e("s_lshl_b32 s6, s6, 3")
    a.e("s_mul_i32 s51, s49, s6")
    a.e("s_lshl_b32 s6, s50, 7")
    a.e("s_add_u32 s51, s51, s6")
    for e in range(8):
        a.e("buffer_load_dwordx4 v[%d:%d], v1, s[44:47], s51 offen" % (40 + 4 * e, 43 + 4 * e))
        if e < 7:
            a.e("s_add_u32 s51, s51, s5")
    if os.environ.get("CPF", "2") == "1":
        code_prefetch(a)
    if os.environ.get("CPF", "2") == "2":
        lcp = a.newlabel("L_cp")
        a.e("s_cmp_ge_u32 s2, %d" % (WT_BASE + 16))
        a.e("s_cbranch_scc1 %s" % lcp)
        code_prefetch(a)
        a.label(lcp)
    a.e("s_mul_i32 s6, s3, 9216")
    a.e("v_mul_u32_u24 v2, 144, v0")
    a.e("v_add_u32 v2, s6, v2")
    a.e("v_lshrrev_b32 v3, 4, v0")
    a.e("v_mul_u32_u24 v3, 1152, v3")
    a.e("v_bfe_u32 v4, v0, 3, 1")
    a.e("v_mul_u32_u24 v4, 144, v4")
    a.e("v_add3_u32 v3, v3, v4, s6")
    a.e("v_and_b32 v4, 7, v0")
    a.e("v_lshl_add_u32 v3, v4, 4, v3")
    a.e("v_lshlrev_b32 v4, 4, v0")
    a.e("s_mul_i32 s52, s50, s43")
    a.e("s_lshl_b32 s52, s52, 2")
    a.e("s_lshl_b32 s6, s49, 11")
    a.e("s_add_u32 s52, s52, s6")
    a.e("s_add_u32 s52, s52, s48")
    a.e("s_mov_b32 s40, 0x05040100")
    a.e("s_mov_b32 s41, 0x07060302")
    a.e("s_waitcnt vmcnt(%d)" % (2 if os.environ.get("CPF", "2") == "1" else 0))
    for i in range(8):
        for d in range(4):
            a.e("v_perm_b32 v%d, v%d, v%d, s%d" % (80 + 4 * i + d, 40 + 4 * (2 * d + 1) + (i >> 1), 40 + 4 * (2 * d) + (i >> 1), 40 + (i & 1)))
        a.e("ds_write_b128 v2, v[%d:%d] offset:%d" % (80 + 4 * i, 83 + 4 * i, 16 * i))
    a.e("s_waitcnt lgkmcnt(0)")
    for nbl in range(4):
        for kbl in range(2):
            j = 2 * nbl + kbl
            a.e("ds_read_b128 v[%d:%d], v3 offset:%d" % (40 + 4 * j, 43 + 4 * j, kbl * 4608 + nbl * 288))
    for nbl in range(4):
        for kbl in range(2):
            j = 2 * nbl + kbl
            a.e("s_waitcnt lgkmcnt(%d)" % (7 - j))
            a.e("buffer_store_dwordx4 v[%d:%d], v4, s[%d:%d], s52 offen offset:%d" % (40 + 4 * j, 43 + 4 * j, SRD_WS, SRD_WS + 3, 1024 * kbl))
        if nbl < 3:
            a.e("s_add_u32 s52, s52, s43")
    a.stamp_out()
    a.e("s_branch L_end_%s" % a.kname)


def gen_phase1(a):
    a.kname = "p1"
    a.label("prep_kernel")
    prologue(a, P1_WGS)
    if WT2 == "bal":
        a.e("s_lshr_b32 s5, s2, 7")
        a.e("s_cmp_eq_u32 s5, 0")
        a.e("s_cbranch_scc1 L_p1_ln")
        a.e("s_sub_u32 s4, s2, 128")
        a.e("s_cmp_eq_u32 s5, 1")
        a.e("s_cbranch_scc1 L_p1_kg")
        a.e("s_sub_u32 s4, s2, 256")
        a.e("s_cmp_eq_u32 s5, 2")
        a.e("s_cbranch_scc1 L_p1_wt")
        a.e("s_cmp_lt_u32 s5, 7")
        a.e("s_cbranch_scc1 L_p1_kg")
        a.e("s_sub_u32 s4, s2, 768")
        a.label("L_p1_wt")
        gen_wt2(a)
        a.label("L_p1_ln")
        gen_ln(a)
        a.label("L_p1_kg")
        gen_kgen(a)
        a.label("L_end_p1")
        a.e("s_endpgm")
        return
    if WT2:
        a.e("s_cmp_ge_u32 s2, %d" % KG_BASE)
        a.e("s_cbranch_scc1 L_p1_kg")
        if WT2 == "wl":
            a.e("s_cmp_ge_u32 s2, %d" % LN_BASE)
        else:
            a.e("s_cmp_lt_u32 s2, %d" % WT_BASE)
        a.e("s_cbranch_scc1 L_p1_ln")
        gen_wt2(a)
        a.label("L_p1_ln")
        gen_ln(a)
        a.label("L_p1_kg")
        gen_kgen(a)
        a.label("L_end_p1")
        a.e("s_endpgm")
        return
    if KG_BASE == 0:
        a.e("s_cmp_lt_u32 s2, %d" % N_KG)
    else:
        a.e("s_cmp_ge_u32 s2, %d" % KG_BASE)
    a.e("s_cbranch_scc1 L_p1_kg")
    a.e("s_cmp_lt_u32 s2, %d" % W1_BASE)
    a.e("s_cbranch_scc1 L_p1_ln")
    a.e("s_cmp_lt_u32 s2, %d" % W2_BASE)
    a.e("s_cbranch_scc1 L_p1_w1")
    gen_wt(a, 2)
    a.label("L_p1_w1")
    gen_wt(a, 1)
    a.label("L_p1_ln")
    gen_ln(a)
    a.label("L_p1_kg")
    gen_kgen(a)
    a.label("L_end_p1")
    a.e("s_endpgm")


class VM:
    def __init__(self, a):
        self.a = a
        self.q = []

    def issue(self, tag):
        self.q.append(tag)

    def wait(self, tag):
        idx = [i for i, t in enumerate(self.q) if t == tag]
        if not idx:
            return
        n = len(self.q) - 1 - idx[-1]
        assert n <= 63
        self.a.e("s_waitcnt vmcnt(%d)" % n)
        self.q = self.q[idx[-1] + 1:]

    def wait2(self, t1, t2):
        idx = [i for i, t in enumerate(self.q) if t in (t1, t2)]
        if not idx:
            return
        n = len(self.q) - 1 - idx[-1]
        assert n <= 63
        self.a.e("s_waitcnt vmcnt(%d)" % n)
        self.q = self.q[idx[-1] + 1:]

    def waitall(self):
        if self.q:
            self.a.e("s_waitcnt vmcnt(0)")
            self.q = []


def gemm_loop(a, vm, nst, kbs, nA, nB, nslots, slot_bytes, a_src, b_src, a_kstride_chunks,
              wave_bcols, acc0, regs, vlane16, vrdA, vrdB, sbase, sldso):
    nch = kbs * (nA + nB)
    nld = (nch + 3) // 4

    def dma(st):
        slot = st % nslots
        out = []
        for j in range(nld):
            out.append(["s_add_u32 m0, s%d, %d" % (sldso + j, slot * slot_bytes),
                        "s_add_u32 s6, s%d, %d" % (sbase + j, st * kbs * 1024),
                        "buffer_load_dwordx4 v%d, s[%d:%d], s6 offen lds" % (vlane16, SRD_WS, SRD_WS + 3)])
        return out

    def reads(st, rs):
        slot = st % nslots
        r = regs[rs]
        out = []
        for kk in range(kbs):
            for i in range(nA):
                off = slot * slot_bytes + (kk * nA + i) * 1024
                va = vrdA
                if off >= 65536:
                    off -= 32768
                    va = vrdA + 2
                out.append(["ds_read_b128 v[%d:%d], v%d offset:%d" % (r, r + 3, va, off)])
                r += 4
            for jj in range(wave_bcols):
                off = slot * slot_bytes + (kbs * nA + kk * nB + jj) * 1024
                vb = vrdB
                if off + (nB - wave_bcols) * 1024 >= 65536:
                    off -= 32768
                    vb = vrdB + 2
                out.append(["ds_read_b128 v[%d:%d], v%d offset:%d" % (r, r + 3, vb, off)])
                r += 4
        return out

    def mfmas(rs):
        per = (nA + wave_bcols) * 4
        out = []
        for kk in range(kbs):
            r = regs[rs] + kk * per
            for i in range(nA):
                for jj in range(wave_bcols):
                    acc = acc0 + (i * wave_bcols + jj) * 4
                    out.append("v_mfma_f32_16x16x32_bf16 v[%d:%d], v[%d:%d], v[%d:%d], v[%d:%d]" % (
                        acc, acc + 3, r + 4 * i, r + 4 * i + 3, r + 4 * (nA + jj), r + 4 * (nA + jj) + 3, acc, acc + 3))
        return out

    def emit(groups, tag=None):
        for g in groups:
            for s in g:
                a.e(s)
            if tag and g[-1].startswith("buffer"):
                vm.issue(tag)

    for st in range(min(nslots, nst)):
        emit(dma(st), "st%d" % st)
    vm.wait("st0")
    a.stamp()
    a.e("s_barrier")
    emit(reads(0, 0))
    for i in range(nst):
        a.e("s_waitcnt lgkmcnt(0)")
        other = []
        if i + 1 < nst:
            vm.wait("st%d" % (i + 1))
            a.e("s_barrier")
            rd = reads(i + 1, (i + 1) % 2)
            dm = dma(i + nslots) if i + nslots < nst else []
            if ILV == 0:
                emit(dm, "st%d" % (i + nslots))
                emit(rd)
            else:
                k = 0
                while rd or dm:
                    if rd:
                        other.append(rd.pop(0))
                    if rd and k % 2 == 0:
                        other.append(rd.pop(0))
                    if dm:
                        other.append(dm.pop(0))
                    k += 1
        m = mfmas(i % 2)
        no = len(other)
        nm = len(m)
        done = 0
        for k in range(nm):
            a.e(m[k])
            tgt = ((k + 1) * no + nm - 1) // nm if ILV == 1 else min(no, (k + 1) * ILV)
            while done < tgt:
                emit([other[done]], "st%d" % (i + nslots))
                done += 1
        assert done == no


def gemm_loop2(a, vm, nst, nAc, nA, nBw, nslots, kstride, acc0, aregs, bregs, nb,
               vlane16, vrdA, sbase, sldso, sB, bstride, bcolstride, after_prologue=None, extra=None, extra_per=4, extra_start=1, timed=None):
    nfull = nAc // 4
    rem = nAc - 4 * nfull
    slot_bytes = nAc * 1024

    def dma(st):
        slot = st % nslots
        out = []
        for j in range(nfull):
            out.append(["s_add_u32 m0, s%d, %d" % (sldso + j, slot * slot_bytes),
                        "s_add_u32 s6, s%d, %d" % (sbase + j, st * kstride),
                        "buffer_load_dwordx4 v%d, s[%d:%d], s6 offen lds" % (vlane16, SRD_WS, SRD_WS + 3)])
        if rem:
            j = nfull
            out.append(["s_add_u32 m0, s%d, %d" % (sldso + j, slot * slot_bytes),
                        "s_add_u32 s6, s%d, %d" % (sbase + j, st * kstride),
                        "s_mov_b64 exec, 0x%x" % ((1 << (16 * rem)) - 1),
                        "buffer_load_dwordx4 v%d, s[%d:%d], s6 offen lds" % (vlane16, SRD_WS, SRD_WS + 3),
                        "s_mov_b64 exec, -1"])
        return out

    def bload(st):
        out = []
        r = bregs + (st % nb) * 4 * nBw
        for jj in range(nBw):
            out.append(["s_add_u32 s7, s%d, %d" % (sB, st * bstride + jj * bcolstride),
                        "buffer_load_dwordx4 v[%d:%d], v%d, s[%d:%d], s7 offen" % (r + 4 * jj, r + 4 * jj + 3, vlane16, SRD_WS, SRD_WS + 3)])
        return out

    def reads(st):
        slot = st % nslots
        r = aregs + (st % 2) * 4 * nA
        out = []
        for i in range(nA):
            off = slot * slot_bytes + i * 1024
            assert off + (nAc - nA) * 1024 < 65536
            out.append(["ds_read_b128 v[%d:%d], v%d offset:%d" % (r + 4 * i, r + 4 * i + 3, vrdA, off)])
        return out

    def mfmas(st):
        ra = aregs + (st % 2) * 4 * nA
        rb = bregs + (st % nb) * 4 * nBw
        out = []
        for i in range(nA):
            for jj in range(nBw):
                acc = acc0 + (i * nBw + jj) * 4
                out.append("v_mfma_f32_16x16x32_bf16 v[%d:%d], v[%d:%d], v[%d:%d], v[%d:%d]" % (
                    acc, acc + 3, ra + 4 * i, ra + 4 * i + 3, rb + 4 * jj, rb + 4 * jj + 3, acc, acc + 3))
        return out

    def emit(groups, tag=None):
        for g in groups:
            for s in g:
                a.e(s)
            if tag:
                vm.issue(tag)

    PRO = int(os.environ.get("PRO", "9"))
    na = nbn = 0
    for st in range(max(nslots, nb - 1)):
        if st < nslots and st < nst and st < PRO:
            emit(dma(st), "a%d" % st)
            na = st + 1
        if st < nb - 1 and st < nst and st < PRO:
            emit(bload(st), "b%d" % st)
            nbn = st + 1
    a.stamp()
    if after_prologue:
        after_prologue()
    a.stamp()
    vm.wait("a0")
    a.stamp()
    a.e("s_barrier")
    emit(reads(0))
    for i in range(nst):
        a.e("s_waitcnt lgkmcnt(0)")
        other = []
        vm.wait2("a%d" % (i + 1), "b%d" % i)
        if i + 1 < nst:
            a.e("s_barrier")
            rd = [(g, None) for g in reads(i + 1)]
            mem = []
            for rep in range(2):
                if na <= i + nslots and na < nst:
                    mem += [(g, "a%d" % na) for g in dma(na)]
                    na += 1
                if nbn <= i + nb - 1 and nbn < nst:
                    mem += [(g, "b%d" % nbn) for g in bload(nbn)]
                    nbn += 1
            if extra and i >= extra_start:
                mem += [(g, "epi") for g in extra[:extra_per]]
                del extra[:extra_per]
            if timed and i in timed:
                mem += [(g, "pf") for g in timed[i]]
            EXP = os.environ.get("EXP", "")
            if "nomem" in EXP:
                mem = []
            if "nords" in EXP:
                rd = []
            if "front" in EXP:
                other = rd + mem
                rd = []
                mem = []
            k = 0
            while rd or mem:
                if rd:
                    other.append(rd.pop(0))
                if rd and len(rd) >= 2 * len(mem):
                    other.append(rd.pop(0))
                if mem:
                    other.append(mem.pop(0))
        m = mfmas(i)
        no = len(other)
        nm = len(m)
        done = 0
        for k in range(nm):
            a.e(m[k])
            tgt = ((k + 1) * no + nm - 1) // nm
            if "front" in os.environ.get("EXP", ""):
                tgt = min(no, k + 1)
            while done < tgt:
                emit([other[done][0]], other[done][1])
                done += 1
        assert done == no


def dma_setup(a, nAc, SB, SL, gaddr):
    nfull = nAc // 4
    rem = nAc - 4 * nfull
    for j in range(nfull):
        a.e("s_add_u32 s6, s3, %d" % (4 * j))
        a.e("s_lshl_b32 s%d, s6, 10" % (SL + j))
        gaddr(a, 6, SB + j)
    if rem:
        j = nfull
        a.e("s_mul_i32 s7, s3, %d" % (rem * 256))
        a.e("s_lshr_b32 s6, s7, 10")
        a.e("s_add_u32 s6, s6, %d" % (4 * nfull))
        a.e("s_and_b32 s7, s7, 1023")
        a.e("s_lshl_b32 s%d, s6, 10" % (SL + j))
        a.e("s_add_u32 s%d, s%d, s7" % (SL + j, SL + j))
        gaddr(a, 6, SB + j)
        a.e("s_add_u32 s%d, s%d, s7" % (SB + j, SB + j))


N_G1 = 256
N_CV = 640
P2_WGS = N_G1 + N_CV
G1_SLOT = 8 * 1024
G1_NSLOT = int(os.environ.get("G1_NSLOT", "5"))
P2_LDS = max(G1_SLOT * G1_NSLOT, 40960)


def gen_gemm1(a):
    a.c("---- GEMM1: mt (f tile of 7 or 6 frags), nt (l tile of 128) ----")
    vm = VM(a)
    if "g1" in SKIP:
        a.e("s_branch L_end_%s" % a.kname)
    NA = 7
    G1MAP = os.environ.get("G1MAP", "0")
    if G1MAP == "0":
        a.e("s_lshr_b32 s4, s2, 4")
        a.e("s_and_b32 s5, s2, 7")
        a.e("s_lshl_b32 s5, s5, 1")
        a.e("s_bfe_u32 s6, s2, 0x10003")
        a.e("s_add_u32 s5, s5, s6")
    elif G1MAP == "1":
        a.e("s_bfe_u32 s5, s2, 0x20001")
        a.e("s_lshl_b32 s5, s5, 2")
        a.e("s_bfe_u32 s6, s2, 0x20003")
        a.e("s_add_u32 s5, s5, s6")
        a.e("s_and_b32 s4, s2, 1")
        a.e("s_lshl_b32 s4, s4, 3")
        a.e("s_lshr_b32 s6, s2, 5")
        a.e("s_add_u32 s4, s4, s6")
    elif G1MAP == "3":
        a.e("s_bfe_u32 s5, s2, 0x40003")
        a.e("s_and_b32 s4, s2, 7")
        a.e("s_lshl_b32 s4, s4, 1")
        a.e("s_lshr_b32 s6, s2, 7")
        a.e("s_add_u32 s4, s4, s6")
    else:
        a.e("s_bfe_u32 s5, s2, 0x10002")
        a.e("s_lshl_b32 s5, s5, 3")
        a.e("s_bfe_u32 s6, s2, 0x30003")
        a.e("s_add_u32 s5, s5, s6")
        a.e("s_and_b32 s4, s2, 3")
        a.e("s_lshl_b32 s4, s4, 2")
        a.e("s_lshr_b32 s6, s2, 6")
        a.e("s_add_u32 s4, s4, s6")
    a.e("s_mul_i32 s6, s4, 7")
    a.e("s_mul_i32 s7, s4, 6")
    a.e("s_add_u32 s7, s7, 12")
    a.e("s_cmp_lt_u32 s4, 12")
    a.e("s_cselect_b32 s4, s6, s7")
    a.e("s_cselect_b32 s45, 6, 5")
    SB, SL, SBB = 48, 56, 54

    def gaddr(a, sc, sdst):
        a.e("s_min_u32 s40, s%d, s45" % sc)
        a.e("s_add_u32 s40, s40, s4")
        a.e("s_mul_i32 s40, s40, 20480")
        a.e("s_add_u32 s%d, s40, %d" % (sdst, W1F))
    dma_setup(a, 8, SB, SL, gaddr)
    a.e("s_lshl_b32 s40, s5, 3")
    a.e("s_lshl_b32 s41, s3, 1")
    a.e("s_add_u32 s40, s40, s41")
    a.e("s_mul_i32 s40, s40, 20480")
    a.e("s_add_u32 s%d, s40, %d" % (SBB, XNF))
    a.e("v_lshlrev_b32 v1, 4, v0")
    ACC = 8
    AREG = 64
    BREG = 120
    NB = 4
    BIAS = 152

    def after():
        a.e("s_lshl_b32 s6, s4, 5")
        a.e("v_lshrrev_b32 v6, 4, v0")
        a.e("v_lshlrev_b32 v6, 3, v6")
        a.e("v_add_u32 v6, s6, v6")
        a.e("s_lshl_b32 s6, s45, 5")
        a.e("v_add_u32 v7, s6, v6")
        for i in range(NA):
            if i < NA - 1:
                a.e("global_load_dwordx2 v[%d:%d], v6, s[%d:%d] offset:%d" % (BIAS + 2 * i, BIAS + 2 * i + 1, P_B1, P_B1 + 1, 32 * i))
            else:
                a.e("global_load_dwordx2 v[%d:%d], v7, s[%d:%d]" % (BIAS + 2 * i, BIAS + 2 * i + 1, P_B1, P_B1 + 1))
            vm.issue("bias")
        for i in range(8 * NA):
            a.e("v_mov_b32 v%d, 0" % (ACC + i))
    W2PF = os.environ.get("W2PF", "")
    PFS = int(os.environ.get("PFS", "128"))
    pf = []
    if W2PF:
        a.e("s_lshr_b32 s60, s2, 3")
        a.e("s_mul_i32 s60, s60, 69120")
        a.e("s_mul_i32 s61, s3, 17280")
        a.e("s_add_u32 s60, s60, s61")
        a.e("s_add_u32 s60, s60, %d" % W2F)
        a.e("v_mul_u32_u24 v167, %d, v0" % PFS)
        nl = 17280 // PFS
        k = 0
        while nl > 0:
            g = ["s_add_u32 s61, s60, %d" % (k * 64 * PFS)]
            if nl < 64:
                g.append("s_mov_b64 exec, 0x%x" % ((1 << nl) - 1))
            g.append("buffer_load_dword v166, v167, s[%d:%d], s61 offen" % (SRD_WS, SRD_WS + 3))
            if nl < 64:
                g.append("s_mov_b64 exec, -1")
            pf.append(g)
            nl -= 64
            k += 1
    if W2PF and W2PF != "post":
        gemm_loop2(a, vm, 20, 8, NA, 2, G1_NSLOT, 1024, ACC, AREG, BREG, NB, 1, 1, SB, SL, SBB, 1024, 20480, after, pf, 1, int(W2PF))
        assert not pf
    else:
        gemm_loop2(a, vm, 20, 8, NA, 2, G1_NSLOT, 1024, ACC, AREG, BREG, NB, 1, 1, SB, SL, SBB, 1024, 20480, after)
    vm.waitall()
    for g in pf:
        for x in g:
            a.e(x)
    a.stamp()
    a.e("v_lshrrev_b32 v6, 5, v0")
    a.e("v_lshlrev_b32 v6, 8, v6")
    a.e("v_and_b32 v7, 15, v0")
    a.e("v_lshl_add_u32 v6, v7, 4, v6")
    a.e("v_bfe_u32 v7, v0, 4, 1")
    a.e("v_lshl_add_u32 v6, v7, 3, v6")
    a.e("s_lshl_b32 s6, s5, 3")
    a.e("s_lshl_b32 s7, s3, 1")
    a.e("s_add_u32 s6, s6, s7")
    a.e("s_mul_i32 s6, s6, 55296")
    a.e("s_lshl_b32 s7, s4, 9")
    a.e("s_add_u32 s6, s6, s7")
    a.e("s_add_u32 s6, s6, %d" % ACTF)
    a.e("s_add_u32 s7, s6, 55296")
    a.e("s_lshl_b32 s41, s45, 9")
    a.e("s_add_u32 s40, s6, s41")
    a.e("s_add_u32 s41, s7, s41")
    a.e("s_mov_b32 s42, 0x%x" % LOG2E)
    a.e("s_mov_b32 s43, 0x%x" % LOG2E)
    a.e("s_mov_b32 s44, 0x41a00000")
    a.e("s_mov_b32 s46, 2.0")
    a.e("s_mov_b32 s47, 2.0")
    a.e("s_nop 4")
    T = 64

    def pk(op, d, x, y):
        return "v_pk_%s_f32 v[%d:%d], %s, %s" % (op, d, d + 1, x, y)

    def V(r):
        return "v[%d:%d]" % (r, r + 1)
    for i in range(NA):
        b = BIAS + 2 * i
        a.e("v_lshlrev_b32 v%d, 16, v%d" % (T, b))
        a.e("v_and_b32 v%d, 0xffff0000, v%d" % (T + 1, b))
        a.e("v_lshlrev_b32 v%d, 16, v%d" % (T + 2, b + 1))
        a.e("v_and_b32 v%d, 0xffff0000, v%d" % (T + 3, b + 1))
        h = [T + 4 + 16 * jj for jj in range(2)]
        for jj in range(2):
            acc = ACC + (i * 2 + jj) * 4
            for r in (0, 2):
                a.e(pk("add", h[jj] + r, V(acc + r), V(T + r)))
        for jj in range(2):
            for r in range(4):
                a.e("v_min_f32 v%d, s44, v%d" % (h[jj] + 4 + r, h[jj] + r))
        for jj in range(2):
            for r in (0, 2):
                a.e(pk("mul", h[jj] + 4 + r, V(h[jj] + 4 + r), "s[42:43]"))
        for jj in range(2):
            for r in range(4):
                a.e("v_exp_f32 v%d, v%d" % (h[jj] + 4 + r, h[jj] + 4 + r))
        for jj in range(2):
            for r in (0, 2):
                a.e(pk("add", h[jj] + 8 + r, V(h[jj] + 4 + r), "s[46:47]"))
        for jj in range(2):
            for r in (0, 2):
                a.e(pk("mul", h[jj] + 8 + r, V(h[jj] + 8 + r), V(h[jj] + 4 + r)))
        for jj in range(2):
            for r in (0, 2):
                a.e(pk("add", h[jj] + 12 + r, V(h[jj] + 8 + r), "s[46:47]"))
        for jj in range(2):
            for r in range(4):
                a.e("v_rcp_f32 v%d, v%d" % (h[jj] + 12 + r, h[jj] + 12 + r))
        for jj in range(2):
            for r in (0, 2):
                a.e(pk("mul", h[jj] + 8 + r, V(h[jj] + 8 + r), V(h[jj] + r)))
        for jj in range(2):
            for r in (0, 2):
                a.e(pk("mul", h[jj] + 8 + r, V(h[jj] + 8 + r), V(h[jj] + 12 + r)))
        for jj in range(2):
            nu = h[jj] + 8
            o = 100 + 2 * ((i * 2 + jj) % 8)
            a.e("v_cvt_pk_bf16_f32 v%d, v%d, v%d" % (o, nu, nu + 1))
            a.e("v_cvt_pk_bf16_f32 v%d, v%d, v%d" % (o + 1, nu + 2, nu + 3))
            if i < NA - 1:
                so, off = (6 + jj), 512 * i
            else:
                so, off = (40 + jj), 0
            a.e("buffer_store_dwordx2 v[%d:%d], v6, s[%d:%d], s%d offen offset:%d" % (o, o + 1, SRD_WS, SRD_WS + 3, so, off))
    if W2PF == "post":
        a.e("s_waitcnt vmcnt(0)")
    a.stamp_out()
    a.e("s_branch L_end_%s" % a.kname)


CV_KSTR = 4384
CV_UB = 4 * CV_KSTR


def gen_conv(a):
    a.c("---- conv: channel s2 - N_G1 ----")
    if "cv" in SKIP:
        a.e("s_branch L_end_%s" % a.kname)
    if os.environ.get("CVPRIO", "0") == "1":
        a.e("s_setprio 3")
    a.e("s_sub_u32 s4, s2, %d" % N_G1)
    if XB:
        a.e("s_and_b32 s5, s4, 7")
        a.e("s_mul_i32 s5, s5, 80")
        a.e("s_lshr_b32 s4, s4, 3")
        a.e("s_add_u32 s4, s4, s5")
    a.e("v_lshlrev_b32 v1, 4, v0")
    a.e("s_mul_i32 s5, s4, %d" % KR_STR)
    if XB:
        a.e("s_lshl_b32 s7, s4, 5")
        a.e("s_mul_i32 s6, s3, %d" % (32 * 20480))
        a.e("s_add_u32 s7, s7, s6")
        a.e("v_lshrrev_b32 v6, 1, v0")
        a.e("v_mul_u32_u24 v6, 20480, v6")
        a.e("v_and_b32 v7, 1, v0")
        a.e("v_lshl_add_u32 v6, v7, 4, v6")
    else:
        a.e("s_mul_i32 s7, s4, %d" % XNT_STR)
    a.e("s_add_u32 s7, s7, %d" % XNT)
    a.e("s_lshr_b32 s40, s3, 1")
    a.e("s_lshl_b32 s40, s40, 2")
    a.e("s_sub_u32 s40, 8, s40")
    a.e("s_add_u32 s40, s40, s5")
    a.e("s_and_b32 s41, s3, 1")
    a.e("s_mul_i32 s41, s41, %d" % (KR1 - KR0))
    a.e("s_add_u32 s40, s40, s41")
    a.e("s_add_u32 s40, s40, %d" % KR0)
    a.e("s_mul_i32 s42, s3, %d" % CV_KSTR)
    for p in range(4):
        a.e("s_add_u32 m0, s42, %d" % (1024 * p))
        a.e("s_add_u32 s6, s40, %d" % (1024 * p))
        a.e("buffer_load_dwordx4 v1, s[%d:%d], s6 offen lds" % (SRD_WS, SRD_WS + 3))
    a.e("s_lshl_b32 s44, s3, 10")
    if XB:
        a.e("s_add_u32 m0, s44, %d" % (CV_UB + 240))
        a.e("buffer_load_dwordx4 v6, s[%d:%d], s7 offen lds" % (SRD_WS, SRD_WS + 3))
    else:
        a.e("s_add_u32 m0, s44, %d" % CV_UB)
        a.e("s_add_u32 s6, s7, s44")
        a.e("buffer_load_dwordx4 v1, s[%d:%d], s6 offen lds" % (SRD_WS, SRD_WS + 3))
    a.e("s_mov_b64 exec, 0x1ffff")
    a.e("s_add_u32 m0, s42, 4096")
    a.e("s_add_u32 s6, s40, 4096")
    a.e("buffer_load_dwordx4 v1, s[%d:%d], s6 offen lds" % (SRD_WS, SRD_WS + 3))
    if not XB:
        a.e("s_mov_b64 exec, 0xffff")
        a.e("s_mov_b32 m0, %d" % (CV_UB + 4096))
        a.e("s_add_u32 s6, s7, 4096")
        a.e("buffer_load_dwordx4 v1, s[%d:%d], s6 offen lds" % (SRD_WS, SRD_WS + 3))
    a.e("s_mov_b64 exec, -1")
    a.e("v_and_b32 v2, 3, v0")
    a.e("v_mul_u32_u24 v2, %d, v2" % CV_KSTR)
    a.e("v_bfe_u32 v3, v0, 3, 1")
    a.e("v_lshlrev_b32 v3, 8, v3")
    a.e("v_sub_u32 v2, v2, v3")
    a.e("v_bfe_u32 v3, v0, 2, 1")
    a.e("v_lshlrev_b32 v3, 3, v3")
    a.e("v_sub_u32 v2, v2, v3")
    a.e("v_lshrrev_b32 v3, 4, v0")
    a.e("v_lshl_add_u32 v2, v3, 4, v2")
    a.e("v_add_u32 v2, 648, v2")
    a.e("s_lshl_b32 s6, s3, 7")
    a.e("v_subrev_u32 v2, s6, v2")
    a.e("v_add_u32 v5, 2048, v2")
    a.e("v_and_b32 v4, 15, v0")
    a.e("v_add_u32 v4, v4, v3")
    a.e("v_lshlrev_b32 v4, 4, v4")
    a.e("v_add_u32 v4, %d, v4" % CV_UB)
    a.e("v_subrev_u32 v4, s6, v4")
    ACC = 8
    RA, RB = 40, 72
    for i in range(32):
        a.e("v_mov_b32 v%d, 0" % (ACC + i))
    if XB:
        a.e("s_mov_b64 exec, 0x7fff")
        a.e("ds_write_b128 v1, v[%d:%d] offset:%d" % (ACC, ACC + 3, CV_UB))
        a.e("s_mov_b64 exec, -1")
    a.stamp()
    a.e("s_waitcnt vmcnt(0) lgkmcnt(0)")
    a.stamp()
    a.e("s_barrier")
    a.stamp()
    for rr in range(2):
        for x in range(8):
            off = (63 - 8 * x - rr) * 64 - 384
            va = 2
            if off >= 2048:
                off -= 2048
                va = 5
            a.e("ds_read2_b64 v[%d:%d], v%d offset0:%d offset1:%d" % (RA + 4 * x, RA + 4 * x + 3, va, off // 8, off // 8 + 1))
            a.e("ds_read_b128 v[%d:%d], v4 offset:%d" % (RB + 4 * x, RB + 4 * x + 3, 64 * (8 * x - rr + 7)))
        a.e("s_waitcnt lgkmcnt(0)")
        for aa in range(8):
            for g in range(aa, 8):
                bb = g - aa
                a.e("v_mfma_f32_16x16x32_bf16 v[%d:%d], v[%d:%d], v[%d:%d], v[%d:%d]" % (
                    ACC + 4 * g, ACC + 4 * g + 3, RA + 4 * aa, RA + 4 * aa + 3, RB + 4 * bb, RB + 4 * bb + 3,
                    ACC + 4 * g, ACC + 4 * g + 3))
    a.e("s_nop 7")
    a.stamp()
    a.e("s_barrier")
    a.e("s_lshl_b32 s6, s3, 13")
    a.e("v_add_u32 v5, s6, v1")
    for g in range(8):
        a.e("ds_write_b128 v5, v[%d:%d] offset:%d" % (ACC + 4 * g, ACC + 4 * g + 3, 1024 * g))
    a.e("s_waitcnt lgkmcnt(0)")
    a.e("s_barrier")
    a.e("s_lshl_b32 s6, s3, 11")
    a.e("v_add_u32 v5, s6, v1")
    for gg in range(2):
        for w in range(4):
            a.e("ds_read_b128 v[%d:%d], v5 offset:%d" % (RA + 16 * gg + 4 * w, RA + 16 * gg + 4 * w + 3, 8192 * w + 1024 * gg))
    a.e("v_lshrrev_b32 v6, 5, v0")
    a.e("v_lshlrev_b32 v6, 8, v6")
    a.e("v_and_b32 v7, 15, v0")
    a.e("v_lshl_add_u32 v6, v7, 4, v6")
    a.e("v_bfe_u32 v7, v0, 4, 1")
    a.e("v_lshl_add_u32 v6, v7, 3, v6")
    a.e("s_lshl_b32 s6, s4, 12")
    a.e("s_lshl_b32 s7, s3, 10")
    a.e("s_add_u32 s6, s6, s7")
    a.e("s_add_u32 s6, s6, %d" % YT)
    a.e("s_waitcnt lgkmcnt(0)")
    for gg in range(2):
        b = RA + 16 * gg
        for r in range(4):
            a.e("v_add_f32 v%d, v%d, v%d" % (b + r, b + r, b + 4 + r))
            a.e("v_add_f32 v%d, v%d, v%d" % (b + 8 + r, b + 8 + r, b + 12 + r))
        for r in range(4):
            a.e("v_add_f32 v%d, v%d, v%d" % (b + r, b + r, b + 8 + r))
        a.e("v_cvt_pk_bf16_f32 v%d, v%d, v%d" % (b + 4, b, b + 1))
        a.e("v_cvt_pk_bf16_f32 v%d, v%d, v%d" % (b + 5, b + 2, b + 3))
        a.e("buffer_store_dwordx2 v[%d:%d], v6, s[%d:%d], s6 offen offset:%d" % (b + 4, b + 5, SRD_WS, SRD_WS + 3, 512 * gg))
    a.stamp_out()
    a.e("s_branch L_end_%s" % a.kname)


def gen_phase2(a):
    a.kname = "p2"
    a.label("mid_kernel")
    prologue(a, P2_WGS)
    a.e("s_cmp_lt_u32 s2, %d" % N_G1)
    a.e("s_cbranch_scc1 L_p2_g1")
    gen_conv(a)
    a.label("L_p2_g1")
    gen_gemm1(a)
    a.label("L_end_p2")
    a.e("s_endpgm")


P3_WGS = 256
G2_NSLOT = int(os.environ.get("G2_NSLOT", "5"))
G2_NB = int(os.environ.get("G2_NB", "5"))
P3_LDS = 10240 * G2_NSLOT


def gen_phase3(a):
    a.kname = "p3"
    a.label("fin_kernel")
    prologue(a, P3_WGS)
    vm = VM(a)
    G2MAP = os.environ.get("G2MAP", "0")
    if G2MAP == "0":
        a.e("s_lshr_b32 s4, s2, 5")
        a.e("s_and_b32 s5, s2, 7")
        a.e("s_lshl_b32 s5, s5, 2")
        a.e("s_bfe_u32 s6, s2, 0x20003")
        a.e("s_add_u32 s5, s5, s6")
    elif G2MAP == "2":
        a.e("s_and_b32 s4, s2, 3")
        a.e("s_lshl_b32 s4, s4, 1")
        a.e("s_bfe_u32 s6, s2, 0x10003")
        a.e("s_add_u32 s4, s4, s6")
        a.e("s_bfe_u32 s5, s2, 0x10002")
        a.e("s_lshl_b32 s5, s5, 4")
        a.e("s_lshr_b32 s6, s2, 4")
        a.e("s_add_u32 s5, s5, s6")
    else:
        a.e("s_and_b32 s4, s2, 1")
        a.e("s_lshl_b32 s4, s4, 2")
        a.e("s_bfe_u32 s6, s2, 0x20003")
        a.e("s_add_u32 s4, s4, s6")
        a.e("s_bfe_u32 s5, s2, 0x20001")
        a.e("s_lshl_b32 s5, s5, 3")
        a.e("s_lshr_b32 s6, s2, 5")
        a.e("s_add_u32 s5, s5, s6")
    if os.environ.get("FAKE"):
        a.e("s_mov_b32 s4, 0")
        a.e("s_mov_b32 s5, 0")
    SB, SL, SBB, SKH, SWP = 48, 56, 54, 46, 47
    a.e("s_lshr_b32 s%d, s3, 1" % SKH)
    a.e("s_and_b32 s40, s3, 1")
    a.e("s_lshl_b32 s%d, s40, 1" % SWP)
    a.e("s_add_u32 s%d, s%d, s%d" % (SWP, SWP, SKH))
    a.e("s_lshl_b32 s41, s5, 2")
    a.e("s_lshl_b32 s40, s40, 1")
    a.e("s_add_u32 s41, s41, s40")
    a.e("s_mul_i32 s41, s41, 54")
    a.e("s_add_u32 s41, s41, s%d" % SKH)
    a.e("s_lshl_b32 s41, s41, 10")
    a.e("s_add_u32 s%d, s41, %d" % (SBB, ACTF))

    def gaddr(a, sc, sdst):
        a.e("s_cmp_ge_u32 s%d, 5" % sc)
        a.e("s_cselect_b32 s40, 1, 0")
        a.e("s_mul_i32 s41, s40, 5")
        a.e("s_sub_u32 s41, s%d, s41" % sc)
        a.e("s_mul_i32 s42, s4, 5")
        a.e("s_add_u32 s42, s42, s41")
        a.e("s_mul_i32 s42, s42, 54")
        a.e("s_add_u32 s42, s42, s40")
        a.e("s_lshl_b32 s42, s42, 10")
        a.e("s_add_u32 s%d, s42, %d" % (sdst, W2F))
    dma_setup(a, 10, SB, SL, gaddr)
    a.e("v_lshlrev_b32 v1, 4, v0")
    a.e("s_mul_i32 s6, s%d, 5120" % SKH)
    a.e("v_add_u32 v2, s6, v1")
    ACC = 12
    AREG = 52
    BREG = 92
    EX, EXN, EDS, EY = 132, 142, 152, 164
    assert BREG + 8 * G2_NB <= EX
    def epi_loads():
        a.e("s_lshl_b32 s6, s5, 6")
        a.e("s_lshl_b32 s7, s%d, 4" % SWP)
        a.e("s_add_u32 s6, s6, s7")
        a.e("v_and_b32 v6, 15, v0")
        a.e("v_add_u32 v6, s6, v6")
        a.e("v_lshrrev_b32 v7, 4, v0")
        a.e("s_mul_i32 s7, s4, 160")
        a.e("v_mul_u32_u24 v8, 1280, v6")
        a.e("v_lshl_add_u32 v8, v7, 3, v8")
        a.e("v_add_u32 v8, s7, v8")
        a.e("v_lshlrev_b32 v9, 3, v7")
        a.e("v_add_u32 v9, s7, v9")
        a.e("v_lshrrev_b32 v10, 5, v0")
        a.e("v_lshlrev_b32 v10, 8, v10")
        a.e("v_and_b32 v11, 15, v0")
        a.e("v_lshl_add_u32 v10, v11, 4, v10")
        a.e("v_bfe_u32 v11, v0, 4, 1")
        a.e("v_lshl_add_u32 v10, v11, 3, v10")
        a.e("s_lshr_b32 s40, s6, 4")
        a.e("s_mul_i32 s40, s40, 20480")
        a.e("s_mul_i32 s41, s4, 2560")
        a.e("s_add_u32 s40, s40, s41")
        a.e("s_add_u32 s40, s40, %d" % XNF)
        a.e("v_lshlrev_b32 v11, 14, v7")
        a.e("v_lshl_add_u32 v11, v6, 1, v11")
        a.e("s_mul_i32 s41, s4, %d" % (80 * 4096))
        a.e("s_add_u32 s41, s41, %d" % YT)
        for i in range(40):
            a.e("v_mov_b32 v%d, 0" % (ACC + i))
        if T3[0] == 0:
            for x in touch(0):
                a.e(x)
            vm.issue("pf")
        if T3[1] == 0:
            for x in touch(1):
                a.e(x)
            vm.issue("pf")
        if T3[2] == 0:
            for x in touch(2):
                a.e(x)
            vm.issue("pf")

    T3 = [int(x) for x in os.environ.get("T3", "-1,-1,-1").split(",")]

    def touch(t):
        return ["s_add_u32 s61, s60, %d" % (128 * t),
                "s_min_u32 s61, s61, 377",
                "s_mul_i32 s62, s61, 9363",
                "s_lshr_b32 s62, s62, 16",
                "s_mul_i32 s63, s62, 7",
                "s_sub_u32 s61, s61, s63",
                "s_lshl_b32 s62, s62, 10",
                "s_cmp_lt_u32 s61, 2",
                "s_cselect_b32 s63, s59, %d" % (W2F - 884736),
                "s_mul_i32 s61, s61, 442368",
                "s_add_u32 s61, s61, s62",
                "s_add_u32 s61, s61, s63",
                "buffer_load_dword v4, v3, s[%d:%d], s61 offen" % (SRD_WS, SRD_WS + 3)]
    timed = {}
    if max(T3) >= 0:
        a.e("s_lshr_b32 s60, s2, 3")
        a.e("s_lshl_b32 s60, s60, 2")
        a.e("s_add_u32 s60, s60, s3")
        a.e("s_and_b32 s59, s2, 7")
        a.e("s_mul_i32 s59, s59, 884736")
        a.e("s_add_u32 s59, s59, %d" % ACTF)
        a.e("v_lshrrev_b32 v3, 3, v0")
        a.e("v_mul_u32_u24 v3, 55296, v3")
        a.e("v_and_b32 v4, 7, v0")
        a.e("v_lshl_add_u32 v3, v4, 7, v3")
        for t in range(3):
            if T3[t] > 0:
                timed.setdefault(T3[t], []).append(touch(t))

    extra = []
    for i in range(5):
        extra.append(["global_load_dwordx2 v[%d:%d], v8, s[%d:%d] offset:%d" % (EX + 2 * i, EX + 2 * i + 1, P_U, P_U + 1, 32 * i)])
        extra.append(["global_load_dwordx2 v[%d:%d], v9, s[%d:%d] offset:%d" % (EDS + 2 * i, EDS + 2 * i + 1, P_DSK, P_DSK + 1, 32 * i)])
        extra.append(["buffer_load_dwordx2 v[%d:%d], v10, s[%d:%d], s40 offen offset:%d" % (EXN + 2 * i, EXN + 2 * i + 1, SRD_WS, SRD_WS + 3, 512 * i)])
        for r in range(4):
            extra.append(["s_add_u32 s42, s41, %d" % ((16 * i + r) * 4096),
                          "buffer_load_ushort v%d, v11, s[%d:%d], s42 offen" % (EY + 4 * i + r, SRD_WS, SRD_WS + 3)])
    gemm_loop2(a, vm, 27, 10, 5, 2, G2_NSLOT, 2048, ACC, AREG, BREG, G2_NB, 1, 2, SB, SL, SBB, 2048, 54 * 1024, epi_loads, extra, int(os.environ.get("XPER", "2")), 1, timed)
    assert not extra
    vm.waitall()
    a.stamp()
    a.e("s_nop 7")
    a.e("s_barrier")
    a.e("s_mul_i32 s6, s3, 5120")
    a.e("v_add_u32 v3, s6, v1")
    a.e("s_xor_b32 s7, s3, 2")
    a.e("s_mul_i32 s7, s7, 5120")
    a.e("v_add_u32 v4, s7, v1")
    lab1 = a.newlabel("L_x")
    lab2 = a.newlabel("L_x")
    a.e("s_cmp_eq_u32 s%d, 0" % SKH)
    a.e("s_cbranch_scc1 %s" % lab1)
    for i in range(5):
        a.e("ds_write_b128 v3, v[%d:%d] offset:%d" % (ACC + 8 * i, ACC + 8 * i + 3, 1024 * i))
    a.e("s_nop 3")
    for i in range(5):
        for r in range(4):
            a.e("v_mov_b32 v%d, v%d" % (ACC + 8 * i + r, ACC + 8 * i + 4 + r))
    a.e("s_branch %s" % lab2)
    a.label(lab1)
    for i in range(5):
        a.e("ds_write_b128 v3, v[%d:%d] offset:%d" % (ACC + 8 * i + 4, ACC + 8 * i + 7, 1024 * i))
    a.label(lab2)
    a.e("s_waitcnt lgkmcnt(0)")
    a.e("s_barrier")
    for i in range(5):
        a.e("ds_read_b128 v[%d:%d], v4 offset:%d" % (ACC + 8 * i + 4, ACC + 8 * i + 7, 1024 * i))
    T = 52
    for i in range(5):
        acc = ACC + 8 * i
        x, xn, ds, y = T, T + 4, T + 8, EY + 4 * i
        for (dst, src) in ((x, EX + 2 * i), (xn, EXN + 2 * i), (ds, EDS + 2 * i)):
            a.e("v_lshlrev_b32 v%d, 16, v%d" % (dst, src))
            a.e("v_and_b32 v%d, 0xffff0000, v%d" % (dst + 1, src))
            a.e("v_lshlrev_b32 v%d, 16, v%d" % (dst + 2, src + 1))
            a.e("v_and_b32 v%d, 0xffff0000, v%d" % (dst + 3, src + 1))
        for r in range(4):
            a.e("v_lshlrev_b32 v%d, 16, v%d" % (y + r, y + r))
            a.e("v_mul_f32 v%d, v%d, v%d" % (xn + r, xn + r, ds + r))

        def rnd4(b):
            a.e("v_cvt_pk_bf16_f32 v%d, v%d, v%d" % (T + 12, b, b + 1))
            a.e("v_cvt_pk_bf16_f32 v%d, v%d, v%d" % (T + 13, b + 2, b + 3))
            a.e("v_lshlrev_b32 v%d, 16, v%d" % (b, T + 12))
            a.e("v_and_b32 v%d, 0xffff0000, v%d" % (b + 1, T + 12))
            a.e("v_lshlrev_b32 v%d, 16, v%d" % (b + 2, T + 13))
            a.e("v_and_b32 v%d, 0xffff0000, v%d" % (b + 3, T + 13))
        rnd4(xn)
        for r in range(4):
            a.e("v_add_f32 v%d, v%d, v%d" % (xn + r, xn + r, y + r))
        rnd4(xn)
        for r in range(4):
            a.e("v_add_f32 v%d, v%d, v%d" % (xn + r, xn + r, x + r))
        rnd4(xn)
        a.e("s_waitcnt lgkmcnt(%d)" % (4 - i))
        for r in range(4):
            a.e("v_add_f32 v%d, v%d, v%d" % (acc + r, acc + r, acc + 4 + r))
        rnd4(acc)
        for r in range(4):
            a.e("v_add_f32 v%d, v%d, v%d" % (xn + r, xn + r, acc + r))
        o = 80 + 2 * i
        a.e("v_cvt_pk_bf16_f32 v%d, v%d, v%d" % (o, xn, xn + 1))
        a.e("v_cvt_pk_bf16_f32 v%d, v%d, v%d" % (o + 1, xn + 2, xn + 3))
        a.e("global_store_dwordx2 v8, v[%d:%d], s[%d:%d] offset:%d" % (o, o + 1, P_OUT, P_OUT + 1, 32 * i))
    a.stamp_out()
    a.label("L_end_p3")
    a.e("s_endpgm")


def kd(name, vgpr):
    nv = (vgpr + 7) // 8 * 8
    return """.amdhsa_kernel %s
  .amdhsa_next_free_vgpr %d
  .amdhsa_next_free_sgpr 96
  .amdhsa_accum_offset %d
  .amdhsa_group_segment_fixed_size 0
  .amdhsa_kernarg_size 112
  .amdhsa_user_sgpr_count 2
  .amdhsa_user_sgpr_kernarg_segment_ptr 1
  .amdhsa_system_sgpr_workgroup_id_x 1
.end_amdhsa_kernel
""" % (name, nv, nv)


def main():
    hdr = open("cdna_kernels/%s.s.ref" % NAME).read().splitlines()
    hdr = [l for l in hdr if l.startswith(";") and "@launch" not in l]
    out = hdr[:]
    out.append("; @launch kernel=prep_kernel grid=(%d,1,1) block=(256,1,1) lds=%d" % (P1_WGS, KG_LDS))
    out.append("; @launch kernel=mid_kernel grid=(%d,1,1) block=(256,1,1) lds=%d" % (P2_WGS, P2_LDS))
    out.append("; @launch kernel=fin_kernel grid=(%d,1,1) block=(256,1,1) lds=%d" % (P3_WGS, P3_LDS))
    out.append('.amdgcn_target "amdgcn-amd-amdhsa--gfx950"')
    out.append(".text")
    a = Asm()
    for (g, n) in ((gen_phase1, "prep_kernel"), (gen_phase2, "mid_kernel"), (gen_phase3, "fin_kernel")):
        a.lines.append(".globl %s" % n)
        a.lines.append(".p2align 8")
        a.lines.append(".type %s,@function" % n)
        g(a)
    out += a.lines
    out.append('.section .rodata,"a"')
    out.append(".p2align 6")
    out.append(kd("prep_kernel", 128))
    out.append(".p2align 6")
    out.append(kd("mid_kernel", 168))
    out.append(".p2align 6")
    out.append(kd("fin_kernel", 184))
    dst = os.environ.get("OUT", "cdna_kernels/%s.s" % NAME)
    open(dst, "w").write("\n".join(out) + "\n")


if __name__ == "__main__":
    main()
```

```python
import sys, os
SKIP = os.environ.get("SKIP", "").split(",")

NAME = "parallel_sum__ssm_conv_s4d__dense_activation_mish__prompt"

L, D, NS, F = 2048, 640, 128, 1728

XNF = 0
XNT = XNF + 128 * 20 * 1024
XNT_STR = 4352
W1F = XNT + 640 * XNT_STR
W2F = W1F + 108 * 20 * 1024
KR0 = W2F + 40 * 54 * 1024
KR_STR = 4384
KR1 = KR0 + 640 * KR_STR
ACTF = KR1 + 640 * KR_STR
YT = ACTF + 128 * 54 * 1024
WS_END = YT + 640 * 4096

LOG2E = 0x3fb8aa3b
INV2PI = 0x3e22f983


STAMP = os.environ.get("STAMP", "")
ILV = int(os.environ.get("ILV", "1"))
STOREFLAG = os.environ.get("STOREFLAG", "sc0 sc1")
STOREK = os.environ.get("STOREK", "p1,p2,p3").split(",")
XB = os.environ.get("XB", "1") == "1"
TRACE = os.environ.get("TRACE", "")


class Asm:
    def __init__(self):
        self.lines = []
        self.lab = 0
        self.nst = 0

    def stamp(self):
        if not STAMP or STAMP.split(":")[0] != self.kname:
            return
        i = self.nst
        self.nst += 1
        assert i < 12
        self.e("s_memtime s[%d:%d]" % (64 + 2 * i, 65 + 2 * i))

    def stamp_out(self):
        if TRACE:
            lab = self.newlabel("L_tr")
            self.e("s_waitcnt vmcnt(0) lgkmcnt(0)")
            self.e("s_memrealtime s[90:91]")
            self.e("s_cmp_lg_u32 s3, 0")
            self.e("s_cbranch_scc1 %s" % lab)
            self.e("s_lshl_b32 s92, s2, 3")
            self.e("s_add_u32 s92, s92, %d" % (64 * 1024 * 1024 + 65536 * int(self.kname[1])))
            self.e("v_mov_b32 v1, s92")
            self.e("s_waitcnt lgkmcnt(0)")
            self.e("v_mov_b32 v2, s88")
            self.e("v_mov_b32 v3, s90")
            self.e("global_store_dwordx2 v1, v[2:3], s[%d:%d]" % (P_WS, P_WS + 1))
            self.e("s_cmp_lg_u32 s2, 0")
            self.e("s_cbranch_scc1 %s" % lab)
            self.e("s_getpc_b64 s[90:91]")
            self.e("v_mov_b32 v1, 0")
            self.e("v_mov_b32 v2, s90")
            self.e("v_mov_b32 v3, s91")
            self.e("global_store_dwordx2 v1, v[2:3], s[%d:%d]" % (P_DBG, P_DBG + 1))
            self.label(lab)
            return
        if not STAMP or STAMP.split(":")[0] != self.kname:
            return
        wg = int(STAMP.split(":")[1])
        self.e("s_memrealtime s[90:91]")
        self.stamp()
        self.e("s_waitcnt lgkmcnt(0)")
        lab = self.newlabel("L_st")
        self.e("s_cmp_lg_u32 s2, %d" % wg)
        self.e("s_cbranch_scc1 %s" % lab)
        self.e("s_cmp_lg_u32 s3, 0")
        self.e("s_cbranch_scc1 %s" % lab)
        self.e("v_mov_b32 v1, 0")
        for i in range(self.nst):
            self.e("s_sub_u32 s92, s%d, s64" % (64 + 2 * i))
            self.e("v_mov_b32 v2, s92")
            self.e("global_store_dword v1, v2, s[%d:%d] offset:%d" % (P_DBG, P_DBG + 1, 4 * i))
        self.e("s_sub_u32 s92, s90, s88")
        self.e("v_mov_b32 v2, s92")
        self.e("global_store_dword v1, v2, s[%d:%d] offset:%d" % (P_DBG, P_DBG + 1, 60))
        self.label(lab)
        self.nst = 1

    def e(self, s):
        if (s.startswith("buffer_store") or s.startswith("global_store")) and self.kname in STOREK:
            s = s + " " + STOREFLAG
        self.lines.append("    " + s)

    def c(self, s):
        self.lines.append("    ; " + s)

    def label(self, name):
        self.lines.append(name + ":")

    def newlabel(self, p="L"):
        self.lab += 1
        return "%s_%d" % (p, self.lab)


def vr(a, n=1):
    return "v%d" % a if n == 1 else "v[%d:%d]" % (a, a + n - 1)


def sr(a, n=1):
    return "s%d" % a if n == 1 else "s[%d:%d]" % (a, a + n - 1)


P_U, P_LOGA, P_AIM, P_CRE, P_CIM, P_LDT, P_DSK, P_BX, P_W1, P_B1, P_W2, P_OUT, P_DBG, P_WS = [8 + 2 * i for i in range(14)]
SRD_WS = 36


def prologue(a, nwg):
    if TRACE:
        a.e("s_memrealtime s[88:89]")
    if STAMP and STAMP.split(":")[0] == a.kname:
        a.e("s_memrealtime s[88:89]")
        a.e("s_memtime s[64:65]")
        a.nst = 1
    a.e("s_cmp_ge_u32 s2, %d" % nwg)
    a.e("s_cbranch_scc1 L_end_%s" % a.kname)
    a.e("s_load_dwordx16 s[8:23], s[0:1], 0")
    a.e("s_load_dwordx8 s[24:31], s[0:1], 64")
    a.e("s_load_dwordx4 s[32:35], s[0:1], 96")
    SPF = int(os.environ.get("SPF", "0"))
    if SPF and a.kname == "p1":
        lsk = a.newlabel("L_spf")
        lpc = a.newlabel("L_pc")
        a.e("s_and_b32 s4, s2, 127")
        a.e("s_cmp_ge_u32 s4, %d" % SPF)
        a.e("s_cbranch_scc1 %s" % lsk)
        a.e("s_getpc_b64 s[60:61]")
        a.label(lpc)
        a.e("v_lshlrev_b32 v126, 6, v0")
        a.e("v_min_u32 v126, L_end_p1-%s, v126" % lpc)
        a.e("global_load_dword v127, v126, s[60:61]")
        a.label(lsk)
    a.e("v_lshrrev_b32 v1, 6, v0")
    a.e("v_and_b32 v0, 63, v0")
    a.e("s_nop 0")
    a.e("v_readfirstlane_b32 s3, v1")
    a.e("s_waitcnt lgkmcnt(0)")
    a.stamp()
    a.e("s_mov_b32 s%d, s%d" % (SRD_WS, P_WS))
    a.e("s_and_b32 s%d, s%d, 0xffff" % (SRD_WS + 1, P_WS + 1))
    a.e("s_mov_b32 s%d, %d" % (SRD_WS + 2, WS_END))
    a.e("s_mov_b32 s%d, 0x00020000" % (SRD_WS + 3))


def make_srd(a, dst, ptr, nbytes):
    a.e("s_mov_b32 s%d, s%d" % (dst, ptr))
    a.e("s_and_b32 s%d, s%d, 0xffff" % (dst + 1, ptr + 1))
    a.e("s_mov_b32 s%d, %d" % (dst + 2, nbytes))
    a.e("s_mov_b32 s%d, 0x00020000" % (dst + 3))


def bf16r(a, dst, src):
    a.e("v_cvt_pk_bf16_f32 %s, %s, %s" % (vr(dst), vr(src), vr(src)))
    a.e("v_lshlrev_b32 %s, 16, %s" % (vr(dst), vr(dst)))


N_KG = 640
N_LN = 128
N_W1 = 108
N_W2 = 120
P1_WGS = N_KG + N_LN + N_W1 + N_W2
if os.environ.get("KGFIRST", "0") == "1":
    KG_BASE = 0
    LN_BASE = N_KG
    W1_BASE = N_KG + N_LN
    W2_BASE = N_KG + N_LN + N_W1
else:
    LN_BASE = 0
    W1_BASE = N_LN
    W2_BASE = N_LN + N_W1
    KG_BASE = N_LN + N_W1 + N_W2


WT2 = os.environ.get("WT2", "bal")
if WT2:
    N_WT = 135
    P1_WGS = N_KG + N_LN + N_WT
    KG_BASE = N_LN + N_WT
    if os.environ.get("CPF", "3") == "3":
        P1_WGS += 16
    if WT2 == "wl":
        WT_BASE, LN_BASE = 0, N_WT
    elif WT2 == "bal":
        LN_BASE, WT_BASE, KG_BASE = 0, 256, 0
    else:
        LN_BASE, WT_BASE = 0, N_LN

KG_BLK = 16 * 272
KG_WAVE = 2 * KG_BLK
KG_KD = 4 * KG_WAVE
KG_LDS = KG_KD + 2624


def f32bits(x):
    import struct
    return "0x%x" % struct.unpack("<I", struct.pack("<f", float(x)))[0]


def gen_kgen(a):
    a.c("---- K generation ----")
    if "kg" in SKIP:
        a.e("s_branch L_end_%s" % a.kname)
    HOIST = os.environ.get("HOIST", "1") == "1"
    KF16 = os.environ.get("KF16", "1") == "1"
    RSTR = 144 if KF16 else 272
    BLK = 16 * RSTR
    if HOIST:
        IR, IT, XA, TF, SV = 96, 60, 116, 64, 125
    else:
        IR, IT, XA, TF, SV = 48, 52, 84, 116, 5

    def index_math():
        im = []
        im.append("s_lshl_b32 s5, s3, 6")
        im.append("v_add_u32 v1, s5, v0")

        def srcaddr(dst, j, sh, segbase, t0, t1):
            im.append("v_lshrrev_b32 v%d, %d, v%d" % (t0, sh + 4, j))
            im.append("v_lshlrev_b32 v%d, %d, v%d" % (t0, sh, t0))
            if sh:
                im.append("v_and_b32 v%d, %d, v%d" % (t1, (1 << sh) - 1, j))
                im.append("v_add3_u32 v%d, v%d, v%d, %d" % (t0, t0, t1, segbase))
            else:
                im.append("v_add_u32 v%d, %d, v%d" % (t0, segbase, t0))
            im.append("v_bfe_u32 v%d, v%d, %d, 4" % (dst, j, sh))
            im.append("v_lshlrev_b32 v%d, 4, v%d" % (dst, dst))
            im.append("v_lshrrev_b32 v%d, 2, v%d" % (t1, t0))
            im.append("v_lshl_add_u32 v%d, v%d, 8, v%d" % (dst, t1, dst))
            im.append("v_and_b32 v%d, 3, v%d" % (t1, t0))
            im.append("v_lshl_add_u32 v%d, v%d, 2, v%d" % (dst, t1, dst))
        srcaddr(IR, 1, 3, 0, IT, IT + 1)
        im.append("v_and_b32 v%d, 127, v1" % (IT + 2))
        srcaddr(IR + 1, IT + 2, 2, 16, IT, IT + 1)
        srcaddr(IR + 2, IT + 2, 1, 24, IT, IT + 1)
        im.append("v_cmp_gt_u32 vcc, 128, v1")
        im.append("v_cndmask_b32 v%d, v%d, v%d, vcc" % (IR + 1, IR + 2, IR + 1))
        im.append("v_min_u32 v%d, 128, v1" % (IT + 2))
        srcaddr(IR + 2, IT + 2, 0, 32, IT, IT + 1)
        im.append("v_lshlrev_b32 v%d, 2, v1" % (IR + 3))
        im.append("v_add_u32 v%d, %d, v%d" % (IR + 3, KG_KD, IR + 3))
        im.append("v_lshlrev_b32 v%d, 3, v1" % IT)
        im.append("v_sub_u32 v%d, 2049, v%d" % (IT, IT))
        im.append("v_cvt_f32_u32 v%d, v%d" % (IT + 1, IT))
        im.append("v_lshlrev_b32 v%d, 2, v%d" % (IT, IT))
        im.append("v_add_u32 v%d, %d, v%d" % (IT, KG_KD, IT))
        im.append("s_mov_b32 s45, 0x%x" % ((KG_KD - 4 * 17024) & 0xffffffff))
        for e in range(9):
            im.append("v_subrev_f32 v%d, %s, v%d" % (TF + e, "%d.0" % e if e in (0, 1, 2, 4) else f32bits(e), IT + 1))
            im.append("v_max_f32 v%d, 0x43000000, v%d" % (TF + e, TF + e))
        for e in range(0, 9, 2):
            im.append("v_cvt_pk_bf16_f32 v%d, v%d, v%d" % (TF + e, TF + e, TF + e + 1 if e < 8 else TF + e))
        for e in range(9):
            if e & 1:
                im.append("v_lshrrev_b32 v%d, 16, v%d" % (XA + e, TF + e - 1))
            else:
                im.append("v_and_b32 v%d, 0xffff, v%d" % (XA + e, TF + e))
            im.append("v_lshl_add_u32 v%d, v%d, 2, s45" % (XA + e, XA + e))
            im.append("v_subrev_u32 v%d, %d, v%d" % (TF + 9, 4 * e, IT))
            im.append("v_min_u32 v%d, v%d, v%d" % (XA + e, XA + e, TF + 9))
        im.append("v_lshlrev_b32 v%d, 4, v1" % SV)
        return im

    if WT2 != "bal":
        a.e("s_sub_u32 s4, s2, %d" % KG_BASE)
    a.e("s_lshl_b32 s5, s4, 8")
    a.e("s_lshl_b32 s6, s3, 6")
    a.e("s_add_u32 s5, s5, s6")
    a.e("v_and_b32 v1, 31, v0")
    a.e("v_lshlrev_b32 v2, 1, v1")
    a.e("v_add_u32 v2, s5, v2")
    a.e("s_lshl_b32 s5, s4, 1")
    a.e("v_mov_b32 v3, s5")
    LA, AIM, CRE, CIM, DT = 10, 11, 12, 13, 14
    a.e("global_load_ushort v%d, v2, s[%d:%d]" % (LA, P_LOGA, P_LOGA + 1))
    a.e("global_load_ushort v%d, v2, s[%d:%d]" % (AIM, P_AIM, P_AIM + 1))
    a.e("global_load_ushort v%d, v2, s[%d:%d]" % (CRE, P_CRE, P_CRE + 1))
    a.e("global_load_ushort v%d, v2, s[%d:%d]" % (CIM, P_CIM, P_CIM + 1))
    a.e("global_load_ushort v%d, v3, s[%d:%d]" % (DT, P_LDT, P_LDT + 1))
    lab = a.newlabel("L_kgz")
    if XB:
        a.e("s_branch %s" % lab)
    a.e("s_cmp_lg_u32 s3, 0")
    a.e("s_cbranch_scc1 %s" % lab)
    a.e("s_mul_i32 s6, s4, %d" % XNT_STR)
    a.e("s_add_u32 s6, s6, %d" % XNT)
    a.e("v_mov_b32 v3, 0")
    a.e("v_lshlrev_b32 v4, 2, v0")
    a.e("v_cmp_gt_u32 vcc, 60, v0")
    a.e("s_and_saveexec_b64 s[40:41], vcc")
    a.e("buffer_store_dword v3, v4, s[%d:%d], s6 offen" % (SRD_WS, SRD_WS + 3))
    a.e("s_mov_b64 exec, s[40:41]")
    a.label(lab)
    a.e("s_mul_i32 s42, s3, %d" % KG_WAVE)
    a.e("v_lshrrev_b32 v4, 5, v0")
    a.e("v_cvt_f32_u32 v9, v4")
    a.e("v_mul_u32_u24 v4, %d, v4" % BLK)
    a.e("v_lshl_add_u32 v4, v1, %d, v4" % (2 if KF16 else 3))
    a.e("v_add_u32 v4, s42, v4")
    a.e("v_and_b32 v5, 15, v0")
    a.e("v_mul_u32_u24 v5, %d, v5" % RSTR)
    a.e("v_lshrrev_b32 v6, 4, v0")
    a.e("v_lshl_add_u32 v5, v6, %d, v5" % (4 if KF16 else 6))
    a.e("v_add_u32 v5, s42, v5")
    a.e("v_lshlrev_b32 v6, 4, v0")
    a.e("v_add_u32 v6, s42, v6")
    if HOIST:
        for x in index_math():
            a.e(x)
    a.e("s_mov_b32 s43, 0x%x" % LOG2E)
    a.e("s_mov_b32 s44, 0x%x" % INV2PI)
    a.e("s_mov_b32 vcc_lo, 0")
    a.e("s_mov_b32 vcc_hi, -1")
    ACC = 100
    for i in range(16):
        a.e("v_mov_b32 v%d, 0" % (ACC + i))
    a.e("s_waitcnt vmcnt(0)")
    a.stamp()
    a.e("v_lshlrev_b32 v%d, 16, v%d" % (DT, DT))
    a.e("v_lshlrev_b32 v%d, 16, v%d" % (LA, LA))
    a.e("v_mul_f32 v%d, s43, v%d" % (DT, DT))
    a.e("v_mul_f32 v%d, s43, v%d" % (LA, LA))
    a.e("v_exp_f32 v%d, v%d" % (DT, DT))
    a.e("v_exp_f32 v%d, v%d" % (LA, LA))
    a.e("v_lshlrev_b32 v%d, 16, v%d" % (AIM, AIM))
    a.e("v_lshlrev_b32 v%d, 16, v%d" % (CRE, CRE))
    a.e("v_lshlrev_b32 v%d, 16, v%d" % (CIM, CIM))
    bf16r(a, DT, DT)
    bf16r(a, LA, LA)
    a.e("v_mul_f32 v%d, v%d, v%d" % (LA, LA, DT))
    a.e("v_mul_f32 v%d, v%d, v%d" % (AIM, AIM, DT))
    a.e("v_mul_f32 v%d, v%d, v%d" % (CRE, CRE, DT))
    a.e("v_mul_f32 v%d, v%d, v%d" % (CIM, CIM, DT))
    a.e("v_mul_f32 v%d, s43, v%d" % (LA, LA))
    a.e("v_mul_f32 v%d, s44, v%d" % (AIM, AIM))
    if KF16:
        a.e("v_mul_f32 v%d, 0x45000000, v%d" % (CRE, CRE))
        a.e("v_mul_f32 v%d, 0x45000000, v%d" % (CIM, CIM))
    else:
        a.e("v_add_f32 v%d, v%d, v%d" % (CRE, CRE, CRE))
        a.e("v_add_f32 v%d, v%d, v%d" % (CIM, CIM, CIM))
    NAIM = 15
    a.e("v_sub_f32 v%d, 0, v%d" % (NAIM, AIM))
    a.e("v_cndmask_b32 v%d, v%d, v%d, vcc" % (NAIM, NAIM, AIM))
    CM = 16
    a.e("v_cndmask_b32 v%d, 1.0, v%d, vcc" % (CM, CRE))
    a.e("v_cndmask_b32 v%d, 0, v%d, vcc" % (CM + 1, CIM))

    def cexps(lst, tbase):
        for i, (dst, p0, p1, ar) in enumerate(lst):
            t = tbase + 3 * i
            if p0 == p1:
                a.e("v_mov_b32 v%d, %s" % (t, f32bits(p0)))
            else:
                a.e("v_mul_f32 v%d, %s, v9" % (t, f32bits(p1 - p0)))
                a.e("v_add_f32 v%d, %s, v%d" % (t, f32bits(p0), t))
        for i, (dst, p0, p1, ar) in enumerate(lst):
            t = tbase + 3 * i
            a.e("v_mul_f32 v%d, -v%d, v%d" % (t + 1, LA, t))
            a.e("v_mul_f32 v%d, v%d, v%d" % (t + 2, ar, t))
        for i, (dst, p0, p1, ar) in enumerate(lst):
            t = tbase + 3 * i
            a.e("v_exp_f32 v%d, v%d" % (t + 1, t + 1))
            a.e("v_fract_f32 v%d, v%d" % (t + 2, t + 2))
        for i, (dst, p0, p1, ar) in enumerate(lst):
            t = tbase + 3 * i
            a.e("v_cos_f32 v%d, v%d" % (dst, t + 2))
            a.e("v_sin_f32 v%d, v%d" % (dst + 1, t + 2))
        a.e("s_nop 0")
        for i, (dst, p0, p1, ar) in enumerate(lst):
            t = tbase + 3 * i
            a.e("v_mul_f32 v%d, v%d, v%d" % (dst, dst, t + 1))
            a.e("v_mul_f32 v%d, v%d, v%d" % (dst + 1, dst + 1, t + 1))

    def cmul(d, x, y):
        return ["v_pk_mul_f32 v[%d:%d], v[%d:%d], v[%d:%d] op_sel:[0,0] op_sel_hi:[0,1]" % (d, d + 1, x, x + 1, y, y + 1),
                "v_pk_fma_f32 v[%d:%d], v[%d:%d], v[%d:%d], v[%d:%d] op_sel:[1,1,0] op_sel_hi:[1,0,1] neg_lo:[1,0,0]" % (
                    d, d + 1, x, x + 1, y, y + 1, d, d + 1)]

    def emit(lst):
        for s in lst:
            a.e(s)

    F1, S2, FA, FB, T0, T1, T2 = 18, 20, 22, 24, 26, 28, 30
    cexps([(F1, 8, 1, NAIM), (S2, 64, 128, NAIM), (FA, 2, 128, AIM), (FB, 128, 128, AIM),
           (T0, 256, 1024, AIM), (T1, 384, 1536, AIM), (T2, 512, 2048, AIM)], 60)
    a.stamp()
    Q, S1, S3 = 32, 34, 36
    CH = [40, 44, 48, 52]
    emit(cmul(Q, F1, F1))
    emit(cmul(CH[2], S2, CM))
    emit(cmul(S1, Q, Q))
    a.e("v_mov_b32 v%d, v%d" % (CH[0], CM))
    a.e("v_mov_b32 v%d, v%d" % (CH[0] + 1, CM + 1))
    emit(cmul(CH[1], S1, CM))
    emit(cmul(CH[3], S1, CH[2]))
    rows1 = [[0, 1, 2, 3], [4, 5, 6, 7], [8, 9, 10, 11], [12, 13, 14, 15]]
    rows2 = [[0, 1, 2, 3], [4, 5, 6, 7], [8, 10, 12, 14], [9, 11, 13, 15]]

    def chains(rows, facs):
        out = []
        for i in range(4):
            for q in range(4):
                cur = CH[q] + 2 * (i & 1)
                if KF16:
                    out.append("v_cvt_pk_f16_f32 v%d, v%d, v%d" % (84 + q, cur, cur + 1))
                else:
                    out.append("ds_write_b64 v4, v[%d:%d] offset:%d" % (cur, cur + 1, 272 * rows[q][i]))
            if KF16:
                for q in range(4):
                    out.append("ds_write_b32 v4, v%d offset:%d" % (84 + q, RSTR * rows[q][i]))
            if i < 3:
                m = [cmul(CH[q] + 2 * ((i + 1) & 1), CH[q] + 2 * (i & 1), facs[q]) for q in range(4)]
                for s in range(2):
                    for q in range(4):
                        out.append(m[q][s])
        return out
    emit(chains(rows1, [F1] * 4))
    RY, RX = (64, 72) if KF16 else (64, 80)
    for j in range(2 if KF16 else 4):
        js = 64 if KF16 else 16
        a.e("ds_read_b128 v[%d:%d], v5 offset:%d" % (RY + 4 * j, RY + 4 * j + 3, js * j))
        a.e("ds_read_b128 v[%d:%d], v5 offset:%d" % (RX + 4 * j, RX + 4 * j + 3, BLK + js * j))
    a.stamp()
    pre = []
    pre += cmul(Q, FA, FA)
    pre += cmul(CH[0], T0, CRE)
    pre += cmul(CH[1], T1, CRE)
    pre += cmul(CH[2], T2, CRE)
    pre += cmul(CH[3], Q, CH[2])
    emit(pre)
    a.e("s_waitcnt lgkmcnt(0)")
    ch2 = chains(rows2, [FA, FA, FB, FB])
    mf = ["v_mfma_f32_16x16x4_f32 v[%d:%d], v%d, v%d, v[%d:%d]" % (
        ACC + 4 * (k & 1), ACC + 4 * (k & 1) + 3, RX + k, RY + k, ACC + 4 * (k & 1), ACC + 4 * (k & 1) + 3) for k in range(16)]
    def mf16(acc, x, j):
        return "v_mfma_f32_16x16x32_f16 v[%d:%d], v[%d:%d], v[%d:%d], v[%d:%d]" % (
            acc, acc + 3, x + 4 * j, x + 4 * j + 3, RY + 4 * j, RY + 4 * j + 3, acc, acc + 3)
    if KF16:
        mf = [mf16(ACC + 4, RX, 0), mf16(ACC + 4, RX, 1)]
    per = (len(ch2) + len(mf) - 1) // len(mf)
    idx = 0
    for k in range(len(mf)):
        a.e(mf[k])
        for s in ch2[idx:idx + per]:
            a.e(s)
        idx += per
    assert idx >= len(ch2)
    RX1, RX2 = 16, 32
    for j in range(2 if KF16 else 4):
        js = 64 if KF16 else 16
        a.e("ds_read_b128 v[%d:%d], v5 offset:%d" % (RX1 + 4 * j, RX1 + 4 * j + 3, js * j))
        a.e("ds_read_b128 v[%d:%d], v5 offset:%d" % (RX2 + 4 * j, RX2 + 4 * j + 3, BLK + js * j))
    a.e("s_waitcnt lgkmcnt(0)")
    a.stamp()
    mf2 = []
    for k in range(16):
        mf2.append("v_mfma_f32_16x16x4_f32 v[%d:%d], v%d, v%d, v[%d:%d]" % (ACC + 8, ACC + 11, RX1 + k, RY + k, ACC + 8, ACC + 11))
        mf2.append("v_mfma_f32_16x16x4_f32 v[%d:%d], v%d, v%d, v[%d:%d]" % (ACC + 12, ACC + 15, RX2 + k, RY + k, ACC + 12, ACC + 15))
    im = [] if HOIST else index_math()
    if KF16:
        assert HOIST
        mf2 = [mf16(ACC + 8, RX1, 0), mf16(ACC + 12, RX2, 0), mf16(ACC + 8, RX1, 1), mf16(ACC + 12, RX2, 1)]
    per = max(1, (len(im) + 31) // 32)
    idx = 0
    for k in range(len(mf2)):
        a.e(mf2[k])
        for s in im[idx:idx + per]:
            a.e(s)
        idx += per
    assert idx >= len(im)
    a.e("s_nop 7")
    a.e("s_nop 7")
    for i in range(0 if KF16 else 4):
        a.e("v_add_f32 v%d, v%d, v%d" % (ACC + 4 + i, ACC + 4 + i, ACC + i))
    for b in range(3):
        a.e("ds_write_b128 v6, v[%d:%d] offset:%d" % (ACC + 4 + 4 * b, ACC + 7 + 4 * b, 1024 * b))
    a.e("s_waitcnt lgkmcnt(0)")
    a.e("s_barrier")
    a.stamp()
    RR = 16
    for r in range(3):
        for w in range(4):
            a.e("ds_read_b32 v%d, v%d offset:%d" % (RR + 4 * r + w, IR + r, KG_WAVE * w))
    for r in range(3):
        a.e("s_waitcnt lgkmcnt(%d)" % (8 - 4 * r))
        a.e("v_add_f32 v%d, v%d, v%d" % (RR + 4 * r, RR + 4 * r, RR + 1 + 4 * r))
        a.e("v_add_f32 v%d, v%d, v%d" % (RR + 2 + 4 * r, RR + 2 + 4 * r, RR + 3 + 4 * r))
        a.e("v_add_f32 v%d, v%d, v%d" % (RR + 4 * r, RR + 4 * r, RR + 2 + 4 * r))
        if KF16:
            a.e("v_mul_f32 v%d, 0x3a800000, v%d" % (RR + 4 * r, RR + 4 * r))
    a.e("ds_write_b32 v%d, v%d" % (IR + 3, RR))
    a.e("ds_write_b32 v%d, v%d offset:1024" % (IR + 3, RR + 4))
    a.e("v_cmp_gt_u32 vcc, 129, v1")
    a.e("s_and_saveexec_b64 s[40:41], vcc")
    a.e("ds_write_b32 v%d, v%d offset:2048" % (IR + 3, RR + 8))
    a.e("s_mov_b64 exec, s[40:41]")
    a.e("s_mul_i32 s6, s4, %d" % KR_STR)
    a.e("s_add_u32 s6, s6, %d" % KR0)
    a.e("s_add_u32 s7, s6, %d" % (KR1 - KR0))
    a.e("s_waitcnt lgkmcnt(0)")
    a.e("s_barrier")
    a.stamp()
    for e in range(9):
        a.e("ds_read_b32 v%d, v%d" % (50 + e, XA + e))
    lab = a.newlabel("L_kgx")
    a.e("s_cmp_lg_u32 s3, 3")
    a.e("s_cbranch_scc1 %s" % lab)
    a.e("v_mov_b32 v30, %d" % KG_KD)
    a.e("ds_read_b64 v[32:33], v30")
    for i in range(8):
        a.e("v_mov_b32 v%d, 0" % (36 + i))
    a.e("v_lshlrev_b32 v31, 4, v0")
    a.e("v_add_u32 v31, 4096, v31")
    a.e("v_cmp_eq_u32 vcc, 0, v0")
    a.e("s_waitcnt lgkmcnt(0)")
    a.e("v_cvt_pk_bf16_f32 v34, v32, v36")
    a.e("v_cvt_pk_bf16_f32 v35, v33, v32")
    a.e("v_cndmask_b32 v36, v36, v34, vcc")
    a.e("v_cndmask_b32 v40, v40, v35, vcc")
    a.e("v_cmp_gt_u32 vcc, 18, v0")
    a.e("s_and_saveexec_b64 s[40:41], vcc")
    a.e("buffer_store_dwordx4 v[36:39], v31, s[%d:%d], s6 offen" % (SRD_WS, SRD_WS + 3))
    a.e("buffer_store_dwordx4 v[40:43], v31, s[%d:%d], s7 offen" % (SRD_WS, SRD_WS + 3))
    a.e("s_mov_b64 exec, s[40:41]")
    a.label(lab)
    a.e("v_cmp_ne_u32 vcc, 0, v1")
    a.e("s_waitcnt lgkmcnt(0)")
    a.e("v_cndmask_b32 v50, 0, v50, vcc")
    a.e("v_cndmask_b32 v51, 0, v51, vcc")
    for e in range(4):
        a.e("v_cvt_pk_bf16_f32 v%d, v%d, v%d" % (60 + e, 51 + 2 * e, 52 + 2 * e))
        a.e("v_cvt_pk_bf16_f32 v%d, v%d, v%d" % (64 + e, 50 + 2 * e, 51 + 2 * e))
    a.e("buffer_store_dwordx4 v[60:63], v%d, s[%d:%d], s6 offen" % (SV, SRD_WS, SRD_WS + 3))
    a.e("buffer_store_dwordx4 v[64:67], v%d, s[%d:%d], s7 offen" % (SV, SRD_WS, SRD_WS + 3))
    a.stamp_out()
    a.e("s_branch L_end_%s" % a.kname)


def gen_ln(a):
    a.c("---- LayerNorm: row block s2-640 ----")
    if "ln" in SKIP:
        a.e("s_branch L_end_%s" % a.kname)
    a.e("s_sub_u32 s4, s2, %d" % LN_BASE)
    a.e("s_lshl_b32 s5, s4, 4")
    a.e("s_lshl_b32 s6, s3, 2")
    a.e("s_add_u32 s5, s5, s6")
    a.e("v_lshrrev_b32 v1, 4, v0")
    a.e("v_and_b32 v2, 15, v0")
    a.e("v_add_u32 v3, s5, v1")
    a.e("v_mul_u32_u24 v3, 1280, v3")
    a.e("v_lshl_add_u32 v3, v2, 4, v3")
    for i in range(5):
        a.e("global_load_dwordx4 v[%d:%d], v3, s[%d:%d] offset:%d" % (10 + 4 * i, 13 + 4 * i, P_U, P_U + 1, 256 * i))
    if XB:
        a.e("v_add_u32 v116, s6, v1")
        a.e("v_mul_u32_u24 v116, 1296, v116")
        a.e("v_lshl_add_u32 v116, v2, 4, v116")
        a.e("s_mul_i32 s5, s3, 320")
        a.e("v_mul_u32_u24 v117, 1296, v2")
        a.e("v_lshl_add_u32 v117, v1, 4, v117")
        a.e("v_add_u32 v117, s5, v117")
        a.e("v_lshlrev_b32 v118, 4, v0")
        a.e("s_lshl_b32 s5, s3, 8")
        a.e("v_lshl_add_u32 v119, v0, 2, s5")
        a.e("s_lshl_b32 s5, s3, 12")
        a.e("s_add_u32 s7, s5, 20736")
        a.e("v_lshl_add_u32 v120, v0, 6, s7")
        a.e("v_add_u32 v121, s7, v118")
        a.e("s_mul_i32 s44, s4, 20480")
        a.e("s_mul_i32 s40, s3, 5120")
        a.e("s_add_u32 s40, s40, s44")
        a.e("s_add_u32 s40, s40, %d" % XNF)
        a.e("s_add_u32 s41, s40, 4096")
        a.e("s_add_u32 s45, s44, %d" % (XNT + 16384))
        a.e("s_add_u32 s44, s44, s5")
        a.e("s_add_u32 s44, s44, %d" % XNT)
        a.e("s_mov_b32 s46, 0x05040100")
        a.e("s_mov_b32 s47, 0x07060302")
    elif os.environ.get("LN2", "1") == "1":
        a.e("s_mul_i32 s40, s4, 20480")
        a.e("s_add_u32 s40, s40, %d" % XNF)
        a.e("v_lshrrev_b32 v90, 2, v2")
        a.e("v_lshlrev_b32 v90, 10, v90")
        a.e("v_and_b32 v91, 3, v2")
        a.e("v_lshl_add_u32 v90, v91, 8, v90")
        a.e("v_add_u32 v91, s6, v1")
        a.e("v_lshl_add_u32 v90, v91, 4, v90")
        a.e("v_mul_u32_u24 v92, 1296, v91")
        a.e("v_lshl_add_u32 v92, v2, 4, v92")
        a.e("s_lshl_b32 s5, s3, 6")
        a.e("v_add_u32 v94, s5, v0")
        a.e("v_lshlrev_b32 v93, 2, v94")
        a.e("v_mul_u32_u24 v94, %d, v94" % (2 * XNT_STR))
        a.e("s_lshl_b32 s44, s4, 5")
        a.e("s_add_u32 s44, s44, %d" % (XNT + 240))
        a.e("s_add_u32 s45, s44, %d" % XNT_STR)
        a.e("s_mov_b32 s46, 0x05040100")
        a.e("s_mov_b32 s47, 0x07060302")
    a.stamp()
    a.e("s_waitcnt vmcnt(0)")
    a.stamp()
    for j in range(20):
        a.e("v_lshlrev_b32 v%d, 16, v%d" % (40 + 2 * j, 10 + j))
        a.e("v_and_b32 v%d, 0xffff0000, v%d" % (41 + 2 * j, 10 + j))
    LN2 = os.environ.get("LN2", "1") == "1"
    if LN2:
        def V(r):
            return "v[%d:%d]" % (r, r + 1)

        def dred(reg):
            for sh in (8, 4, 2, 1):
                a.e("s_nop 1")
                a.e("v_add_f32_dpp v%d, v%d, v%d row_ror:%d row_mask:0xf bank_mask:0xf" % (reg, reg, reg, sh))
        a.e("v_pk_add_f32 v[80:81], %s, %s" % (V(40), V(44)))
        a.e("v_pk_add_f32 v[82:83], %s, %s" % (V(42), V(46)))
        for j in range(8, 40, 4):
            a.e("v_pk_add_f32 v[80:81], v[80:81], %s" % V(40 + j))
            a.e("v_pk_add_f32 v[82:83], v[82:83], %s" % V(42 + j))
        a.e("v_pk_add_f32 v[80:81], v[80:81], v[82:83]")
        a.e("v_add_f32 v4, v80, v81")
        dred(4)
        a.e("s_mov_b32 s7, 0x3acccccd")
        a.e("v_mul_f32 v4, s7, v4")
        for j in range(0, 40, 4):
            a.e("v_pk_add_f32 v[84:85], %s, v[4:5] op_sel_hi:[1,0] neg_lo:[0,1] neg_hi:[0,1]" % V(40 + j))
            a.e("v_pk_add_f32 v[86:87], %s, v[4:5] op_sel_hi:[1,0] neg_lo:[0,1] neg_hi:[0,1]" % V(42 + j))
            if j == 0:
                a.e("v_pk_mul_f32 v[80:81], v[84:85], v[84:85]")
                a.e("v_pk_mul_f32 v[82:83], v[86:87], v[86:87]")
            else:
                a.e("v_pk_fma_f32 v[80:81], v[84:85], v[84:85], v[80:81]")
                a.e("v_pk_fma_f32 v[82:83], v[86:87], v[86:87], v[82:83]")
        a.e("v_pk_add_f32 v[80:81], v[80:81], v[82:83]")
        a.e("v_add_f32 v6, v80, v81")
        dred(6)
        a.e("v_mul_f32 v6, s7, v6")
        bf16r(a, 4, 4)
        bf16r(a, 6, 6)
        a.e("v_add_f32 v6, 0x3727c5ac, v6")
        bf16r(a, 6, 6)
        a.e("v_sqrt_f32 v6, v6")
        a.e("s_nop 0")
        bf16r(a, 6, 6)
        a.e("v_rcp_f32 v8, v6")
        a.e("s_nop 0")
        for j in range(0, 40, 4):
            xs = (40 + j, 42 + j)
            ts = (80, 84)
            for x in xs:
                a.e("v_pk_add_f32 %s, %s, v[4:5] op_sel_hi:[1,0] neg_lo:[0,1] neg_hi:[0,1]" % (V(x), V(x)))
            for x, t in zip(xs, ts):
                a.e("v_cvt_pk_bf16_f32 v%d, v%d, v%d" % (t, x, x + 1))
            for x, t in zip(xs, ts):
                a.e("v_lshlrev_b32 v%d, 16, v%d" % (x, t))
                a.e("v_and_b32 v%d, 0xffff0000, v%d" % (x + 1, t))
            for x, t in zip(xs, ts):
                a.e("v_pk_mul_f32 %s, %s, v[8:9] op_sel_hi:[1,0]" % (V(t), V(x)))
            for x, t in zip(xs, ts):
                a.e("v_pk_fma_f32 %s, %s, v[6:7], %s op_sel_hi:[1,0,1] neg_lo:[1,0,0] neg_hi:[1,0,0]" % (V(x), V(t), V(x)))
            for x, t in zip(xs, ts):
                a.e("v_pk_fma_f32 %s, %s, v[8:9], %s op_sel_hi:[1,0,1]" % (V(t), V(x), V(t)))
            for x, t in zip(xs, ts):
                a.e("v_cvt_pk_bf16_f32 v%d, v%d, v%d" % (10 + (x - 40) // 2, t, t + 1))
    else:
        a.e("v_add_f32 v4, v40, v41")
        for j in range(2, 40):
            a.e("v_add_f32 v4, v4, v%d" % (40 + j))

        def red16(reg, tmp):
            for off in (0x041F, 0x081F, 0x101F, 0x201F):
                a.e("ds_swizzle_b32 v%d, v%d offset:0x%x" % (tmp, reg, off))
                a.e("s_waitcnt lgkmcnt(0)")
                a.e("v_add_f32 v%d, v%d, v%d" % (reg, reg, tmp))
        red16(4, 5)
        a.e("s_mov_b32 s7, 0x3acccccd")
        a.e("v_mul_f32 v4, s7, v4")
        a.e("v_sub_f32 v6, v40, v4")
        a.e("v_mul_f32 v5, v6, v6")
        for j in range(1, 40):
            a.e("v_sub_f32 v6, v%d, v4" % (40 + j))
            a.e("v_fma_f32 v5, v6, v6, v5")
        red16(5, 6)
        a.e("v_mul_f32 v5, s7, v5")
        bf16r(a, 4, 4)
        bf16r(a, 5, 5)
        a.e("v_add_f32 v5, 0x3727c5ac, v5")
        bf16r(a, 5, 5)
        a.e("v_sqrt_f32 v5, v5")
        a.e("s_nop 0")
        bf16r(a, 5, 5)
        a.e("v_rcp_f32 v6, v5")
        for j in range(0, 40, 2):
            x0, x1 = 40 + j, 41 + j
            a.e("v_sub_f32 v%d, v%d, v4" % (x0, x0))
            a.e("v_sub_f32 v%d, v%d, v4" % (x1, x1))
            a.e("v_cvt_pk_bf16_f32 v7, v%d, v%d" % (x0, x1))
            a.e("v_lshlrev_b32 v%d, 16, v7" % x0)
            a.e("v_and_b32 v%d, 0xffff0000, v7" % x1)
            a.e("v_mul_f32 v7, v%d, v6" % x0)
            a.e("v_mul_f32 v8, v%d, v6" % x1)
            a.e("v_fma_f32 v%d, -v7, v5, v%d" % (x0, x0))
            a.e("v_fma_f32 v%d, -v8, v5, v%d" % (x1, x1))
            a.e("v_fma_f32 v7, v%d, v6, v7" % x0)
            a.e("v_fma_f32 v8, v%d, v6, v8" % x1)
            a.e("v_cvt_pk_bf16_f32 v%d, v7, v8" % (10 + j // 2))
    LSTR = 1296
    a.stamp()
    if XB:
        assert LN2
        for i in range(5):
            a.e("ds_write_b128 v116, v[%d:%d] offset:%d" % (10 + 4 * i, 13 + 4 * i, 256 * i))
        a.e("s_waitcnt lgkmcnt(0)")
        a.stamp()
        a.e("s_barrier")
        a.stamp()
        for i in range(5):
            a.e("ds_read_b128 v[%d:%d], v117 offset:%d" % (40 + 4 * i, 43 + 4 * i, 64 * i))
        for r in range(16):
            a.e("ds_read_b32 v%d, v119 offset:%d" % (60 + r, LSTR * r))
        for i in range(5):
            a.e("s_waitcnt lgkmcnt(%d)" % min(15, 20 - i))
            a.e("buffer_store_dwordx4 v[%d:%d], v118, s[%d:%d], s%d offen offset:%d" % (40 + 4 * i, 43 + 4 * i, SRD_WS, SRD_WS + 3, 40 if i < 4 else 41, 1024 * i if i < 4 else 0))
        lab = a.newlabel("L_lnx")
        a.e("s_cmp_lg_u32 s3, 0")
        a.e("s_cbranch_scc1 %s" % lab)
        for r in range(16):
            a.e("ds_read_b32 v%d, v119 offset:%d" % (76 + r, LSTR * r + 1024))
        a.label(lab)
        RBK = [26, 30, 34, 108]

        def xround(raw, po, rbk, so):
            for r in range(8):
                a.e("v_perm_b32 v%d, v%d, v%d, s46" % (po + r, raw + 1 + 2 * r, raw + 2 * r))
                a.e("v_perm_b32 v%d, v%d, v%d, s47" % (po + 8 + r, raw + 1 + 2 * r, raw + 2 * r))
            for j in range(4):
                a.e("ds_write_b128 v120, v[%d:%d] offset:%d" % (po + 4 * j, po + 4 * j + 3, 16 * j))
            a.e("s_waitcnt lgkmcnt(0)")
            for j in range(4):
                a.e("ds_read_b128 v[%d:%d], v121 offset:%d" % (rbk[j], rbk[j] + 3, 1024 * j))
            for j in range(4):
                a.e("s_waitcnt lgkmcnt(%d)" % (3 - j))
                a.e("buffer_store_dwordx4 v[%d:%d], v118, s[%d:%d], s%d offen offset:%d" % (rbk[j], rbk[j] + 3, SRD_WS, SRD_WS + 3, so, 1024 * j))
        a.e("s_waitcnt lgkmcnt(0)")
        xround(60, 10, RBK, 44)
        lab = a.newlabel("L_lnx")
        a.e("s_cmp_lg_u32 s3, 0")
        a.e("s_cbranch_scc1 %s" % lab)
        xround(76, 92, [10, 14, 18, 22], 45)
        a.label(lab)
        a.stamp()
        if STAMP:
            a.e("s_waitcnt vmcnt(0)")
    elif LN2:
        for i in range(5):
            a.e("s_add_u32 s41, s40, %d" % (4096 * i))
            a.e("buffer_store_dwordx4 v[%d:%d], v90, s[%d:%d], s41 offen" % (10 + 4 * i, 13 + 4 * i, SRD_WS, SRD_WS + 3))
            a.e("ds_write_b128 v92, v[%d:%d] offset:%d" % (10 + 4 * i, 13 + 4 * i, 256 * i))
        a.e("s_waitcnt lgkmcnt(0)")
        a.stamp()
        a.e("s_barrier")
        a.stamp()
        for r in range(16):
            a.e("ds_read_b32 v%d, v93 offset:%d" % (40 + r, LSTR * r))
        lab = a.newlabel("L_lnx")
        lab2 = a.newlabel("L_lnx")
        a.e("s_cmp_lg_u32 s3, 0")
        a.e("s_cbranch_scc1 %s" % lab)
        for r in range(16):
            a.e("ds_read_b32 v%d, v93 offset:%d" % (56 + r, LSTR * r + 1024))
        a.e("s_waitcnt lgkmcnt(0)")
        for r in range(8):
            a.e("v_perm_b32 v%d, v%d, v%d, s46" % (10 + r, 57 + 2 * r, 56 + 2 * r))
            a.e("v_perm_b32 v%d, v%d, v%d, s47" % (18 + r, 57 + 2 * r, 56 + 2 * r))
        a.e("v_add_u32 v95, %d, v94" % (512 * XNT_STR))
        a.e("buffer_store_dwordx4 v[10:13], v95, s[%d:%d], s44 offen" % (SRD_WS, SRD_WS + 3))
        a.e("buffer_store_dwordx4 v[14:17], v95, s[%d:%d], s44 offen offset:16" % (SRD_WS, SRD_WS + 3))
        a.e("buffer_store_dwordx4 v[18:21], v95, s[%d:%d], s45 offen" % (SRD_WS, SRD_WS + 3))
        a.e("buffer_store_dwordx4 v[22:25], v95, s[%d:%d], s45 offen offset:16" % (SRD_WS, SRD_WS + 3))
        a.label(lab)
        a.e("s_waitcnt lgkmcnt(0)")
        for r in range(8):
            a.e("v_perm_b32 v%d, v%d, v%d, s46" % (72 + r, 41 + 2 * r, 40 + 2 * r))
            a.e("v_perm_b32 v%d, v%d, v%d, s47" % (80 + r, 41 + 2 * r, 40 + 2 * r))
        a.e("buffer_store_dwordx4 v[72:75], v94, s[%d:%d], s44 offen" % (SRD_WS, SRD_WS + 3))
        a.e("buffer_store_dwordx4 v[76:79], v94, s[%d:%d], s44 offen offset:16" % (SRD_WS, SRD_WS + 3))
        a.e("buffer_store_dwordx4 v[80:83], v94, s[%d:%d], s45 offen" % (SRD_WS, SRD_WS + 3))
        a.e("buffer_store_dwordx4 v[84:87], v94, s[%d:%d], s45 offen offset:16" % (SRD_WS, SRD_WS + 3))
        a.stamp()
        if STAMP:
            a.e("s_waitcnt vmcnt(0)")
    else:
        a.e("s_mul_i32 s40, s4, 20480")
        a.e("s_add_u32 s40, s40, %d" % XNF)
        a.e("v_lshrrev_b32 v7, 2, v2")
        a.e("v_lshlrev_b32 v7, 10, v7")
        a.e("v_and_b32 v8, 3, v2")
        a.e("v_lshl_add_u32 v7, v8, 8, v7")
        a.e("v_add_u32 v8, s6, v1")
        a.e("v_lshl_add_u32 v7, v8, 4, v7")
        for i in range(5):
            a.e("s_add_u32 s41, s40, %d" % (4096 * i))
            a.e("buffer_store_dwordx4 v[%d:%d], v7, s[%d:%d], s41 offen" % (10 + 4 * i, 13 + 4 * i, SRD_WS, SRD_WS + 3))
        LSTR = 1296
        a.e("v_mul_u32_u24 v9, %d, v8" % LSTR)
        a.e("v_lshl_add_u32 v9, v2, 4, v9")
        for i in range(5):
            a.e("ds_write_b128 v9, v[%d:%d] offset:%d" % (10 + 4 * i, 13 + 4 * i, 256 * i))
        a.e("s_waitcnt lgkmcnt(0)")
        a.e("s_barrier")
        a.e("s_lshl_b32 s5, s3, 6")
        a.e("v_add_u32 v1, s5, v0")
        a.e("s_lshl_b32 s40, s4, 5")
        a.e("s_add_u32 s40, s40, %d" % (XNT + 240))
        for j in range(3):
            a.e("v_add_u32 v2, %d, v1" % (256 * j))
            if j == 2:
                a.e("v_cmp_gt_u32 vcc, 640, v2")
                a.e("s_and_saveexec_b64 s[42:43], vcc")
            a.e("v_lshlrev_b32 v3, 1, v2")
            if False:
                for r in range(8):
                    a.e("ds_read_u16_d16 v%d, v3 offset:%d" % (40 + 8 * j + r, LSTR * 2 * r))
                    a.e("ds_read_u16_d16_hi v%d, v3 offset:%d" % (40 + 8 * j + r, LSTR * (2 * r + 1)))
                a.e("v_mul_u32_u24 v4, %d, v2" % XNT_STR)
                a.e("s_waitcnt lgkmcnt(0)")
            else:
                for r in range(16):
                    a.e("ds_read_u16 v%d, v3 offset:%d" % (64 + r, LSTR * r))
                a.e("v_mul_u32_u24 v4, %d, v2" % XNT_STR)
                a.e("s_waitcnt lgkmcnt(0)")
                for r in range(8):
                    a.e("v_lshl_or_b32 v%d, v%d, 16, v%d" % (40 + 8 * j + r, 65 + 2 * r, 64 + 2 * r))
            a.e("buffer_store_dwordx4 v[%d:%d], v4, s[%d:%d], s40 offen" % (40 + 8 * j, 43 + 8 * j, SRD_WS, SRD_WS + 3))
            a.e("buffer_store_dwordx4 v[%d:%d], v4, s[%d:%d], s40 offen offset:16" % (44 + 8 * j, 47 + 8 * j, SRD_WS, SRD_WS + 3))
            if j == 2:
                a.e("s_mov_b64 exec, s[42:43]")
    a.stamp_out()
    a.e("s_branch L_end_%s" % a.kname)


def gen_wt(a, which):
    if which == 1:
        base_id = W1_BASE
        ncols = F
        ptr = P_W1
        dst = W1F
        nkb = 20
        nj = 5
    else:
        base_id = W2_BASE
        ncols = D
        ptr = P_W2
        dst = W2F
        nkb = 54
        nj = 5
    a.c("---- W%d transposition ----" % which)
    if "wt" in SKIP:
        a.e("s_branch L_end_%s" % a.kname)
    a.e("s_sub_u32 s4, s2, %d" % base_id)
    if os.environ.get("CPF", "3") == "1":
        lpc = a.newlabel("L_pc")
        a.e("s_getpc_b64 s[50:51]")
        a.label(lpc)
        a.e("s_add_u32 s50, s50, mid_kernel-%s" % lpc)
        a.e("s_addc_u32 s51, s51, 0")
        a.e("s_lshl_b32 s52, s3, 13")
        a.e("v_lshl_add_u32 v100, v0, 7, s52")
        a.e("v_min_u32 v100, L_end_p3-mid_kernel-64, v100")
        a.e("global_load_dword v101, v100, s[50:51]")
        a.e("global_load_dword v102, v100, s[50:51] offset:64")
    if which == 1:
        a.e("s_mov_b32 s5, s4")
        a.e("s_mov_b32 s6, s3")
        a.e("s_mov_b32 s7, 20")
    else:
        a.e("s_cmp_ge_u32 s4, 40")
        a.e("s_cselect_b32 s40, 1, 0")
        a.e("s_cmp_ge_u32 s4, 80")
        a.e("s_cselect_b32 s41, 1, 0")
        a.e("s_add_u32 s40, s40, s41")
        a.e("s_mul_i32 s41, s40, 40")
        a.e("s_sub_u32 s5, s4, s41")
        a.e("s_mul_i32 s6, s40, 18")
        a.e("s_add_u32 s7, s6, 18")
        a.e("s_add_u32 s6, s6, s3")
    make_srd(a, 44, ptr, D * F * 2)
    a.e("v_lshrrev_b32 v1, 4, v0")
    a.e("v_mul_u32_u24 v1, %d, v1" % (8 * ncols * 2))
    a.e("v_and_b32 v2, 15, v0")
    a.e("v_lshl_add_u32 v1, v2, 1, v1")
    a.e("s_lshl_b32 s40, s5, 5")
    a.e("v_add_u32 v1, s40, v1")
    a.e("v_lshlrev_b32 v2, 4, v0")
    a.e("s_mul_i32 s41, s5, %d" % (nkb * 1024))
    a.e("s_add_u32 s41, s41, %d" % dst)
    for j in range(nj):
        lab = a.newlabel("L_wt")
        a.e("s_add_u32 s42, s6, %d" % (4 * j))
        a.e("s_cmp_ge_u32 s42, s7")
        a.e("s_cbranch_scc1 %s" % lab)
        a.e("s_mul_i32 s43, s42, %d" % (32 * ncols * 2))
        for e in range(8):
            a.e("s_add_u32 s48, s43, %d" % (e * ncols * 2))
            a.e("buffer_load_ushort v%d, v1, s[44:47], s48 offen" % (40 + 8 * j + e))
        a.label(lab)
    for j in range(nj):
        lab = a.newlabel("L_wt")
        a.e("s_add_u32 s42, s6, %d" % (4 * j))
        a.e("s_cmp_ge_u32 s42, s7")
        a.e("s_cbranch_scc1 %s" % lab)
        a.e("s_lshl_b32 s43, s42, 10")
        a.e("s_add_u32 s43, s43, s41")
        a.e("s_waitcnt vmcnt(0)")
        for e in range(4):
            a.e("v_lshl_or_b32 v%d, v%d, 16, v%d" % (10 + 4 * j + e, 41 + 8 * j + 2 * e, 40 + 8 * j + 2 * e))
        a.e("buffer_store_dwordx4 v[%d:%d], v2, s[%d:%d], s43 offen" % (10 + 4 * j, 13 + 4 * j, SRD_WS, SRD_WS + 3))
        a.label(lab)
    a.stamp_out()
    a.e("s_branch L_end_%s" % a.kname)


def code_prefetch(a):
    lpc = a.newlabel("L_pc")
    a.e("s_getpc_b64 s[60:61]")
    a.label(lpc)
    a.e("s_add_u32 s60, s60, mid_kernel-%s" % lpc)
    a.e("s_addc_u32 s61, s61, 0")
    a.e("s_lshl_b32 s62, s3, 13")
    a.e("v_lshl_add_u32 v120, v0, 7, s62")
    a.e("v_min_u32 v120, L_end_p3-mid_kernel-64, v120")
    a.e("global_load_dword v121, v120, s[60:61]")
    a.e("global_load_dword v122, v120, s[60:61] offset:64")


def gen_wt2(a):
    a.c("---- W1/W2 transposition ----")
    if "wt" in SKIP:
        a.e("s_branch L_end_%s" % a.kname)
    if WT2 != "bal":
        a.e("s_sub_u32 s4, s2, %d" % WT_BASE)
    a.e("s_lshl_b32 s4, s4, 2")
    a.e("s_add_u32 s4, s4, s3")
    a.e("s_mov_b32 s5, %d" % (2 * F))
    a.e("s_mov_b32 s42, 2428")
    a.e("s_mov_b32 s43, %d" % (20 * 1024))
    a.e("s_mov_b32 s48, %d" % W1F)
    a.e("s_cmp_ge_u32 s4, 270")
    a.e("s_cselect_b32 s44, s%d, s%d" % (P_W2, P_W1))
    a.e("s_cselect_b32 s45, s%d, s%d" % (P_W2 + 1, P_W1 + 1))
    a.e("s_cselect_b32 s5, %d, s5" % (2 * D))
    a.e("s_cselect_b32 s6, 270, 0")
    a.e("s_cselect_b32 s7, 10, 27")
    a.e("s_cselect_b32 s42, 6554, s42")
    a.e("s_cselect_b32 s43, %d, s43" % (54 * 1024))
    a.e("s_cselect_b32 s48, %d, s48" % W2F)
    a.e("s_and_b32 s45, s45, 0xffff")
    a.e("s_mov_b32 s46, %d" % (D * F * 2))
    a.e("s_mov_b32 s47, 0x00020000")
    a.e("s_sub_u32 s4, s4, s6")
    a.e("s_mul_i32 s49, s4, s42")
    a.e("s_lshr_b32 s49, s49, 16")
    a.e("s_mul_i32 s50, s49, s7")
    a.e("s_sub_u32 s50, s4, s50")
    a.e("s_lshl_b32 s6, s5, 3")
    a.e("v_lshrrev_b32 v1, 3, v0")
    a.e("v_mul_u32_u24 v1, s6, v1")
    a.e("v_and_b32 v2, 7, v0")
    a.e("v_lshl_add_u32 v1, v2, 4, v1")
    a.e("s_lshl_b32 s6, s6, 3")
    a.e("s_mul_i32 s51, s49, s6")
    a.e("s_lshl_b32 s6, s50, 7")
    a.e("s_add_u32 s51, s51, s6")
    for e in range(8):
        a.e("buffer_load_dwordx4 v[%d:%d], v1, s[44:47], s51 offen" % (40 + 4 * e, 43 + 4 * e))
        if e < 7:
            a.e("s_add_u32 s51, s51, s5")
    if os.environ.get("CPF", "3") == "1":
        code_prefetch(a)
    if os.environ.get("CPF", "3") == "2":
        lcp = a.newlabel("L_cp")
        a.e("s_cmp_ge_u32 s2, %d" % (WT_BASE + 16))
        a.e("s_cbranch_scc1 %s" % lcp)
        code_prefetch(a)
        a.label(lcp)
    a.e("s_mul_i32 s6, s3, 9216")
    a.e("v_mul_u32_u24 v2, 144, v0")
    a.e("v_add_u32 v2, s6, v2")
    a.e("v_lshrrev_b32 v3, 4, v0")
    a.e("v_mul_u32_u24 v3, 1152, v3")
    a.e("v_bfe_u32 v4, v0, 3, 1")
    a.e("v_mul_u32_u24 v4, 144, v4")
    a.e("v_add3_u32 v3, v3, v4, s6")
    a.e("v_and_b32 v4, 7, v0")
    a.e("v_lshl_add_u32 v3, v4, 4, v3")
    a.e("v_lshlrev_b32 v4, 4, v0")
    a.e("s_mul_i32 s52, s50, s43")
    a.e("s_lshl_b32 s52, s52, 2")
    a.e("s_lshl_b32 s6, s49, 11")
    a.e("s_add_u32 s52, s52, s6")
    a.e("s_add_u32 s52, s52, s48")
    a.e("s_mov_b32 s40, 0x05040100")
    a.e("s_mov_b32 s41, 0x07060302")
    a.e("s_waitcnt vmcnt(%d)" % (2 if os.environ.get("CPF", "3") == "1" else 0))
    for i in range(8):
        for d in range(4):
            a.e("v_perm_b32 v%d, v%d, v%d, s%d" % (80 + 4 * i + d, 40 + 4 * (2 * d + 1) + (i >> 1), 40 + 4 * (2 * d) + (i >> 1), 40 + (i & 1)))
        a.e("ds_write_b128 v2, v[%d:%d] offset:%d" % (80 + 4 * i, 83 + 4 * i, 16 * i))
    a.e("s_waitcnt lgkmcnt(0)")
    for nbl in range(4):
        for kbl in range(2):
            j = 2 * nbl + kbl
            a.e("ds_read_b128 v[%d:%d], v3 offset:%d" % (40 + 4 * j, 43 + 4 * j, kbl * 4608 + nbl * 288))
    for nbl in range(4):
        for kbl in range(2):
            j = 2 * nbl + kbl
            a.e("s_waitcnt lgkmcnt(%d)" % (7 - j))
            a.e("buffer_store_dwordx4 v[%d:%d], v4, s[%d:%d], s52 offen offset:%d" % (40 + 4 * j, 43 + 4 * j, SRD_WS, SRD_WS + 3, 1024 * kbl))
        if nbl < 3:
            a.e("s_add_u32 s52, s52, s43")
    a.stamp_out()
    a.e("s_branch L_end_%s" % a.kname)


def gen_phase1(a):
    a.kname = "p1"
    a.label("prep_kernel")
    prologue(a, P1_WGS)
    if WT2 == "bal":
        a.e("s_lshr_b32 s5, s2, 7")
        a.e("s_cmp_eq_u32 s5, 0")
        a.e("s_cbranch_scc1 L_p1_ln")
        a.e("s_sub_u32 s4, s2, 128")
        a.e("s_cmp_eq_u32 s5, 1")
        a.e("s_cbranch_scc1 L_p1_kg")
        a.e("s_sub_u32 s4, s2, 256")
        a.e("s_cmp_eq_u32 s5, 2")
        a.e("s_cbranch_scc1 L_p1_wt")
        a.e("s_cmp_lt_u32 s5, 7")
        a.e("s_cbranch_scc1 L_p1_kg")
        a.e("s_sub_u32 s4, s2, 768")
        if os.environ.get("CPF", "3") == "3":
            a.e("s_cmp_lt_u32 s2, 903")
            a.e("s_cbranch_scc1 L_p1_wt")
            code_prefetch(a)
            a.e("s_waitcnt vmcnt(0)")
            a.stamp_out()
            a.e("s_branch L_end_p1")
        a.label("L_p1_wt")
        gen_wt2(a)
        a.label("L_p1_ln")
        gen_ln(a)
        a.label("L_p1_kg")
        gen_kgen(a)
        a.label("L_end_p1")
        a.e("s_endpgm")
        return
    if WT2:
        a.e("s_cmp_ge_u32 s2, %d" % KG_BASE)
        a.e("s_cbranch_scc1 L_p1_kg")
        if WT2 == "wl":
            a.e("s_cmp_ge_u32 s2, %d" % LN_BASE)
        else:
            a.e("s_cmp_lt_u32 s2, %d" % WT_BASE)
        a.e("s_cbranch_scc1 L_p1_ln")
        gen_wt2(a)
        a.label("L_p1_ln")
        gen_ln(a)
        a.label("L_p1_kg")
        gen_kgen(a)
        a.label("L_end_p1")
        a.e("s_endpgm")
        return
    if KG_BASE == 0:
        a.e("s_cmp_lt_u32 s2, %d" % N_KG)
    else:
        a.e("s_cmp_ge_u32 s2, %d" % KG_BASE)
    a.e("s_cbranch_scc1 L_p1_kg")
    a.e("s_cmp_lt_u32 s2, %d" % W1_BASE)
    a.e("s_cbranch_scc1 L_p1_ln")
    a.e("s_cmp_lt_u32 s2, %d" % W2_BASE)
    a.e("s_cbranch_scc1 L_p1_w1")
    gen_wt(a, 2)
    a.label("L_p1_w1")
    gen_wt(a, 1)
    a.label("L_p1_ln")
    gen_ln(a)
    a.label("L_p1_kg")
    gen_kgen(a)
    a.label("L_end_p1")
    a.e("s_endpgm")


class VM:
    def __init__(self, a):
        self.a = a
        self.q = []

    def issue(self, tag):
        self.q.append(tag)

    def wait(self, tag):
        idx = [i for i, t in enumerate(self.q) if t == tag]
        if not idx:
            return
        n = len(self.q) - 1 - idx[-1]
        assert n <= 63
        self.a.e("s_waitcnt vmcnt(%d)" % n)
        self.q = self.q[idx[-1] + 1:]

    def wait2(self, t1, t2):
        idx = [i for i, t in enumerate(self.q) if t in (t1, t2)]
        if not idx:
            return
        n = len(self.q) - 1 - idx[-1]
        assert n <= 63
        self.a.e("s_waitcnt vmcnt(%d)" % n)
        self.q = self.q[idx[-1] + 1:]

    def waitall(self):
        if self.q:
            self.a.e("s_waitcnt vmcnt(0)")
            self.q = []


def gemm_loop(a, vm, nst, kbs, nA, nB, nslots, slot_bytes, a_src, b_src, a_kstride_chunks,
              wave_bcols, acc0, regs, vlane16, vrdA, vrdB, sbase, sldso):
    nch = kbs * (nA + nB)
    nld = (nch + 3) // 4

    def dma(st):
        slot = st % nslots
        out = []
        for j in range(nld):
            out.append(["s_add_u32 m0, s%d, %d" % (sldso + j, slot * slot_bytes),
                        "s_add_u32 s6, s%d, %d" % (sbase + j, st * kbs * 1024),
                        "buffer_load_dwordx4 v%d, s[%d:%d], s6 offen lds" % (vlane16, SRD_WS, SRD_WS + 3)])
        return out

    def reads(st, rs):
        slot = st % nslots
        r = regs[rs]
        out = []
        for kk in range(kbs):
            for i in range(nA):
                off = slot * slot_bytes + (kk * nA + i) * 1024
                va = vrdA
                if off >= 65536:
                    off -= 32768
                    va = vrdA + 2
                out.append(["ds_read_b128 v[%d:%d], v%d offset:%d" % (r, r + 3, va, off)])
                r += 4
            for jj in range(wave_bcols):
                off = slot * slot_bytes + (kbs * nA + kk * nB + jj) * 1024
                vb = vrdB
                if off + (nB - wave_bcols) * 1024 >= 65536:
                    off -= 32768
                    vb = vrdB + 2
                out.append(["ds_read_b128 v[%d:%d], v%d offset:%d" % (r, r + 3, vb, off)])
                r += 4
        return out

    def mfmas(rs):
        per = (nA + wave_bcols) * 4
        out = []
        for kk in range(kbs):
            r = regs[rs] + kk * per
            for i in range(nA):
                for jj in range(wave_bcols):
                    acc = acc0 + (i * wave_bcols + jj) * 4
                    out.append("v_mfma_f32_16x16x32_bf16 v[%d:%d], v[%d:%d], v[%d:%d], v[%d:%d]" % (
                        acc, acc + 3, r + 4 * i, r + 4 * i + 3, r + 4 * (nA + jj), r + 4 * (nA + jj) + 3, acc, acc + 3))
        return out

    def emit(groups, tag=None):
        for g in groups:
            for s in g:
                a.e(s)
            if tag and g[-1].startswith("buffer"):
                vm.issue(tag)

    for st in range(min(nslots, nst)):
        emit(dma(st), "st%d" % st)
    vm.wait("st0")
    a.stamp()
    a.e("s_barrier")
    emit(reads(0, 0))
    for i in range(nst):
        a.e("s_waitcnt lgkmcnt(0)")
        other = []
        if i + 1 < nst:
            vm.wait("st%d" % (i + 1))
            a.e("s_barrier")
            rd = reads(i + 1, (i + 1) % 2)
            dm = dma(i + nslots) if i + nslots < nst else []
            if ILV == 0:
                emit(dm, "st%d" % (i + nslots))
                emit(rd)
            else:
                k = 0
                while rd or dm:
                    if rd:
                        other.append(rd.pop(0))
                    if rd and k % 2 == 0:
                        other.append(rd.pop(0))
                    if dm:
                        other.append(dm.pop(0))
                    k += 1
        m = mfmas(i % 2)
        no = len(other)
        nm = len(m)
        done = 0
        for k in range(nm):
            a.e(m[k])
            tgt = ((k + 1) * no + nm - 1) // nm if ILV == 1 else min(no, (k + 1) * ILV)
            while done < tgt:
                emit([other[done]], "st%d" % (i + nslots))
                done += 1
        assert done == no


def gemm_loop2(a, vm, nst, nAc, nA, nBw, nslots, kstride, acc0, aregs, bregs, nb,
               vlane16, vrdA, sbase, sldso, sB, bstride, bcolstride, after_prologue=None, extra=None, extra_per=4, extra_start=1, timed=None):
    nfull = nAc // 4
    rem = nAc - 4 * nfull
    slot_bytes = nAc * 1024

    def dma(st):
        slot = st % nslots
        out = []
        for j in range(nfull):
            out.append(["s_add_u32 m0, s%d, %d" % (sldso + j, slot * slot_bytes),
                        "s_add_u32 s6, s%d, %d" % (sbase + j, st * kstride),
                        "buffer_load_dwordx4 v%d, s[%d:%d], s6 offen lds" % (vlane16, SRD_WS, SRD_WS + 3)])
        if rem:
            j = nfull
            out.append(["s_add_u32 m0, s%d, %d" % (sldso + j, slot * slot_bytes),
                        "s_add_u32 s6, s%d, %d" % (sbase + j, st * kstride),
                        "s_mov_b64 exec, 0x%x" % ((1 << (16 * rem)) - 1),
                        "buffer_load_dwordx4 v%d, s[%d:%d], s6 offen lds" % (vlane16, SRD_WS, SRD_WS + 3),
                        "s_mov_b64 exec, -1"])
        return out

    def bload(st):
        out = []
        r = bregs + (st % nb) * 4 * nBw
        for jj in range(nBw):
            out.append(["s_add_u32 s7, s%d, %d" % (sB, st * bstride + jj * bcolstride),
                        "buffer_load_dwordx4 v[%d:%d], v%d, s[%d:%d], s7 offen" % (r + 4 * jj, r + 4 * jj + 3, vlane16, SRD_WS, SRD_WS + 3)])
        return out

    def reads(st):
        slot = st % nslots
        r = aregs + (st % 2) * 4 * nA
        out = []
        for i in range(nA):
            off = slot * slot_bytes + i * 1024
            assert off + (nAc - nA) * 1024 < 65536
            out.append(["ds_read_b128 v[%d:%d], v%d offset:%d" % (r + 4 * i, r + 4 * i + 3, vrdA, off)])
        return out

    def mfmas(st):
        ra = aregs + (st % 2) * 4 * nA
        rb = bregs + (st % nb) * 4 * nBw
        out = []
        for i in range(nA):
            for jj in range(nBw):
                acc = acc0 + (i * nBw + jj) * 4
                out.append("v_mfma_f32_16x16x32_bf16 v[%d:%d], v[%d:%d], v[%d:%d], v[%d:%d]" % (
                    acc, acc + 3, ra + 4 * i, ra + 4 * i + 3, rb + 4 * jj, rb + 4 * jj + 3, acc, acc + 3))
        return out

    def emit(groups, tag=None):
        for g in groups:
            for s in g:
                a.e(s)
            if tag:
                vm.issue(tag)

    PRO = int(os.environ.get("PRO", "9"))
    na = nbn = 0
    for st in range(max(nslots, nb - 1)):
        if st < nslots and st < nst and st < PRO:
            emit(dma(st), "a%d" % st)
            na = st + 1
        if st < nb - 1 and st < nst and st < PRO:
            emit(bload(st), "b%d" % st)
            nbn = st + 1
    a.stamp()
    if after_prologue:
        after_prologue()
    a.stamp()
    vm.wait("a0")
    a.stamp()
    a.e("s_barrier")
    emit(reads(0))
    for i in range(nst):
        a.e("s_waitcnt lgkmcnt(0)")
        other = []
        vm.wait2("a%d" % (i + 1), "b%d" % i)
        if i + 1 < nst:
            a.e("s_barrier")
            rd = [(g, None) for g in reads(i + 1)]
            mem = []
            for rep in range(2):
                if na <= i + nslots and na < nst:
                    mem += [(g, "a%d" % na) for g in dma(na)]
                    na += 1
                if nbn <= i + nb - 1 and nbn < nst:
                    mem += [(g, "b%d" % nbn) for g in bload(nbn)]
                    nbn += 1
            if extra and i >= extra_start:
                mem += [(g, "epi") for g in extra[:extra_per]]
                del extra[:extra_per]
            if timed and i in timed:
                mem += [(g, "pf") for g in timed[i]]
            EXP = os.environ.get("EXP", "")
            if "nomem" in EXP:
                mem = []
            if "nords" in EXP:
                rd = []
            if "front" in EXP:
                other = rd + mem
                rd = []
                mem = []
            k = 0
            while rd or mem:
                if rd:
                    other.append(rd.pop(0))
                if rd and len(rd) >= 2 * len(mem):
                    other.append(rd.pop(0))
                if mem:
                    other.append(mem.pop(0))
        m = mfmas(i)
        no = len(other)
        nm = len(m)
        done = 0
        for k in range(nm):
            a.e(m[k])
            tgt = ((k + 1) * no + nm - 1) // nm
            if "front" in os.environ.get("EXP", ""):
                tgt = min(no, k + 1)
            while done < tgt:
                emit([other[done][0]], other[done][1])
                done += 1
        assert done == no


def dma_setup(a, nAc, SB, SL, gaddr):
    nfull = nAc // 4
    rem = nAc - 4 * nfull
    for j in range(nfull):
        a.e("s_add_u32 s6, s3, %d" % (4 * j))
        a.e("s_lshl_b32 s%d, s6, 10" % (SL + j))
        gaddr(a, 6, SB + j)
    if rem:
        j = nfull
        a.e("s_mul_i32 s7, s3, %d" % (rem * 256))
        a.e("s_lshr_b32 s6, s7, 10")
        a.e("s_add_u32 s6, s6, %d" % (4 * nfull))
        a.e("s_and_b32 s7, s7, 1023")
        a.e("s_lshl_b32 s%d, s6, 10" % (SL + j))
        a.e("s_add_u32 s%d, s%d, s7" % (SL + j, SL + j))
        gaddr(a, 6, SB + j)
        a.e("s_add_u32 s%d, s%d, s7" % (SB + j, SB + j))


N_G1 = 256
N_CV = 640
P2_WGS = N_G1 + N_CV
G1_SLOT = 8 * 1024
G1_NSLOT = int(os.environ.get("G1_NSLOT", "5"))
P2_LDS = max(G1_SLOT * G1_NSLOT, 40960)


def gen_gemm1(a):
    a.c("---- GEMM1: mt (f tile of 7 or 6 frags), nt (l tile of 128) ----")
    vm = VM(a)
    if "g1" in SKIP:
        a.e("s_branch L_end_%s" % a.kname)
    NA = 7
    G1MAP = os.environ.get("G1MAP", "0")
    if G1MAP == "0":
        a.e("s_lshr_b32 s4, s2, 4")
        a.e("s_and_b32 s5, s2, 7")
        a.e("s_lshl_b32 s5, s5, 1")
        a.e("s_bfe_u32 s6, s2, 0x10003")
        a.e("s_add_u32 s5, s5, s6")
    elif G1MAP == "1":
        a.e("s_bfe_u32 s5, s2, 0x20001")
        a.e("s_lshl_b32 s5, s5, 2")
        a.e("s_bfe_u32 s6, s2, 0x20003")
        a.e("s_add_u32 s5, s5, s6")
        a.e("s_and_b32 s4, s2, 1")
        a.e("s_lshl_b32 s4, s4, 3")
        a.e("s_lshr_b32 s6, s2, 5")
        a.e("s_add_u32 s4, s4, s6")
    elif G1MAP == "3":
        a.e("s_bfe_u32 s5, s2, 0x40003")
        a.e("s_and_b32 s4, s2, 7")
        a.e("s_lshl_b32 s4, s4, 1")
        a.e("s_lshr_b32 s6, s2, 7")
        a.e("s_add_u32 s4, s4, s6")
    else:
        a.e("s_bfe_u32 s5, s2, 0x10002")
        a.e("s_lshl_b32 s5, s5, 3")
        a.e("s_bfe_u32 s6, s2, 0x30003")
        a.e("s_add_u32 s5, s5, s6")
        a.e("s_and_b32 s4, s2, 3")
        a.e("s_lshl_b32 s4, s4, 2")
        a.e("s_lshr_b32 s6, s2, 6")
        a.e("s_add_u32 s4, s4, s6")
    a.e("s_mul_i32 s6, s4, 7")
    a.e("s_mul_i32 s7, s4, 6")
    a.e("s_add_u32 s7, s7, 12")
    a.e("s_cmp_lt_u32 s4, 12")
    a.e("s_cselect_b32 s4, s6, s7")
    a.e("s_cselect_b32 s45, 6, 5")
    SB, SL, SBB = 48, 56, 54

    def gaddr(a, sc, sdst):
        a.e("s_min_u32 s40, s%d, s45" % sc)
        a.e("s_add_u32 s40, s40, s4")
        a.e("s_mul_i32 s40, s40, 20480")
        a.e("s_add_u32 s%d, s40, %d" % (sdst, W1F))
    dma_setup(a, 8, SB, SL, gaddr)
    a.e("s_lshl_b32 s40, s5, 3")
    a.e("s_lshl_b32 s41, s3, 1")
    a.e("s_add_u32 s40, s40, s41")
    a.e("s_mul_i32 s40, s40, 20480")
    a.e("s_add_u32 s%d, s40, %d" % (SBB, XNF))
    a.e("v_lshlrev_b32 v1, 4, v0")
    ACC = 8
    AREG = 64
    BREG = 120
    NB = 4
    BIAS = 152

    def after():
        a.e("s_lshl_b32 s6, s4, 5")
        a.e("v_lshrrev_b32 v6, 4, v0")
        a.e("v_lshlrev_b32 v6, 3, v6")
        a.e("v_add_u32 v6, s6, v6")
        a.e("s_lshl_b32 s6, s45, 5")
        a.e("v_add_u32 v7, s6, v6")
        for i in range(NA):
            if i < NA - 1:
                a.e("global_load_dwordx2 v[%d:%d], v6, s[%d:%d] offset:%d" % (BIAS + 2 * i, BIAS + 2 * i + 1, P_B1, P_B1 + 1, 32 * i))
            else:
                a.e("global_load_dwordx2 v[%d:%d], v7, s[%d:%d]" % (BIAS + 2 * i, BIAS + 2 * i + 1, P_B1, P_B1 + 1))
            vm.issue("bias")
        for i in range(8 * NA):
            a.e("v_mov_b32 v%d, 0" % (ACC + i))
    W2PF = os.environ.get("W2PF", "")
    PFS = int(os.environ.get("PFS", "128"))
    pf = []
    if W2PF:
        a.e("s_lshr_b32 s60, s2, 3")
        a.e("s_mul_i32 s60, s60, 69120")
        a.e("s_mul_i32 s61, s3, 17280")
        a.e("s_add_u32 s60, s60, s61")
        a.e("s_add_u32 s60, s60, %d" % W2F)
        a.e("v_mul_u32_u24 v167, %d, v0" % PFS)
        nl = 17280 // PFS
        k = 0
        while nl > 0:
            g = ["s_add_u32 s61, s60, %d" % (k * 64 * PFS)]
            if nl < 64:
                g.append("s_mov_b64 exec, 0x%x" % ((1 << nl) - 1))
            g.append("buffer_load_dword v166, v167, s[%d:%d], s61 offen" % (SRD_WS, SRD_WS + 3))
            if nl < 64:
                g.append("s_mov_b64 exec, -1")
            pf.append(g)
            nl -= 64
            k += 1
    if W2PF and W2PF != "post":
        gemm_loop2(a, vm, 20, 8, NA, 2, G1_NSLOT, 1024, ACC, AREG, BREG, NB, 1, 1, SB, SL, SBB, 1024, 20480, after, pf, 1, int(W2PF))
        assert not pf
    else:
        gemm_loop2(a, vm, 20, 8, NA, 2, G1_NSLOT, 1024, ACC, AREG, BREG, NB, 1, 1, SB, SL, SBB, 1024, 20480, after)
    vm.waitall()
    for g in pf:
        for x in g:
            a.e(x)
    a.stamp()
    a.e("v_lshrrev_b32 v6, 5, v0")
    a.e("v_lshlrev_b32 v6, 8, v6")
    a.e("v_and_b32 v7, 15, v0")
    a.e("v_lshl_add_u32 v6, v7, 4, v6")
    a.e("v_bfe_u32 v7, v0, 4, 1")
    a.e("v_lshl_add_u32 v6, v7, 3, v6")
    a.e("s_lshl_b32 s6, s5, 3")
    a.e("s_lshl_b32 s7, s3, 1")
    a.e("s_add_u32 s6, s6, s7")
    a.e("s_mul_i32 s6, s6, 55296")
    a.e("s_lshl_b32 s7, s4, 9")
    a.e("s_add_u32 s6, s6, s7")
    a.e("s_add_u32 s6, s6, %d" % ACTF)
    a.e("s_add_u32 s7, s6, 55296")
    a.e("s_lshl_b32 s41, s45, 9")
    a.e("s_add_u32 s40, s6, s41")
    a.e("s_add_u32 s41, s7, s41")
    a.e("s_mov_b32 s42, 0x%x" % LOG2E)
    a.e("s_mov_b32 s43, 0x%x" % LOG2E)
    a.e("s_mov_b32 s44, 0x41a00000")
    a.e("s_mov_b32 s46, 2.0")
    a.e("s_mov_b32 s47, 2.0")
    a.e("s_nop 4")
    T = 64

    def pk(op, d, x, y):
        return "v_pk_%s_f32 v[%d:%d], %s, %s" % (op, d, d + 1, x, y)

    def V(r):
        return "v[%d:%d]" % (r, r + 1)
    for i in range(NA):
        b = BIAS + 2 * i
        a.e("v_lshlrev_b32 v%d, 16, v%d" % (T, b))
        a.e("v_and_b32 v%d, 0xffff0000, v%d" % (T + 1, b))
        a.e("v_lshlrev_b32 v%d, 16, v%d" % (T + 2, b + 1))
        a.e("v_and_b32 v%d, 0xffff0000, v%d" % (T + 3, b + 1))
        h = [T + 4 + 16 * jj for jj in range(2)]
        for jj in range(2):
            acc = ACC + (i * 2 + jj) * 4
            for r in (0, 2):
                a.e(pk("add", h[jj] + r, V(acc + r), V(T + r)))
        for jj in range(2):
            for r in range(4):
                a.e("v_min_f32 v%d, s44, v%d" % (h[jj] + 4 + r, h[jj] + r))
        for jj in range(2):
            for r in (0, 2):
                a.e(pk("mul", h[jj] + 4 + r, V(h[jj] + 4 + r), "s[42:43]"))
        for jj in range(2):
            for r in range(4):
                a.e("v_exp_f32 v%d, v%d" % (h[jj] + 4 + r, h[jj] + 4 + r))
        for jj in range(2):
            for r in (0, 2):
                a.e(pk("add", h[jj] + 8 + r, V(h[jj] + 4 + r), "s[46:47]"))
        for jj in range(2):
            for r in (0, 2):
                a.e(pk("mul", h[jj] + 8 + r, V(h[jj] + 8 + r), V(h[jj] + 4 + r)))
        for jj in range(2):
            for r in (0, 2):
                a.e(pk("add", h[jj] + 12 + r, V(h[jj] + 8 + r), "s[46:47]"))
        for jj in range(2):
            for r in range(4):
                a.e("v_rcp_f32 v%d, v%d" % (h[jj] + 12 + r, h[jj] + 12 + r))
        for jj in range(2):
            for r in (0, 2):
                a.e(pk("mul", h[jj] + 8 + r, V(h[jj] + 8 + r), V(h[jj] + r)))
        for jj in range(2):
            for r in (0, 2):
                a.e(pk("mul", h[jj] + 8 + r, V(h[jj] + 8 + r), V(h[jj] + 12 + r)))
        for jj in range(2):
            nu = h[jj] + 8
            o = 100 + 2 * ((i * 2 + jj) % 8)
            a.e("v_cvt_pk_bf16_f32 v%d, v%d, v%d" % (o, nu, nu + 1))
            a.e("v_cvt_pk_bf16_f32 v%d, v%d, v%d" % (o + 1, nu + 2, nu + 3))
            if i < NA - 1:
                so, off = (6 + jj), 512 * i
            else:
                so, off = (40 + jj), 0
            a.e("buffer_store_dwordx2 v[%d:%d], v6, s[%d:%d], s%d offen offset:%d" % (o, o + 1, SRD_WS, SRD_WS + 3, so, off))
    if W2PF == "post":
        a.e("s_waitcnt vmcnt(0)")
    a.stamp_out()
    a.e("s_branch L_end_%s" % a.kname)


CV_KSTR = 4384
CV_UB = 4 * CV_KSTR


def gen_conv(a):
    a.c("---- conv: channel s2 - N_G1 ----")
    if "cv" in SKIP:
        a.e("s_branch L_end_%s" % a.kname)
    if os.environ.get("CVPRIO", "0") == "1":
        a.e("s_setprio 3")
    a.e("s_sub_u32 s4, s2, %d" % N_G1)
    if XB:
        a.e("s_and_b32 s5, s4, 7")
        a.e("s_mul_i32 s5, s5, 80")
        a.e("s_lshr_b32 s4, s4, 3")
        a.e("s_add_u32 s4, s4, s5")
    a.e("v_lshlrev_b32 v1, 4, v0")
    a.e("s_mul_i32 s5, s4, %d" % KR_STR)
    if XB:
        a.e("s_lshl_b32 s7, s4, 5")
        a.e("s_mul_i32 s6, s3, %d" % (32 * 20480))
        a.e("s_add_u32 s7, s7, s6")
        a.e("v_lshrrev_b32 v6, 1, v0")
        a.e("v_mul_u32_u24 v6, 20480, v6")
        a.e("v_and_b32 v7, 1, v0")
        a.e("v_lshl_add_u32 v6, v7, 4, v6")
    else:
        a.e("s_mul_i32 s7, s4, %d" % XNT_STR)
    a.e("s_add_u32 s7, s7, %d" % XNT)
    a.e("s_lshr_b32 s40, s3, 1")
    a.e("s_lshl_b32 s40, s40, 2")
    a.e("s_sub_u32 s40, 8, s40")
    a.e("s_add_u32 s40, s40, s5")
    a.e("s_and_b32 s41, s3, 1")
    a.e("s_mul_i32 s41, s41, %d" % (KR1 - KR0))
    a.e("s_add_u32 s40, s40, s41")
    a.e("s_add_u32 s40, s40, %d" % KR0)
    a.e("s_mul_i32 s42, s3, %d" % CV_KSTR)
    for p in range(4):
        a.e("s_add_u32 m0, s42, %d" % (1024 * p))
        a.e("s_add_u32 s6, s40, %d" % (1024 * p))
        a.e("buffer_load_dwordx4 v1, s[%d:%d], s6 offen lds" % (SRD_WS, SRD_WS + 3))
    a.e("s_lshl_b32 s44, s3, 10")
    if XB:
        a.e("s_add_u32 m0, s44, %d" % (CV_UB + 240))
        a.e("buffer_load_dwordx4 v6, s[%d:%d], s7 offen lds" % (SRD_WS, SRD_WS + 3))
    else:
        a.e("s_add_u32 m0, s44, %d" % CV_UB)
        a.e("s_add_u32 s6, s7, s44")
        a.e("buffer_load_dwordx4 v1, s[%d:%d], s6 offen lds" % (SRD_WS, SRD_WS + 3))
    a.e("s_mov_b64 exec, 0x1ffff")
    a.e("s_add_u32 m0, s42, 4096")
    a.e("s_add_u32 s6, s40, 4096")
    a.e("buffer_load_dwordx4 v1, s[%d:%d], s6 offen lds" % (SRD_WS, SRD_WS + 3))
    if not XB:
        a.e("s_mov_b64 exec, 0xffff")
        a.e("s_mov_b32 m0, %d" % (CV_UB + 4096))
        a.e("s_add_u32 s6, s7, 4096")
        a.e("buffer_load_dwordx4 v1, s[%d:%d], s6 offen lds" % (SRD_WS, SRD_WS + 3))
    a.e("s_mov_b64 exec, -1")
    a.e("v_and_b32 v2, 3, v0")
    a.e("v_mul_u32_u24 v2, %d, v2" % CV_KSTR)
    a.e("v_bfe_u32 v3, v0, 3, 1")
    a.e("v_lshlrev_b32 v3, 8, v3")
    a.e("v_sub_u32 v2, v2, v3")
    a.e("v_bfe_u32 v3, v0, 2, 1")
    a.e("v_lshlrev_b32 v3, 3, v3")
    a.e("v_sub_u32 v2, v2, v3")
    a.e("v_lshrrev_b32 v3, 4, v0")
    a.e("v_lshl_add_u32 v2, v3, 4, v2")
    a.e("v_add_u32 v2, 648, v2")
    a.e("s_lshl_b32 s6, s3, 7")
    a.e("v_subrev_u32 v2, s6, v2")
    a.e("v_add_u32 v5, 2048, v2")
    a.e("v_and_b32 v4, 15, v0")
    a.e("v_add_u32 v4, v4, v3")
    a.e("v_lshlrev_b32 v4, 4, v4")
    a.e("v_add_u32 v4, %d, v4" % CV_UB)
    a.e("v_subrev_u32 v4, s6, v4")
    ACC = 8
    RA, RB = 40, 72
    for i in range(32):
        a.e("v_mov_b32 v%d, 0" % (ACC + i))
    if XB:
        a.e("s_mov_b64 exec, 0x7fff")
        a.e("ds_write_b128 v1, v[%d:%d] offset:%d" % (ACC, ACC + 3, CV_UB))
        a.e("s_mov_b64 exec, -1")
    a.stamp()
    a.e("s_waitcnt vmcnt(0) lgkmcnt(0)")
    a.stamp()
    a.e("s_barrier")
    a.stamp()
    for rr in range(2):
        for x in range(8):
            off = (63 - 8 * x - rr) * 64 - 384
            va = 2
            if off >= 2048:
                off -= 2048
                va = 5
            a.e("ds_read2_b64 v[%d:%d], v%d offset0:%d offset1:%d" % (RA + 4 * x, RA + 4 * x + 3, va, off // 8, off // 8 + 1))
            a.e("ds_read_b128 v[%d:%d], v4 offset:%d" % (RB + 4 * x, RB + 4 * x + 3, 64 * (8 * x - rr + 7)))
        a.e("s_waitcnt lgkmcnt(0)")
        for aa in range(8):
            for g in range(aa, 8):
                bb = g - aa
                a.e("v_mfma_f32_16x16x32_bf16 v[%d:%d], v[%d:%d], v[%d:%d], v[%d:%d]" % (
                    ACC + 4 * g, ACC + 4 * g + 3, RA + 4 * aa, RA + 4 * aa + 3, RB + 4 * bb, RB + 4 * bb + 3,
                    ACC + 4 * g, ACC + 4 * g + 3))
    a.e("s_nop 7")
    a.stamp()
    a.e("s_barrier")
    a.e("s_lshl_b32 s6, s3, 13")
    a.e("v_add_u32 v5, s6, v1")
    for g in range(8):
        a.e("ds_write_b128 v5, v[%d:%d] offset:%d" % (ACC + 4 * g, ACC + 4 * g + 3, 1024 * g))
    a.e("s_waitcnt lgkmcnt(0)")
    a.e("s_barrier")
    a.e("s_lshl_b32 s6, s3, 11")
    a.e("v_add_u32 v5, s6, v1")
    for gg in range(2):
        for w in range(4):
            a.e("ds_read_b128 v[%d:%d], v5 offset:%d" % (RA + 16 * gg + 4 * w, RA + 16 * gg + 4 * w + 3, 8192 * w + 1024 * gg))
    a.e("v_lshrrev_b32 v6, 5, v0")
    a.e("v_lshlrev_b32 v6, 8, v6")
    a.e("v_and_b32 v7, 15, v0")
    a.e("v_lshl_add_u32 v6, v7, 4, v6")
    a.e("v_bfe_u32 v7, v0, 4, 1")
    a.e("v_lshl_add_u32 v6, v7, 3, v6")
    a.e("s_lshl_b32 s6, s4, 12")
    a.e("s_lshl_b32 s7, s3, 10")
    a.e("s_add_u32 s6, s6, s7")
    a.e("s_add_u32 s6, s6, %d" % YT)
    a.e("s_waitcnt lgkmcnt(0)")
    for gg in range(2):
        b = RA + 16 * gg
        for r in range(4):
            a.e("v_add_f32 v%d, v%d, v%d" % (b + r, b + r, b + 4 + r))
            a.e("v_add_f32 v%d, v%d, v%d" % (b + 8 + r, b + 8 + r, b + 12 + r))
        for r in range(4):
            a.e("v_add_f32 v%d, v%d, v%d" % (b + r, b + r, b + 8 + r))
        a.e("v_cvt_pk_bf16_f32 v%d, v%d, v%d" % (b + 4, b, b + 1))
        a.e("v_cvt_pk_bf16_f32 v%d, v%d, v%d" % (b + 5, b + 2, b + 3))
        a.e("buffer_store_dwordx2 v[%d:%d], v6, s[%d:%d], s6 offen offset:%d" % (b + 4, b + 5, SRD_WS, SRD_WS + 3, 512 * gg))
    a.stamp_out()
    a.e("s_branch L_end_%s" % a.kname)


def gen_phase2(a):
    a.kname = "p2"
    a.label("mid_kernel")
    prologue(a, P2_WGS)
    a.e("s_cmp_lt_u32 s2, %d" % N_G1)
    a.e("s_cbranch_scc1 L_p2_g1")
    gen_conv(a)
    a.label("L_p2_g1")
    gen_gemm1(a)
    a.label("L_end_p2")
    a.e("s_endpgm")


P3_WGS = 256
G2_NSLOT = int(os.environ.get("G2_NSLOT", "5"))
G2_NB = int(os.environ.get("G2_NB", "5"))
P3_LDS = 10240 * G2_NSLOT


def gen_phase3(a):
    a.kname = "p3"
    a.label("fin_kernel")
    prologue(a, P3_WGS)
    vm = VM(a)
    G2MAP = os.environ.get("G2MAP", "0")
    if G2MAP == "0":
        a.e("s_lshr_b32 s4, s2, 5")
        a.e("s_and_b32 s5, s2, 7")
        a.e("s_lshl_b32 s5, s5, 2")
        a.e("s_bfe_u32 s6, s2, 0x20003")
        a.e("s_add_u32 s5, s5, s6")
    elif G2MAP == "2":
        a.e("s_and_b32 s4, s2, 3")
        a.e("s_lshl_b32 s4, s4, 1")
        a.e("s_bfe_u32 s6, s2, 0x10003")
        a.e("s_add_u32 s4, s4, s6")
        a.e("s_bfe_u32 s5, s2, 0x10002")
        a.e("s_lshl_b32 s5, s5, 4")
        a.e("s_lshr_b32 s6, s2, 4")
        a.e("s_add_u32 s5, s5, s6")
    else:
        a.e("s_and_b32 s4, s2, 1")
        a.e("s_lshl_b32 s4, s4, 2")
        a.e("s_bfe_u32 s6, s2, 0x20003")
        a.e("s_add_u32 s4, s4, s6")
        a.e("s_bfe_u32 s5, s2, 0x20001")
        a.e("s_lshl_b32 s5, s5, 3")
        a.e("s_lshr_b32 s6, s2, 5")
        a.e("s_add_u32 s5, s5, s6")
    if os.environ.get("FAKE"):
        a.e("s_mov_b32 s4, 0")
        a.e("s_mov_b32 s5, 0")
    SB, SL, SBB, SKH, SWP = 48, 56, 54, 46, 47
    a.e("s_lshr_b32 s%d, s3, 1" % SKH)
    a.e("s_and_b32 s40, s3, 1")
    a.e("s_lshl_b32 s%d, s40, 1" % SWP)
    a.e("s_add_u32 s%d, s%d, s%d" % (SWP, SWP, SKH))
    a.e("s_lshl_b32 s41, s5, 2")
    a.e("s_lshl_b32 s40, s40, 1")
    a.e("s_add_u32 s41, s41, s40")
    a.e("s_mul_i32 s41, s41, 54")
    a.e("s_add_u32 s41, s41, s%d" % SKH)
    a.e("s_lshl_b32 s41, s41, 10")
    a.e("s_add_u32 s%d, s41, %d" % (SBB, ACTF))

    def gaddr(a, sc, sdst):
        a.e("s_cmp_ge_u32 s%d, 5" % sc)
        a.e("s_cselect_b32 s40, 1, 0")
        a.e("s_mul_i32 s41, s40, 5")
        a.e("s_sub_u32 s41, s%d, s41" % sc)
        a.e("s_mul_i32 s42, s4, 5")
        a.e("s_add_u32 s42, s42, s41")
        a.e("s_mul_i32 s42, s42, 54")
        a.e("s_add_u32 s42, s42, s40")
        a.e("s_lshl_b32 s42, s42, 10")
        a.e("s_add_u32 s%d, s42, %d" % (sdst, W2F))
    dma_setup(a, 10, SB, SL, gaddr)
    a.e("v_lshlrev_b32 v1, 4, v0")
    a.e("s_mul_i32 s6, s%d, 5120" % SKH)
    a.e("v_add_u32 v2, s6, v1")
    ACC = 12
    AREG = 52
    BREG = 92
    EX, EXN, EDS, EY = 132, 142, 152, 164
    assert BREG + 8 * G2_NB <= EX
    def epi_loads():
        a.e("s_lshl_b32 s6, s5, 6")
        a.e("s_lshl_b32 s7, s%d, 4" % SWP)
        a.e("s_add_u32 s6, s6, s7")
        a.e("v_and_b32 v6, 15, v0")
        a.e("v_add_u32 v6, s6, v6")
        a.e("v_lshrrev_b32 v7, 4, v0")
        a.e("s_mul_i32 s7, s4, 160")
        a.e("v_mul_u32_u24 v8, 1280, v6")
        a.e("v_lshl_add_u32 v8, v7, 3, v8")
        a.e("v_add_u32 v8, s7, v8")
        a.e("v_lshlrev_b32 v9, 3, v7")
        a.e("v_add_u32 v9, s7, v9")
        a.e("v_lshrrev_b32 v10, 5, v0")
        a.e("v_lshlrev_b32 v10, 8, v10")
        a.e("v_and_b32 v11, 15, v0")
        a.e("v_lshl_add_u32 v10, v11, 4, v10")
        a.e("v_bfe_u32 v11, v0, 4, 1")
        a.e("v_lshl_add_u32 v10, v11, 3, v10")
        a.e("s_lshr_b32 s40, s6, 4")
        a.e("s_mul_i32 s40, s40, 20480")
        a.e("s_mul_i32 s41, s4, 2560")
        a.e("s_add_u32 s40, s40, s41")
        a.e("s_add_u32 s40, s40, %d" % XNF)
        a.e("v_lshlrev_b32 v11, 14, v7")
        a.e("v_lshl_add_u32 v11, v6, 1, v11")
        a.e("s_mul_i32 s41, s4, %d" % (80 * 4096))
        a.e("s_add_u32 s41, s41, %d" % YT)
        for i in range(40):
            a.e("v_mov_b32 v%d, 0" % (ACC + i))
        if T3[0] == 0:
            for x in touch(0):
                a.e(x)
            vm.issue("pf")
        if T3[1] == 0:
            for x in touch(1):
                a.e(x)
            vm.issue("pf")
        if T3[2] == 0:
            for x in touch(2):
                a.e(x)
            vm.issue("pf")

    T3 = [int(x) for x in os.environ.get("T3", "-1,-1,-1").split(",")]

    def touch(t):
        return ["s_add_u32 s61, s60, %d" % (128 * t),
                "s_min_u32 s61, s61, 377",
                "s_mul_i32 s62, s61, 9363",
                "s_lshr_b32 s62, s62, 16",
                "s_mul_i32 s63, s62, 7",
                "s_sub_u32 s61, s61, s63",
                "s_lshl_b32 s62, s62, 10",
                "s_cmp_lt_u32 s61, 2",
                "s_cselect_b32 s63, s59, %d" % (W2F - 884736),
                "s_mul_i32 s61, s61, 442368",
                "s_add_u32 s61, s61, s62",
                "s_add_u32 s61, s61, s63",
                "buffer_load_dword v4, v3, s[%d:%d], s61 offen" % (SRD_WS, SRD_WS + 3)]
    timed = {}
    if max(T3) >= 0:
        a.e("s_lshr_b32 s60, s2, 3")
        a.e("s_lshl_b32 s60, s60, 2")
        a.e("s_add_u32 s60, s60, s3")
        a.e("s_and_b32 s59, s2, 7")
        a.e("s_mul_i32 s59, s59, 884736")
        a.e("s_add_u32 s59, s59, %d" % ACTF)
        a.e("v_lshrrev_b32 v3, 3, v0")
        a.e("v_mul_u32_u24 v3, 55296, v3")
        a.e("v_and_b32 v4, 7, v0")
        a.e("v_lshl_add_u32 v3, v4, 7, v3")
        for t in range(3):
            if T3[t] > 0:
                timed.setdefault(T3[t], []).append(touch(t))

    extra = []
    for i in range(5):
        extra.append(["global_load_dwordx2 v[%d:%d], v8, s[%d:%d] offset:%d" % (EX + 2 * i, EX + 2 * i + 1, P_U, P_U + 1, 32 * i)])
        extra.append(["global_load_dwordx2 v[%d:%d], v9, s[%d:%d] offset:%d" % (EDS + 2 * i, EDS + 2 * i + 1, P_DSK, P_DSK + 1, 32 * i)])
        extra.append(["buffer_load_dwordx2 v[%d:%d], v10, s[%d:%d], s40 offen offset:%d" % (EXN + 2 * i, EXN + 2 * i + 1, SRD_WS, SRD_WS + 3, 512 * i)])
        for r in range(4):
            extra.append(["s_add_u32 s42, s41, %d" % ((16 * i + r) * 4096),
                          "buffer_load_ushort v%d, v11, s[%d:%d], s42 offen" % (EY + 4 * i + r, SRD_WS, SRD_WS + 3)])
    gemm_loop2(a, vm, 27, 10, 5, 2, G2_NSLOT, 2048, ACC, AREG, BREG, G2_NB, 1, 2, SB, SL, SBB, 2048, 54 * 1024, epi_loads, extra, int(os.environ.get("XPER", "2")), 1, timed)
    assert not extra
    vm.waitall()
    a.stamp()
    a.e("s_nop 7")
    a.e("s_barrier")
    a.e("s_mul_i32 s6, s3, 5120")
    a.e("v_add_u32 v3, s6, v1")
    a.e("s_xor_b32 s7, s3, 2")
    a.e("s_mul_i32 s7, s7, 5120")
    a.e("v_add_u32 v4, s7, v1")
    lab1 = a.newlabel("L_x")
    lab2 = a.newlabel("L_x")
    a.e("s_cmp_eq_u32 s%d, 0" % SKH)
    a.e("s_cbranch_scc1 %s" % lab1)
    for i in range(5):
        a.e("ds_write_b128 v3, v[%d:%d] offset:%d" % (ACC + 8 * i, ACC + 8 * i + 3, 1024 * i))
    a.e("s_nop 3")
    for i in range(5):
        for r in range(4):
            a.e("v_mov_b32 v%d, v%d" % (ACC + 8 * i + r, ACC + 8 * i + 4 + r))
    a.e("s_branch %s" % lab2)
    a.label(lab1)
    for i in range(5):
        a.e("ds_write_b128 v3, v[%d:%d] offset:%d" % (ACC + 8 * i + 4, ACC + 8 * i + 7, 1024 * i))
    a.label(lab2)
    a.e("s_waitcnt lgkmcnt(0)")
    a.e("s_barrier")
    for i in range(5):
        a.e("ds_read_b128 v[%d:%d], v4 offset:%d" % (ACC + 8 * i + 4, ACC + 8 * i + 7, 1024 * i))
    T = 52
    for i in range(5):
        acc = ACC + 8 * i
        x, xn, ds, y = T, T + 4, T + 8, EY + 4 * i
        for (dst, src) in ((x, EX + 2 * i), (xn, EXN + 2 * i), (ds, EDS + 2 * i)):
            a.e("v_lshlrev_b32 v%d, 16, v%d" % (dst, src))
            a.e("v_and_b32 v%d, 0xffff0000, v%d" % (dst + 1, src))
            a.e("v_lshlrev_b32 v%d, 16, v%d" % (dst + 2, src + 1))
            a.e("v_and_b32 v%d, 0xffff0000, v%d" % (dst + 3, src + 1))
        for r in range(4):
            a.e("v_lshlrev_b32 v%d, 16, v%d" % (y + r, y + r))
            a.e("v_mul_f32 v%d, v%d, v%d" % (xn + r, xn + r, ds + r))

        def rnd4(b):
            a.e("v_cvt_pk_bf16_f32 v%d, v%d, v%d" % (T + 12, b, b + 1))
            a.e("v_cvt_pk_bf16_f32 v%d, v%d, v%d" % (T + 13, b + 2, b + 3))
            a.e("v_lshlrev_b32 v%d, 16, v%d" % (b, T + 12))
            a.e("v_and_b32 v%d, 0xffff0000, v%d" % (b + 1, T + 12))
            a.e("v_lshlrev_b32 v%d, 16, v%d" % (b + 2, T + 13))
            a.e("v_and_b32 v%d, 0xffff0000, v%d" % (b + 3, T + 13))
        rnd4(xn)
        for r in range(4):
            a.e("v_add_f32 v%d, v%d, v%d" % (xn + r, xn + r, y + r))
        rnd4(xn)
        for r in range(4):
            a.e("v_add_f32 v%d, v%d, v%d" % (xn + r, xn + r, x + r))
        rnd4(xn)
        a.e("s_waitcnt lgkmcnt(%d)" % (4 - i))
        for r in range(4):
            a.e("v_add_f32 v%d, v%d, v%d" % (acc + r, acc + r, acc + 4 + r))
        rnd4(acc)
        for r in range(4):
            a.e("v_add_f32 v%d, v%d, v%d" % (xn + r, xn + r, acc + r))
        o = 80 + 2 * i
        a.e("v_cvt_pk_bf16_f32 v%d, v%d, v%d" % (o, xn, xn + 1))
        a.e("v_cvt_pk_bf16_f32 v%d, v%d, v%d" % (o + 1, xn + 2, xn + 3))
        a.e("global_store_dwordx2 v8, v[%d:%d], s[%d:%d] offset:%d" % (o, o + 1, P_OUT, P_OUT + 1, 32 * i))
    a.stamp_out()
    a.label("L_end_p3")
    a.e("s_endpgm")


def kd(name, vgpr):
    nv = (vgpr + 7) // 8 * 8
    return """.amdhsa_kernel %s
  .amdhsa_next_free_vgpr %d
  .amdhsa_next_free_sgpr 96
  .amdhsa_accum_offset %d
  .amdhsa_group_segment_fixed_size 0
  .amdhsa_kernarg_size 112
  .amdhsa_user_sgpr_count 2
  .amdhsa_user_sgpr_kernarg_segment_ptr 1
  .amdhsa_system_sgpr_workgroup_id_x 1
.end_amdhsa_kernel
""" % (name, nv, nv)


def main():
    hdr = open("cdna_kernels/%s.s.ref" % NAME).read().splitlines()
    hdr = [l for l in hdr if l.startswith(";") and "@launch" not in l]
    out = hdr[:]
    out.append("; @launch kernel=prep_kernel grid=(%d,1,1) block=(256,1,1) lds=%d" % (P1_WGS, KG_LDS))
    out.append("; @launch kernel=mid_kernel grid=(%d,1,1) block=(256,1,1) lds=%d" % (P2_WGS, P2_LDS))
    out.append("; @launch kernel=fin_kernel grid=(%d,1,1) block=(256,1,1) lds=%d" % (P3_WGS, P3_LDS))
    out.append('.amdgcn_target "amdgcn-amd-amdhsa--gfx950"')
    out.append(".text")
    a = Asm()
    for (g, n) in ((gen_phase1, "prep_kernel"), (gen_phase2, "mid_kernel"), (gen_phase3, "fin_kernel")):
        a.lines.append(".globl %s" % n)
        a.lines.append(".p2align 8")
        a.lines.append(".type %s,@function" % n)
        g(a)
    out += a.lines
    out.append('.section .rodata,"a"')
    out.append(".p2align 6")
    out.append(kd("prep_kernel", 128))
    out.append(".p2align 6")
    out.append(kd("mid_kernel", 168))
    out.append(".p2align 6")
    out.append(kd("fin_kernel", 184))
    dst = os.environ.get("OUT", "cdna_kernels/%s.s" % NAME)
    open(dst, "w").write("\n".join(out) + "\n")


if __name__ == "__main__":
    main()
```
